```python
import torch

def _softmax(x, axis=-1):
    return torch.softmax(x, dim=axis)
def _gelu(x):
    return torch.nn.functional.gelu(x, approximate="tanh")
def _silu(x):
    return torch.nn.functional.silu(x)
def _sigmoid(x):
    return torch.sigmoid(x)
def _layernorm(x, axis=-1, eps=1e-5):
    m = x.mean(dim=axis, keepdim=True)
    v = x.var(dim=axis, keepdim=True, unbiased=False)
    return (x - m) / torch.sqrt(v + eps)
def _scatter_add(tgt, idx, src, axis=0):
    return tgt.clone().index_add_(axis, idx, src)
def _segment_sum(src, seg, n):
    out = torch.zeros((n,) + src.shape[1:], dtype=src.dtype)
    return out.index_add_(0, seg, src)
def _pad(x, pw):
    flat = tuple(v for pair in reversed(pw) for v in pair)
    return torch.nn.functional.pad(x, flat)

kernel_name = 'sequential_preLN__linear_attn_block__glu_gated_geglu__prompt'

def setup_inputs():

    _w = (lambda a: (lambda t: t.to(torch.bfloat16) if t.is_floating_point() else t)(torch.as_tensor(a)))
    def _A_setup():
        B, S, D = 1, 2048, 1024
        return {
            "x": _w((lambda *s: torch.randn(*s, dtype=torch.bfloat16) * 0.05)(B, S, D)),
            "wqkv": _w((lambda *s: torch.randn(*s, dtype=torch.bfloat16) * 0.05)(D, 3 * D)),
            "wo": _w((lambda *s: torch.randn(*s, dtype=torch.bfloat16) * 0.05)(D, D)),
        }
    _A_in = _A_setup()

    def _B_setup():
        B, S, Dm, Df = 1, 2048, 1024, 3584
        return {
            "x": _w((lambda *s: torch.randn(*s, dtype=torch.bfloat16) * 0.05)(B, S, Dm)),
            "w_gate": _w((lambda *s: torch.randn(*s, dtype=torch.bfloat16) * 0.4)(Dm, Df) * (Dm ** -0.5)),
            "w_up": _w((lambda *s: torch.randn(*s, dtype=torch.bfloat16) * 0.4)(Dm, Df) * (Dm ** -0.5)),
            "w_down": _w((lambda *s: torch.randn(*s, dtype=torch.bfloat16) * 0.4)(Df, Dm) * (Df ** -0.5)),
        }
    _B_in = _B_setup()

    return {
        "A_x": _A_in["x"],
        "A_wqkv": _A_in["wqkv"],
        "A_wo": _A_in["wo"],
        "B_x": _B_in["x"],
        "B_w_gate": _B_in["w_gate"],
        "B_w_up": _B_in["w_up"],
        "B_w_down": _B_in["w_down"],
    }

def reference(A_x, A_wqkv, A_wo, B_x, B_w_gate, B_w_up, B_w_down):
    def _A_ref(x, wqkv, wo):
        B, S, D = x.shape
        H = 32; Dh = D // H
        qkv = (lambda x, *d: x.permute(*d))((x @ wqkv).reshape(B, S, 3, H, Dh), 2, 0, 3, 1, 4)
        q, k, v = qkv[0], qkv[1], qkv[2]
        phi = lambda t: torch.where(t > 0, t + 1, torch.exp(t)) + 1e-6
        pq, pk = phi(q), phi(k)
        kv = torch.einsum("bhsd,bhse->bhde", pk, v)
        z = torch.einsum("bhsd->bhd", pk)
        num = torch.einsum("bhqd,bhde->bhqe", pq, kv)
        den = torch.einsum("bhqd,bhd->bhq", pq, z)[..., None] + 1e-6
        o = num / den
        return (lambda x, *d: x.permute(*d))(o, 0, 2, 1, 3).reshape(B, S, D) @ wo

    def _B_ref(x, w_gate, w_up, w_down):
        g = torch.einsum("bsd,df->bsf", x, w_gate)
        u = torch.einsum("bsd,df->bsf", x, w_up)
        h = _gelu(g) * u
        return torch.einsum("bsf,fd->bsd", h, w_down)

    x = A_x
    h = x + _A_ref(_layernorm(x, axis=-1), A_wqkv, A_wo)
    h2 = h + _B_ref(_layernorm(h, axis=-1), B_w_gate, B_w_up, B_w_down)
    return h2
```

```python
import sys

OUT = "sequential_preLN__linear_attn_block__glu_gated_geglu__prompt.s"

S, D, DF = 2048, 1024, 3584
MB = 1 << 20
WS_XN = 0
WS_PQ = 4 * MB
WS_KV = 8 * MB
WS_Z = WS_KV + 131072
WS_O = 9 * MB
WS_H = 13 * MB
WS_HN = 17 * MB
WS_HH = 21 * MB
KA = dict(x=0, wqkv=8, wo=16, bx=24, wg=32, wu=40, wd=48, out=56, dbg=64, ws=72)

LOG2E = 1.4426950408889634


def f32hex(x):
    import struct
    return "0x%08x" % struct.unpack("<I", struct.pack("<f", x))[0]


class Asm:
    def __init__(self):
        self.lines = []
        self.uid = 0

    def __call__(self, s):
        self.lines.append("    " + s)

    def label(self, s):
        self.lines.append(s + ":")

    def raw(self, s):
        self.lines.append(s)

    def newlabel(self, p):
        self.uid += 1
        return "L_%s_%d" % (p, self.uid)


def kernel_header(a, name):
    a.raw(".globl %s" % name)
    a.raw(".p2align 8")
    a.raw(".type %s,@function" % name)
    a.label(name)


def kernel_desc(name, nvgpr, accum, nsgpr=102):
    return """.p2align 6
.amdhsa_kernel %s
  .amdhsa_next_free_vgpr %d
  .amdhsa_next_free_sgpr %d
  .amdhsa_accum_offset %d
  .amdhsa_group_segment_fixed_size 0
  .amdhsa_kernarg_size 80
  .amdhsa_user_sgpr_count 2
  .amdhsa_user_sgpr_kernarg_segment_ptr 1
  .amdhsa_system_sgpr_workgroup_id_x 1
.end_amdhsa_kernel
""" % (name, nvgpr, nsgpr, accum)


def srd_from_ptr(a, d, p, nbytes, off=0):
    if off:
        a("s_add_u32 s%d, s%d, 0x%x" % (d, p, off))
        a("s_addc_u32 s%d, s%d, 0" % (d + 1, p + 1))
    else:
        a("s_mov_b32 s%d, s%d" % (d, p))
        a("s_mov_b32 s%d, s%d" % (d + 1, p + 1))
    a("s_mov_b32 s%d, 0x%x" % (d + 2, nbytes))
    a("s_mov_b32 s%d, 0x00020000" % (d + 3))


def ln_kernel(a, name, src, dst, zero_kv):
    kernel_header(a, name)
    end = a.newlabel("end")
    a("s_cmp_ge_u32 s2, %d" % (S // 4))
    a("s_cbranch_scc1 %s" % end)
    a("s_load_dwordx2 s[4:5], s[0:1], %d" % KA['ws'])
    if src[0] == 'arg':
        a("s_load_dwordx2 s[6:7], s[0:1], %d" % KA[src[1]])
    a("v_lshrrev_b32 v1, 6, v0")
    a("v_and_b32 v2, 63, v0")
    a("s_lshl_b32 s3, s2, 2")
    a("v_add_u32 v1, s3, v1")
    a("v_lshlrev_b32 v1, 11, v1")
    a("v_lshl_add_u32 v1, v2, 4, v1")
    a("s_waitcnt lgkmcnt(0)")
    if src[0] == 'arg':
        srd_from_ptr(a, 8, 6, S * D * 2)
    else:
        srd_from_ptr(a, 8, 4, S * D * 2, src[1])
    srd_from_ptr(a, 12, 4, S * D * 2, dst)
    a("buffer_load_dwordx4 v[4:7], v1, s[8:11], 0 offen")
    a("buffer_load_dwordx4 v[8:11], v1, s[8:11], 0 offen offset:1024")
    if zero_kv:
        skip = a.newlabel("nz")
        a("s_cmp_ge_u32 s2, 33")
        a("s_cbranch_scc1 %s" % skip)
        srd_from_ptr(a, 16, 4, 135168, WS_KV)
        a("s_lshl_b32 s3, s2, 12")
        a("v_lshlrev_b32 v3, 4, v0")
        a("v_add_u32 v3, s3, v3")
        a("v_mov_b32 v12, 0")
        a("v_mov_b32 v13, 0")
        a("v_mov_b32 v14, 0")
        a("v_mov_b32 v15, 0")
        a("buffer_store_dwordx4 v[12:15], v3, s[16:19], 0 offen")
        a.label(skip)
    a("s_waitcnt vmcnt(0)")
    for i in range(8):
        a("v_lshlrev_b32 v%d, 16, v%d" % (16 + 2 * i, 4 + i))
        a("v_and_b32 v%d, 0xffff0000, v%d" % (17 + 2 * i, 4 + i))

    def reduce(v, t):
        a("s_nop 1")
        a("v_add_f32_dpp %s, %s, %s quad_perm:[1,0,3,2] row_mask:0xf bank_mask:0xf" % (t, v, v))
        a("s_nop 1")
        a("v_add_f32_dpp %s, %s, %s quad_perm:[2,3,0,1] row_mask:0xf bank_mask:0xf" % (v, t, t))
        a("s_nop 1")
        a("v_add_f32_dpp %s, %s, %s row_half_mirror row_mask:0xf bank_mask:0xf" % (t, v, v))
        a("s_nop 1")
        a("v_add_f32_dpp %s, %s, %s row_mirror row_mask:0xf bank_mask:0xf" % (v, t, t))
        a("s_nop 1")
        a("v_readlane_b32 s20, %s, 0" % v)
        a("v_readlane_b32 s21, %s, 16" % v)
        a("v_readlane_b32 s22, %s, 32" % v)
        a("v_readlane_b32 s23, %s, 48" % v)
        a("s_nop 1")
        a("v_mov_b32 %s, s20" % v)
        a("v_add_f32 %s, s21, %s" % (v, v))
        a("v_add_f32 %s, s22, %s" % (v, v))
        a("v_add_f32 %s, s23, %s" % (v, v))

    a("v_add_f32 v32, v16, v17")
    for i in range(2, 16):
        a("v_add_f32 v32, v32, v%d" % (16 + i))
    reduce("v32", "v33")
    a("v_mul_f32 v32, %s, v32" % f32hex(1.0 / D))
    a("v_sub_f32 v34, v16, v32")
    a("v_mul_f32 v35, v34, v34")
    for i in range(1, 16):
        a("v_sub_f32 v34, v%d, v32" % (16 + i))
        a("v_fmac_f32 v35, v34, v34")
    reduce("v35", "v33")
    a("v_mul_f32 v35, %s, v35" % f32hex(1.0 / D))
    a("v_cvt_pk_bf16_f32 v36, v32, v35")
    a("v_lshlrev_b32 v32, 16, v36")
    a("v_and_b32 v35, 0xffff0000, v36")
    a("v_add_f32 v35, %s, v35" % f32hex(1e-5))
    a("v_cvt_pk_bf16_f32 v36, v35, v35")
    a("v_lshlrev_b32 v35, 16, v36")
    a("v_sqrt_f32 v35, v35")
    a("s_nop 0")
    a("v_cvt_pk_bf16_f32 v36, v35, v35")
    a("v_lshlrev_b32 v35, 16, v36")
    a("v_rcp_f32 v35, v35")
    for i in range(16):
        a("v_sub_f32 v%d, v%d, v32" % (16 + i, 16 + i))
    for i in range(8):
        a("v_cvt_pk_bf16_f32 v%d, v%d, v%d" % (4 + i, 16 + 2 * i, 17 + 2 * i))
    for i in range(8):
        a("v_lshlrev_b32 v%d, 16, v%d" % (16 + 2 * i, 4 + i))
        a("v_and_b32 v%d, 0xffff0000, v%d" % (17 + 2 * i, 4 + i))
    for i in range(16):
        a("v_mul_f32 v%d, v%d, v35" % (16 + i, 16 + i))
    for i in range(8):
        a("v_cvt_pk_bf16_f32 v%d, v%d, v%d" % (4 + i, 16 + 2 * i, 17 + 2 * i))
    a("buffer_store_dwordx4 v[4:7], v1, s[12:15], 0 offen")
    a("buffer_store_dwordx4 v[8:11], v1, s[12:15], 0 offen offset:1024")
    a.label(end)
    a("s_endpgm")
    return kernel_desc(name, 40, 40)


def apply_kernel(a, name):
    kernel_header(a, name)
    end = a.newlabel("end")
    a("s_cmp_ge_u32 s2, 256")
    a("s_cbranch_scc1 %s" % end)
    a("s_load_dwordx2 s[4:5], s[0:1], %d" % KA['ws'])
    a("v_lshrrev_b32 v1, 6, v0")
    a("v_and_b32 v0, 63, v0")
    a("s_nop 0")
    a("v_readfirstlane_b32 s28, v1")
    a("v_and_b32 v2, 15, v0")
    a("v_lshrrev_b32 v3, 4, v0")
    a("s_and_b32 s29, s2, 7")
    a("s_lshr_b32 s30, s2, 3")
    a("s_lshl_b32 s29, s29, 2")
    a("s_add_u32 s29, s29, s28")
    a("s_waitcnt lgkmcnt(0)")
    srd_from_ptr(a, 8, 4, S * D * 2, WS_PQ)
    srd_from_ptr(a, 12, 4, 135168, WS_KV)
    srd_from_ptr(a, 16, 4, S * D * 2, WS_O)
    a("v_lshlrev_b32 v4, 7, v2")
    a("v_lshl_add_u32 v4, v3, 5, v4")
    a("s_lshl_b32 s31, s29, 12")
    a("buffer_load_dwordx4 v[8:11], v4, s[12:15], s31 offen")
    a("buffer_load_dwordx4 v[12:15], v4, s[12:15], s31 offen offset:16")
    a("buffer_load_dwordx4 v[16:19], v4, s[12:15], s31 offen offset:2048")
    a("buffer_load_dwordx4 v[20:23], v4, s[12:15], s31 offen offset:2064")
    a("v_lshlrev_b32 v5, 5, v3")
    a("s_lshl_b32 s32, s29, 7")
    a("s_add_u32 s32, s32, 131072")
    a("buffer_load_dwordx4 v[24:27], v5, s[12:15], s32 offen")
    a("buffer_load_dwordx4 v[28:31], v5, s[12:15], s32 offen offset:16")
    a("v_lshlrev_b32 v6, 11, v2")
    a("v_lshl_add_u32 v6, v3, 4, v6")
    a("s_lshl_b32 s33, s30, 17")
    a("s_lshl_b32 s34, s29, 6")
    a("s_add_u32 s33, s33, s34")
    for i in range(4):
        a("s_add_u32 s34, s33, %d" % (i * 32768))
        a("buffer_load_dwordx4 v[%d:%d], v6, s[8:11], s34 offen" % (32 + 4 * i, 35 + 4 * i))
    a("s_waitcnt vmcnt(4)")
    for j in range(4):
        a("v_cvt_pk_bf16_f32 v%d, v%d, v%d" % (48 + j, 8 + 2 * j, 9 + 2 * j))
        a("v_cvt_pk_bf16_f32 v%d, v%d, v%d" % (52 + j, 16 + 2 * j, 17 + 2 * j))
        a("v_cvt_pk_bf16_f32 v%d, v%d, v%d" % (56 + j, 24 + 2 * j, 25 + 2 * j))
    a("s_waitcnt vmcnt(0)")
    a("s_nop 1")
    for i in range(4):
        a("v_mfma_f32_16x16x32_bf16 v[%d:%d], v[48:51], v[%d:%d], 0" % (64 + 12 * i, 67 + 12 * i, 32 + 4 * i, 35 + 4 * i))
        a("v_mfma_f32_16x16x32_bf16 v[%d:%d], v[52:55], v[%d:%d], 0" % (68 + 12 * i, 71 + 12 * i, 32 + 4 * i, 35 + 4 * i))
        a("v_mfma_f32_16x16x32_bf16 v[%d:%d], v[56:59], v[%d:%d], 0" % (72 + 12 * i, 75 + 12 * i, 32 + 4 * i, 35 + 4 * i))
    a("v_lshlrev_b32 v7, 11, v2")
    a("v_lshl_add_u32 v7, v3, 3, v7")
    a("s_nop 7")
    a("s_nop 1")
    for i in range(4):
        b = 64 + 12 * i
        a("v_cvt_pk_bf16_f32 v%d, v%d, v%d" % (b + 8, b + 8, b + 8))
        a("v_lshlrev_b32 v%d, 16, v%d" % (b + 8, b + 8))
        a("v_add_f32 v%d, %s, v%d" % (b + 8, f32hex(1e-6), b + 8))
        a("v_rcp_f32 v%d, v%d" % (b + 8, b + 8))
        a("s_nop 0")
        for r in range(8):
            a("v_mul_f32 v%d, v%d, v%d" % (b + r, b + r, b + 8))
        for r in range(4):
            a("v_cvt_pk_bf16_f32 v%d, v%d, v%d" % (b + r, b + 2 * r, b + 2 * r + 1))
        a("s_add_u32 s34, s33, %d" % (i * 32768))
        a("buffer_store_dwordx2 v[%d:%d], v7, s[16:19], s34 offen" % (b, b + 1))
        a("buffer_store_dwordx2 v[%d:%d], v7, s[16:19], s34 offen offset:32" % (b + 2, b + 3))
    a.label(end)
    a("s_endpgm")
    return kernel_desc(name, 112, 112)


S_WAVE, S_TM, S_TN, S_CNT = 28, 29, 30, 31
S_KX, S_KW, S_RD, S_WR, S_MX, S_MW = 32, 33, 34, 35, 36, 37
S_WM, S_WN = 38, 39
S_T0 = 40


def gemm_kernel(a, P):
    name = P['name']
    BM, BK, NST, K = P['BM'], P['BK'], P['NST'], P['K']
    ncg = P['ncg']
    ldx, ldw = P['ldx'], P['ldw']
    nks = BK // 32
    T = K // BK
    nsteps = K // 32
    XB = BM * BK * 2
    WB = BK * ncg * 64
    SB = XB + WB
    nxp = XB // 4096
    nwp = WB // 4096
    Dn = nxp + nwp
    mt = P['mt']
    ntl = P['ntiles']
    nt = len(ntl)
    ntsel = 1 + max(t[1] for t in ntl)
    assert NST * SB <= 163840
    V_L15, V_G = 1, 2
    v = 3
    V_XO = list(range(v, v + nxp)); v += nxp
    V_WO = list(range(v, v + nwp)); v += nwp
    nxa = 2 if BK == 64 else 1
    V_XAB = list(range(v, v + nxa)); v += nxa
    V_WAB = list(range(v, v + ntsel)); v += ntsel
    V_XA = list(range(v, v + nxa)); v += nxa
    V_WA = list(range(v, v + ntsel)); v += ntsel
    V_T = v; v += 6
    assert v <= 32, v
    ACC0 = 32
    nacc = mt * nt * 4
    assert ACC0 + nacc <= 256

    def acc(i, j):
        return ACC0 + (j * mt + i) * 4
    FS = (mt + nt) * 4

    def xf(s, i):
        return s * FS + i * 4

    def wf(s, j):
        return s * FS + mt * 4 + j * 4

    kernel_header(a, name)
    end = a.newlabel("end")
    a("s_cmp_ge_u32 s2, 256")
    a("s_cbranch_scc1 %s" % end)
    a("s_load_dwordx2 s[4:5], s[0:1], %d" % KA['ws'])
    a("s_load_dwordx2 s[6:7], s[0:1], %d" % KA[P['w'][0]])
    if len(P['w']) > 1:
        a("s_load_dwordx2 s[60:61], s[0:1], %d" % KA[P['w'][1]])
    for (sd, key) in P.get('argptrs', []):
        a("s_load_dwordx2 s[%d:%d], s[0:1], %d" % (sd, sd + 1, KA[key]))
    a("v_lshrrev_b32 v1, 6, v0")
    a("v_and_b32 v0, 63, v0")
    a("s_nop 0")
    a("v_readfirstlane_b32 s%d, v1" % S_WAVE)
    a("v_and_b32 v%d, 15, v0" % V_L15)
    a("v_lshrrev_b32 v%d, 4, v0" % V_G)
    mblk_bits = P['mblk_bits']
    a("s_and_b32 s%d, s2, 7" % S_T0)
    a("s_lshr_b32 s%d, s2, 3" % (S_T0 + 1))
    a("s_and_b32 s%d, s%d, %d" % (S_TM, S_T0, (1 << mblk_bits) - 1))
    a("s_lshl_b32 s%d, s%d, 3" % (S_TM, S_TM))
    a("s_and_b32 s%d, s%d, 7" % (S_T0 + 2, S_T0 + 1))
    a("s_add_u32 s%d, s%d, s%d" % (S_TM, S_TM, S_T0 + 2))
    a("s_lshr_b32 s%d, s%d, %d" % (S_TN, S_T0, mblk_bits))
    a("s_lshl_b32 s%d, s%d, 2" % (S_TN, S_TN))
    a("s_lshr_b32 s%d, s%d, 3" % (S_T0 + 2, S_T0 + 1))
    a("s_add_u32 s%d, s%d, s%d" % (S_TN, S_TN, S_T0 + 2))
    a("s_and_b32 s%d, s%d, 1" % (S_WM, S_WAVE))
    a("s_lshr_b32 s%d, s%d, 1" % (S_WN, S_WAVE))
    a("s_waitcnt lgkmcnt(0)")
    srd_from_ptr(a, 8, 4, S * ldx, P['x_ws'])
    if len(P['w']) > 1:
        a("s_cmp_ge_u32 s%d, 2" % S_WAVE)
        a("s_cselect_b32 s6, s60, s6")
        a("s_cselect_b32 s7, s61, s7")
    srd_from_ptr(a, 12, 6, K * ldw)
    P['srds'](a)

    t0, t1, t2, t3 = V_T, V_T + 1, V_T + 2, V_T + 3
    if BK == 64:
        rpp = 8
        a("v_lshrrev_b32 v%d, 3, v0" % t0)
        a("v_and_b32 v%d, 7, v0" % t1)
        a("v_xor_b32 v%d, v%d, v%d" % (t1, t1, t0))
    else:
        rpp = 16
        a("v_lshrrev_b32 v%d, 2, v0" % t0)
        a("v_bfe_u32 v%d, v0, 4, 1" % t2)
        a("v_bfe_u32 v%d, v0, 5, 1" % t3)
        a("v_xor_b32 v%d, v%d, v%d" % (t2, t2, t3))
        a("v_lshl_or_b32 v%d, v%d, 1, v%d" % (t2, t2, t3))
        a("v_and_b32 v%d, 3, v0" % t1)
        a("v_xor_b32 v%d, v%d, v%d" % (t1, t1, t2))
    a("s_mul_i32 s%d, s%d, %d" % (S_T0, S_TM, BM))
    a("s_mul_i32 s%d, s%d, %d" % (S_T0 + 1, S_WAVE, nxp * rpp))
    a("s_add_u32 s%d, s%d, s%d" % (S_T0, S_T0, S_T0 + 1))
    a("v_add_u32 v%d, s%d, v%d" % (t0, S_T0, t0))
    a("s_mov_b32 s%d, %d" % (S_T0 + 1, ldx))
    a("v_mul_lo_u32 v%d, v%d, s%d" % (t0, t0, S_T0 + 1))
    a("v_lshl_add_u32 v%d, v%d, 4, v%d" % (V_XO[0], t1, t0))
    for i in range(1, nxp):
        a("v_add_u32 v%d, 0x%x, v%d" % (V_XO[i], i * rpp * ldx, V_XO[0]))
    a("v_lshrrev_b32 v%d, 2, v0" % t0)
    a("v_lshrrev_b32 v%d, 5, v0" % t2)
    a("v_lshlrev_b32 v%d, 1, v%d" % (t2, t2))
    a("v_and_b32 v%d, 3, v0" % t1)
    a("v_xor_b32 v%d, v%d, v%d" % (t1, t1, t2))
    a("s_mov_b32 s%d, %d" % (S_T0 + 1, ldw))
    a("v_mul_lo_u32 v%d, v%d, s%d" % (t0, t0, S_T0 + 1))
    a("v_lshl_add_u32 v%d, v%d, 4, v%d" % (t0, t1, t0))
    wA, wB, lA, lB = P['w_wave']
    a("s_mul_i32 s%d, s%d, %d" % (S_T0, S_WM, wA))
    a("s_mul_i32 s%d, s%d, %d" % (S_T0 + 1, S_WN, wB))
    a("s_add_u32 s%d, s%d, s%d" % (S_T0, S_T0, S_T0 + 1))
    a("s_mul_i32 s%d, s%d, %d" % (S_T0 + 1, S_TN, P['tn_bytes']))
    a("s_add_u32 s%d, s%d, s%d" % (S_T0, S_T0, S_T0 + 1))
    a("v_add_u32 v%d, s%d, v%d" % (t0, S_T0, t0))
    for i in range(nwp):
        a("v_add_u32 v%d, 0x%x, v%d" % (V_WO[i], P['w_slot'][i][0], t0))
    a("s_mul_i32 s%d, s%d, %d" % (S_MX, S_WAVE, nxp * 1024))
    a("s_mul_i32 s%d, s%d, %d" % (S_MW, S_WM, lA))
    a("s_mul_i32 s%d, s%d, %d" % (S_T0, S_WN, lB))
    a("s_add_u32 s%d, s%d, s%d" % (S_MW, S_MW, S_T0))
    a("s_add_u32 s%d, s%d, %d" % (S_MW, S_MW, XB))
    if BK == 64:
        a("v_and_b32 v%d, 7, v0" % t0)
        a("v_xor_b32 v%d, v%d, v%d" % (t0, t0, V_G))
        a("v_lshlrev_b32 v%d, 4, v%d" % (t0, t0))
        a("v_lshl_add_u32 v%d, v%d, 7, v%d" % (t0, V_L15, t0))
        a("s_mul_i32 s%d, s%d, %d" % (S_T0, S_WM, mt * 16 * 128))
        a("v_add_u32 v%d, s%d, v%d" % (V_XAB[0], S_T0, t0))
        a("v_xor_b32 v%d, 64, v%d" % (V_XAB[1], V_XAB[0]))
        xmstride = 2048
    else:
        a("v_bfe_u32 v%d, v0, 2, 1" % t2)
        a("v_bfe_u32 v%d, v0, 3, 1" % t3)
        a("v_xor_b32 v%d, v%d, v%d" % (t2, t2, t3))
        a("v_lshl_or_b32 v%d, v%d, 1, v%d" % (t2, t2, t3))
        a("v_xor_b32 v%d, v%d, v%d" % (t0, t2, V_G))
        a("v_lshlrev_b32 v%d, 4, v%d" % (t0, t0))
        a("v_lshl_add_u32 v%d, v%d, 6, v%d" % (t0, V_L15, t0))
        a("s_mul_i32 s%d, s%d, %d" % (S_T0, S_WM, mt * 16 * 64))
        a("v_add_u32 v%d, s%d, v%d" % (V_XAB[0], S_T0, t0))
        xmstride = 1024
    a("v_lshrrev_b32 v%d, 1, v%d" % (t0, V_G))
    a("s_mov_b32 s%d, %d" % (S_T0, ncg * 1024))
    a("v_mul_lo_u32 v%d, v%d, s%d" % (t0, t0, S_T0))
    a("v_and_b32 v%d, 1, v%d" % (t1, V_G))
    a("v_lshrrev_b32 v%d, 2, v%d" % (t2, V_L15))
    a("v_lshl_add_u32 v%d, v%d, 3, v%d" % (t2, t1, t2))
    a("v_lshl_add_u32 v%d, v%d, 6, v%d" % (t0, t2, t0))
    a("v_bfe_u32 v%d, v0, 1, 1" % t2)
    a("v_lshl_add_u32 v%d, v%d, 4, v%d" % (t0, t2, t0))
    a("v_and_b32 v%d, 1, v0" % t2)
    a("v_lshl_add_u32 v%d, v%d, 3, v%d" % (t0, t2, t0))
    a("s_mul_i32 s%d, s%d, %d" % (S_T0, S_WN, P['wr_wave']))
    a("s_add_u32 s%d, s%d, %d" % (S_T0, S_T0, XB))
    a("v_add_u32 v%d, s%d, v%d" % (t0, S_T0, t0))
    if P.get('t_is_wn'):
        a("v_xor_b32 v%d, s%d, v%d" % (t1, S_WN, t1))
        a("v_lshl_add_u32 v%d, v%d, 5, v%d" % (V_WAB[0], t1, t0))
    else:
        a("v_lshl_add_u32 v%d, v%d, 5, v%d" % (V_WAB[0], t1, t0))
        if ntsel > 1:
            a("v_xor_b32 v%d, 32, v%d" % (V_WAB[1], V_WAB[0]))
    for r in range(nacc):
        a("v_mov_b32 v%d, 0" % (ACC0 + r))

    def dma_groups(slot_sgpr):
        g = []
        for i in range(nxp):
            g.append(["s_add_u32 s%d, s%d, s%d" % (S_T0, slot_sgpr, S_MX),
                      "s_add_u32 m0, s%d, %d" % (S_T0, i * 1024),
                      "s_nop 0",
                      "buffer_load_dwordx4 v%d, s[8:11], s%d offen lds" % (V_XO[i], S_KX)])
        for i in range(nwp):
            g.append(["s_add_u32 s%d, s%d, s%d" % (S_T0, slot_sgpr, S_MW),
                      "s_add_u32 m0, s%d, %d" % (S_T0, P['w_slot'][i][1]),
                      "s_nop 0",
                      "buffer_load_dwordx4 v%d, s[12:15], s%d offen lds" % (V_WO[i], S_KW)])
        return g

    def kadv():
        return ["s_add_u32 s%d, s%d, %d" % (S_KX, S_KX, BK * 2),
                "s_add_u32 s%d, s%d, %d" % (S_KW, S_KW, BK * ldw)]

    def reads(fs, ks):
        r = []
        for i in range(mt):
            r.append(["ds_read_b128 a[%d:%d], v%d offset:%d" % (xf(fs, i), xf(fs, i) + 3, V_XA[ks if BK == 64 else 0], i * xmstride)])
        for j, (cg, ts, sw) in enumerate(ntl):
            for hf in range(2):
                off = cg * 1024 + hf * 256 + ks * 2 * ncg * 1024
                r.append(["ds_read_b64_tr_b16 a[%d:%d], v%d offset:%d" % (wf(fs, j) + 2 * hf, wf(fs, j) + 2 * hf + 1, V_WA[ts], off)])
        return r

    def mfmas(fs):
        m = []
        for j, (cg, ts, sw) in enumerate(ntl):
            for i in range(mt):
                A, B = (wf(fs, j), xf(fs, i)) if sw else (xf(fs, i), wf(fs, j))
                c = acc(i, j)
                m.append("v_mfma_f32_16x16x32_bf16 v[%d:%d], a[%d:%d], a[%d:%d], v[%d:%d]" % (c, c + 3, A, A + 3, B, B + 3, c, c + 3))
        return m

    def addr_update():
        o = []
        for x in range(nxa):
            o.append("v_add_u32 v%d, s%d, v%d" % (V_XA[x], S_RD, V_XAB[x]))
        for x in range(ntsel):
            o.append("v_add_u32 v%d, s%d, v%d" % (V_WA[x], S_RD, V_WAB[x]))
        return o

    a("s_mov_b32 s%d, 0" % S_KX)
    a("s_mov_b32 s%d, 0" % S_KW)
    a("s_mov_b32 s%d, 0" % S_WR)
    for st in range(NST - 1):
        for g in dma_groups(S_WR):
            for x in g:
                a(x)
        for x in kadv():
            a(x)
        a("s_add_u32 s%d, s%d, %d" % (S_WR, S_WR, SB))
    a("s_mov_b32 s%d, 0" % S_RD)
    a("s_waitcnt vmcnt(%d)" % (Dn * (NST - 2)))
    a("s_barrier")
    for g in dma_groups(S_WR):
        for x in g:
            a(x)
    for x in kadv():
        a(x)
    for x in addr_update():
        a(x)
    for r in reads(0, 0):
        for x in r:
            a(x)
    a("s_waitcnt lgkmcnt(0)")

    def emit_step(n):
        fs = n & 1
        ks = n % nks
        last = (n + 1 == nsteps)
        ev = (not last) and ((n + 1) % nks == 0)
        extras = []
        if ev:
            e = (n + 1) // nks
            do_dma = (e + NST - 1 < T)
            vm = Dn * (min(e + NST - 2, T - 1) - e)
            a("s_waitcnt vmcnt(%d)" % vm)
            a("s_barrier")
            a("s_mov_b32 s%d, s%d" % (S_WR, S_RD))
            a("s_add_u32 s%d, s%d, %d" % (S_RD, S_RD, SB))
            a("s_cmp_eq_u32 s%d, %d" % (S_RD, NST * SB))
            a("s_cselect_b32 s%d, 0, s%d" % (S_RD, S_RD))
            for x in addr_update():
                a(x)
        if not last:
            extras += reads(fs ^ 1, (n + 1) % nks)
        if ev and do_dma:
            extras += dma_groups(S_WR)
            extras.append(kadv())
        mm = mfmas(fs)
        nm = len(mm)
        ne = len(extras)
        span = max(1, int(nm * P.get('span', 0.85)))
        pos = [min(nm - 1, (k * span) // max(ne, 1)) for k in range(ne)]
        k = 0
        for idx, m in enumerate(mm):
            a(m)
            while k < ne and pos[k] == idx:
                for x in extras[k]:
                    a(x)
                k += 1
        if not last:
            a("s_waitcnt lgkmcnt(0)")

    def uniform(n):
        if n + 1 == nsteps:
            return False
        if (n + 1) % nks:
            return True
        e = (n + 1) // nks
        return e + NST - 1 < T

    n_roll = 0
    while n_roll + 1 < nsteps and uniform(n_roll) and uniform(n_roll + 1):
        n_roll += 2
    if n_roll >= 4:
        a("s_mov_b32 s%d, %d" % (S_CNT, n_roll // 2))
        loop = a.newlabel("loop")
        a.label(loop)
        emit_step(0)
        emit_step(1)
        a("s_sub_u32 s%d, s%d, 1" % (S_CNT, S_CNT))
        a("s_cmp_lg_u32 s%d, 0" % S_CNT)
        a("s_cbranch_scc1 %s" % loop)
    else:
        n_roll = 0
    for n in range(n_roll, nsteps):
        emit_step(n)
    a("s_nop 7")
    a("s_nop 7")
    ctx = dict(acc=acc, mt=mt, nt=nt, V_L15=V_L15, V_G=V_G, V_T=V_T, BM=BM, ACC0=ACC0, nacc=nacc)
    P['epilogue'](a, ctx)
    a.label(end)
    a("s_endpgm")
    return kernel_desc(name, 256 + 2 * FS, 256)


def phi_ops(a, regs, tmp):
    for r, t in zip(regs, tmp):
        a("v_min_f32 v%d, 0, v%d" % (t, r))
    for r, t in zip(regs, tmp):
        a("v_mul_f32 v%d, %s, v%d" % (t, f32hex(LOG2E), t))
    for r, t in zip(regs, tmp):
        a("v_exp_f32 v%d, v%d" % (t, t))
    for r, t in zip(regs, tmp):
        a("v_max_f32 v%d, 0, v%d" % (r, r))
    for r, t in zip(regs, tmp):
        a("v_add_f32 v%d, v%d, v%d" % (r, r, t))
    for r, t in zip(regs, tmp):
        a("v_add_f32 v%d, %s, v%d" % (r, f32hex(1e-6), r))


def round4(a, c, t0, t1):
    a("v_cvt_pk_bf16_f32 v%d, v%d, v%d" % (t0, c, c + 1))
    a("v_cvt_pk_bf16_f32 v%d, v%d, v%d" % (t1, c + 2, c + 3))
    a("v_lshlrev_b32 v%d, 16, v%d" % (c, t0))
    a("v_and_b32 v%d, 0xffff0000, v%d" % (c + 1, t0))
    a("v_lshlrev_b32 v%d, 16, v%d" % (c + 2, t1))
    a("v_and_b32 v%d, 0xffff0000, v%d" % (c + 3, t1))


def epi_gemm1(a, c):
    acc, V_L15, V_G = c['acc'], c['V_L15'], c['V_G']
    TMP = 130
    a("s_lshl_b32 s%d, s%d, 7" % (S_T0, S_TM))
    a("s_lshl_b32 s%d, s%d, 6" % (S_T0 + 1, S_WM))
    a("s_add_u32 s%d, s%d, s%d" % (S_T0, S_T0, S_T0 + 1))
    a("s_lshl_b32 s%d, s%d, 11" % (S_T0, S_T0))
    a("s_lshl_b32 s%d, s%d, 7" % (S_T0 + 1, S_TN))
    a("s_add_u32 s%d, s%d, s%d" % (S_T0, S_T0, S_T0 + 1))
    a("s_lshl_b32 s%d, s%d, 6" % (S_T0 + 1, S_WN))
    a("s_add_u32 s%d, s%d, s%d" % (S_T0, S_T0, S_T0 + 1))
    a("v_lshlrev_b32 v128, 11, v%d" % V_L15)
    a("v_lshl_add_u32 v128, v%d, 3, v128" % V_G)
    for i in range(4):
        for j in range(2):
            cc = acc(i, j)
            round4(a, cc, TMP, TMP + 1)
            phi_ops(a, [cc + r for r in range(4)], [TMP + r for r in range(4)])
            a("v_cvt_pk_bf16_f32 v%d, v%d, v%d" % (cc, cc, cc + 1))
            a("v_cvt_pk_bf16_f32 v%d, v%d, v%d" % (cc + 1, cc + 2, cc + 3))
            a("s_add_u32 s%d, s%d, %d" % (S_T0 + 2, S_T0, i * 16 * 2048))
            a("buffer_store_dwordx2 v[%d:%d], v128, s[16:19], s%d offen offset:%d" % (cc, cc + 1, S_T0 + 2, j * 32))
    PK, VF, ONE, KVA, ZA = 136, 152, 168, 172, 188
    for i in range(4):
        for dt in range(2):
            cc = acc(i, 2 + dt)
            round4(a, cc, TMP, TMP + 1)
            phi_ops(a, [cc + r for r in range(4)], [TMP + r for r in range(4)])
            d = PK + (dt * 2 + (i >> 1)) * 4 + (i & 1) * 2
            a("v_cvt_pk_bf16_f32 v%d, v%d, v%d" % (d, cc, cc + 1))
            a("v_cvt_pk_bf16_f32 v%d, v%d, v%d" % (d + 1, cc + 2, cc + 3))
        for et in range(2):
            cc = acc(i, 4 + et)
            d = VF + (et * 2 + (i >> 1)) * 4 + (i & 1) * 2
            a("v_cvt_pk_bf16_f32 v%d, v%d, v%d" % (d, cc, cc + 1))
            a("v_cvt_pk_bf16_f32 v%d, v%d, v%d" % (d + 1, cc + 2, cc + 3))
    for r in range(4):
        a("v_mov_b32 v%d, 0x3f803f80" % (ONE + r))
    a("s_nop 1")
    for et in range(2):
        for dt in range(2):
            d = KVA + (et * 2 + dt) * 4
            for ks in range(2):
                A = VF + (et * 2 + ks) * 4
                B = PK + (dt * 2 + ks) * 4
                cin = "0" if ks == 0 else "v[%d:%d]" % (d, d + 3)
                a("v_mfma_f32_16x16x32_bf16 v[%d:%d], v[%d:%d], v[%d:%d], %s" % (d, d + 3, A, A + 3, B, B + 3, cin))
    for dt in range(2):
        d = ZA + dt * 4
        for ks in range(2):
            B = PK + (dt * 2 + ks) * 4
            cin = "0" if ks == 0 else "v[%d:%d]" % (d, d + 3)
            a("v_mfma_f32_16x16x32_bf16 v[%d:%d], v[%d:%d], v[%d:%d], %s" % (d, d + 3, ONE, ONE + 3, B, B + 3, cin))
    a("s_lshl_b32 s%d, s%d, 1" % (S_T0, S_TN))
    a("s_add_u32 s%d, s%d, s%d" % (S_T0, S_T0, S_WN))
    a("s_lshl_b32 s%d, s%d, 12" % (S_T0 + 1, S_T0))
    a("s_lshl_b32 s%d, s%d, 7" % (S_T0 + 2, S_T0))
    a("s_add_u32 s%d, s%d, 131072" % (S_T0 + 2, S_T0 + 2))
    a("v_lshlrev_b32 v129, 9, v%d" % V_G)
    a("v_lshl_add_u32 v129, v%d, 2, v129" % V_L15)
    a("v_lshlrev_b32 v128, 2, v%d" % V_L15)
    a("s_nop 7")
    a("s_nop 3")
    for et in range(2):
        for dt in range(2):
            d = KVA + (et * 2 + dt) * 4
            for r in range(4):
                a("buffer_atomic_add_f32 v%d, v129, s[20:23], s%d offen offset:%d" % (d + r, S_T0 + 1, et * 2048 + r * 128 + dt * 64))
    a("s_mov_b64 exec, 0xffff")
    for dt in range(2):
        a("buffer_atomic_add_f32 v%d, v128, s[20:23], s%d offen offset:%d" % (ZA + dt * 4, S_T0 + 2, dt * 64))
    a("s_mov_b64 exec, -1")


def make_epi_resid(ld_bytes):
    def epi(a, c):
        acc, V_L15, V_G, mt, nt = c['acc'], c['V_L15'], c['V_G'], c['mt'], c['nt']
        a("s_lshl_b32 s%d, s%d, 6" % (S_T0, S_TM))
        a("s_lshl_b32 s%d, s%d, 5" % (S_T0 + 1, S_WM))
        a("s_add_u32 s%d, s%d, s%d" % (S_T0, S_T0, S_T0 + 1))
        a("s_lshl_b32 s%d, s%d, 11" % (S_T0, S_T0))
        a("s_lshl_b32 s%d, s%d, 8" % (S_T0 + 1, S_TN))
        a("s_add_u32 s%d, s%d, s%d" % (S_T0, S_T0, S_T0 + 1))
        a("s_lshl_b32 s%d, s%d, 7" % (S_T0 + 1, S_WN))
        a("s_add_u32 s%d, s%d, s%d" % (S_T0, S_T0, S_T0 + 1))
        a("s_add_u32 s%d, s%d, %d" % (S_T0 + 1, S_T0, 16 * 2048))
        a("v_lshlrev_b32 v128, 11, v%d" % V_L15)
        a("v_lshl_add_u32 v128, v%d, 3, v128" % V_G)
        R = 132
        for i in range(mt):
            for j in range(nt):
                d = R + (i * nt + j) * 2
                a("buffer_load_dwordx2 v[%d:%d], v128, s[20:23], s%d offen offset:%d" % (d, d + 1, S_T0 + i, j * 32))
        for i in range(mt):
            for j in range(nt):
                round4(a, acc(i, j), 130, 131)
        a("s_waitcnt vmcnt(0)")
        for i in range(mt):
            for j in range(nt):
                d = R + (i * nt + j) * 2
                cc = acc(i, j)
                a("v_lshlrev_b32 v130, 16, v%d" % d)
                a("v_and_b32 v131, 0xffff0000, v%d" % d)
                a("v_add_f32 v%d, v%d, v130" % (cc, cc))
                a("v_add_f32 v%d, v%d, v131" % (cc + 1, cc + 1))
                a("v_lshlrev_b32 v130, 16, v%d" % (d + 1))
                a("v_and_b32 v131, 0xffff0000, v%d" % (d + 1))
                a("v_add_f32 v%d, v%d, v130" % (cc + 2, cc + 2))
                a("v_add_f32 v%d, v%d, v131" % (cc + 3, cc + 3))
                a("v_cvt_pk_bf16_f32 v%d, v%d, v%d" % (cc, cc, cc + 1))
                a("v_cvt_pk_bf16_f32 v%d, v%d, v%d" % (cc + 1, cc + 2, cc + 3))
                a("buffer_store_dwordx2 v[%d:%d], v128, s[16:19], s%d offen offset:%d" % (cc, cc + 1, S_T0 + i, j * 32))
    return epi


def epi_gemm3(a, c):
    acc, V_L15, V_G = c['acc'], c['V_L15'], c['V_G']
    ldo = DF * 2
    a("s_lshl_b32 s%d, s%d, 7" % (S_T0, S_TM))
    a("s_lshl_b32 s%d, s%d, 6" % (S_T0 + 1, S_WM))
    a("s_add_u32 s%d, s%d, s%d" % (S_T0, S_T0, S_T0 + 1))
    a("s_mul_i32 s%d, s%d, %d" % (S_T0, S_T0, ldo))
    a("s_mul_i32 s%d, s%d, 448" % (S_T0 + 1, S_TN))
    a("s_add_u32 s%d, s%d, s%d" % (S_T0, S_T0, S_T0 + 1))
    a("s_lshl_b32 s%d, s%d, 5" % (S_T0 + 1, S_WN))
    a("s_add_u32 s%d, s%d, s%d" % (S_T0, S_T0, S_T0 + 1))
    for i in range(1, 4):
        a("s_add_u32 s%d, s%d, %d" % (S_T0 + i, S_T0, i * 16 * ldo))
    a("s_mov_b32 s%d, %d" % (S_T0 + 4, ldo))
    t = c['V_T']
    VA = 3
    a("v_mul_lo_u32 v%d, v%d, s%d" % (VA, V_L15, S_T0 + 4))
    a("v_lshl_add_u32 v%d, v%d, 3, v%d" % (VA, V_G, VA))
    c1 = -2.0 * LOG2E * 0.7978845608028654
    c2 = c1 * 0.044715
    a("s_mov_b32 s%d, %s" % (S_T0 + 6, f32hex(c1)))
    a("s_mov_b32 s%d, %s" % (S_T0 + 7, f32hex(c1)))
    a("s_mov_b32 s%d, %s" % (S_T0 + 8, f32hex(c2)))
    a("s_mov_b32 s%d, %s" % (S_T0 + 9, f32hex(c2)))
    a("v_mov_b32 v4, %s" % f32hex(c1))
    a("v_mov_b32 v5, %s" % f32hex(c1))
    T0 = 6
    for i in range(4):
        for j in range(7):
            g = acc(i, j)
            u = acc(i, 7 + j)
            for h in range(2):
                gg = g + 2 * h
                tt = T0 + 2 * h
                a("v_pk_mul_f32 v[%d:%d], v[%d:%d], v[%d:%d]" % (tt, tt + 1, gg, gg + 1, gg, gg + 1))
            for h in range(2):
                tt = T0 + 2 * h
                a("v_pk_fma_f32 v[%d:%d], v[%d:%d], s[%d:%d], v[4:5]" % (tt, tt + 1, tt, tt + 1, S_T0 + 8, S_T0 + 9))
            for h in range(2):
                gg = g + 2 * h
                tt = T0 + 2 * h
                a("v_pk_mul_f32 v[%d:%d], v[%d:%d], v[%d:%d]" % (tt, tt + 1, tt, tt + 1, gg, gg + 1))
            for r in range(4):
                a("v_exp_f32 v%d, v%d" % (T0 + r, T0 + r))
            for h in range(2):
                gg = g + 2 * h
                uu = u + 2 * h
                a("v_pk_mul_f32 v[%d:%d], v[%d:%d], v[%d:%d]" % (gg, gg + 1, gg, gg + 1, uu, uu + 1))
            for r in range(4):
                a("v_add_f32 v%d, 1.0, v%d" % (T0 + r, T0 + r))
            for r in range(4):
                a("v_rcp_f32 v%d, v%d" % (T0 + r, T0 + r))
            a("s_nop 0")
            for h in range(2):
                gg = g + 2 * h
                tt = T0 + 2 * h
                a("v_pk_mul_f32 v[%d:%d], v[%d:%d], v[%d:%d]" % (gg, gg + 1, gg, gg + 1, tt, tt + 1))
            a("v_cvt_pk_bf16_f32 v%d, v%d, v%d" % (g, g, g + 1))
            a("v_cvt_pk_bf16_f32 v%d, v%d, v%d" % (g + 1, g + 2, g + 3))
            a("buffer_store_dwordx2 v[%d:%d], v%d, s[16:19], s%d offen offset:%d" % (g, g + 1, VA, S_T0 + i, j * 64))


def build():
    a = Asm()
    descs = []
    launches = []

    descs.append(ln_kernel(a, "ln1_kernel", ('arg', 'x'), WS_XN, True))
    launches.append(("ln1_kernel", S // 4, 256, 0))

    ldw = 3 * D * 2

    def srds1(a):
        srd_from_ptr(a, 16, 4, S * D * 2, WS_PQ)
        srd_from_ptr(a, 20, 4, 135168, WS_KV)
    cgcol = [0, 64, 2048, 2048 + 64, 4096, 4096 + 64]
    P1 = dict(name="gemm1_kernel", BM=128, BK=64, NST=3, K=D, ncg=6, ldx=D * 2, ldw=ldw, x_ws=WS_XN,
              w=['wqkv'], mt=4,
              ntiles=[(0, 0, True), (0, 1, True), (2, 0, False), (2, 1, False), (4, 0, False), (4, 1, False)],
              mblk_bits=1, srds=srds1,
              w_wave=(16 * ldw, 32 * ldw, 6 * 1024, 12 * 1024),
              w_slot=[(cgcol[i], i * 1024) for i in range(6)],
              tn_bytes=128, wr_wave=1024, epilogue=epi_gemm1)
    descs.append(gemm_kernel(a, P1))
    launches.append(("gemm1_kernel", 256, 256, 3 * (128 * 128 + 64 * 6 * 64)))

    descs.append(apply_kernel(a, "apply_kernel"))
    launches.append(("apply_kernel", 256, 256, 0))

    def srds2(a):
        srd_from_ptr(a, 16, 4, S * D * 2, WS_H)
        srd_from_ptr(a, 20, 62, S * D * 2)
    ldw = D * 2
    P2 = dict(name="gemm2_kernel", BM=64, BK=64, NST=4, K=D, ncg=4, ldx=D * 2, ldw=ldw, x_ws=WS_O,
              w=['wo'], argptrs=[(62, 'x')], mt=2,
              ntiles=[(0, 0, True), (0, 1, True), (1, 0, True), (1, 1, True)],
              mblk_bits=2, srds=srds2,
              w_wave=(16 * ldw, 32 * ldw, 4 * 1024, 8 * 1024),
              w_slot=[(i * 64, i * 1024) for i in range(4)],
              tn_bytes=256, wr_wave=2048, epilogue=make_epi_resid(D * 2))
    descs.append(gemm_kernel(a, P2))
    launches.append(("gemm2_kernel", 256, 256, 4 * (64 * 128 + 64 * 4 * 64)))

    descs.append(ln_kernel(a, "ln2_kernel", ('ws', WS_H), WS_HN, False))
    launches.append(("ln2_kernel", S // 4, 256, 0))

    def srds3(a):
        srd_from_ptr(a, 16, 4, S * DF * 2, WS_HH)
    ldw = DF * 2
    P3 = dict(name="gemm3_kernel", BM=128, BK=32, NST=4, K=D, ncg=14, ldx=D * 2, ldw=ldw, x_ws=WS_HN,
              w=['wg', 'wu'], mt=4,
              ntiles=[(i, 0, True) for i in range(14)],
              mblk_bits=1, srds=srds3, t_is_wn=True,
              w_wave=(16 * ldw, 0, 14 * 1024, 7 * 1024),
              w_slot=[(i * 64, i * 1024) for i in range(7)],
              tn_bytes=448, wr_wave=0, epilogue=epi_gemm3)
    descs.append(gemm_kernel(a, P3))
    launches.append(("gemm3_kernel", 256, 256, 4 * (128 * 64 + 32 * 14 * 64)))

    def srds4(a):
        srd_from_ptr(a, 16, 62, S * D * 2)
        srd_from_ptr(a, 20, 4, S * D * 2, WS_H)
    ldw = D * 2
    P4 = dict(name="gemm4_kernel", BM=64, BK=64, NST=4, K=DF, ncg=4, ldx=DF * 2, ldw=ldw, x_ws=WS_HH,
              w=['wd'], argptrs=[(62, 'out')], mt=2,
              ntiles=[(0, 0, True), (0, 1, True), (1, 0, True), (1, 1, True)],
              mblk_bits=2, srds=srds4,
              w_wave=(16 * ldw, 32 * ldw, 4 * 1024, 8 * 1024),
              w_slot=[(i * 64, i * 1024) for i in range(4)],
              tn_bytes=256, wr_wave=2048, epilogue=make_epi_resid(D * 2))
    descs.append(gemm_kernel(a, P4))
    launches.append(("gemm4_kernel", 256, 256, 4 * (64 * 128 + 64 * 4 * 64)))

    hdr = ["; pre-LN linear attention block + GEGLU FFN, hand-written gfx950 kernels (generated by gen/gen.py)"]
    for (k, g, b, l) in launches:
        hdr.append("; @launch kernel=%s grid=(%d,1,1) block=(%d,1,1) lds=%d" % (k, g, b, l))
    hdr.append('.amdgcn_target "amdgcn-amd-amdhsa--gfx950"')
    hdr.append(".text")
    txt = "\n".join(hdr) + "\n" + "\n".join(a.lines) + "\n" + '.section .rodata,"a"\n' + "".join(descs)
    return txt


if __name__ == "__main__":
    out = sys.argv[1] if len(sys.argv) > 1 else OUT
    open(out, "w").write(build())
    print("wrote", out)
```

```python
import sys, os
EXP = os.environ.get("EXP", "").split(",")

OUT = "sequential_preLN__linear_attn_block__glu_gated_geglu__prompt.s"

S, D, DF = 2048, 1024, 3584
MB = 1 << 20
WS_XN = 0
WS_PQ = 4 * MB
WS_KV = 8 * MB
WS_Z = WS_KV + 131072
WS_O = 9 * MB
WS_H = 13 * MB
WS_HN = 17 * MB
WS_HH = 21 * MB
KA = dict(x=0, wqkv=8, wo=16, bx=24, wg=32, wu=40, wd=48, out=56, dbg=64, ws=72)

LOG2E = 1.4426950408889634


def f32hex(x):
    import struct
    return "0x%08x" % struct.unpack("<I", struct.pack("<f", x))[0]


class Asm:
    def __init__(self):
        self.lines = []
        self.uid = 0

    def __call__(self, s):
        self.lines.append("    " + s)

    def label(self, s):
        self.lines.append(s + ":")

    def raw(self, s):
        self.lines.append(s)

    def newlabel(self, p):
        self.uid += 1
        return "L_%s_%d" % (p, self.uid)


def kernel_header(a, name):
    a.raw(".globl %s" % name)
    a.raw(".p2align 8")
    a.raw(".type %s,@function" % name)
    a.label(name)


def kernel_desc(name, nvgpr, accum, nsgpr=102):
    return """.p2align 6
.amdhsa_kernel %s
  .amdhsa_next_free_vgpr %d
  .amdhsa_next_free_sgpr %d
  .amdhsa_accum_offset %d
  .amdhsa_group_segment_fixed_size 0
  .amdhsa_kernarg_size 80
  .amdhsa_user_sgpr_count 2
  .amdhsa_user_sgpr_kernarg_segment_ptr 1
  .amdhsa_system_sgpr_workgroup_id_x 1
.end_amdhsa_kernel
""" % (name, nvgpr, nsgpr, accum)


def srd_from_ptr(a, d, p, nbytes, off=0):
    if off:
        a("s_add_u32 s%d, s%d, 0x%x" % (d, p, off))
        a("s_addc_u32 s%d, s%d, 0" % (d + 1, p + 1))
    else:
        a("s_mov_b32 s%d, s%d" % (d, p))
        a("s_mov_b32 s%d, s%d" % (d + 1, p + 1))
    a("s_mov_b32 s%d, 0x%x" % (d + 2, nbytes))
    a("s_mov_b32 s%d, 0x00020000" % (d + 3))


def ln_kernel(a, name, src, dst, zero_kv):
    kernel_header(a, name)
    end = a.newlabel("end")
    a("s_cmp_ge_u32 s2, %d" % (S // 4))
    a("s_cbranch_scc1 %s" % end)
    a("s_load_dwordx2 s[4:5], s[0:1], %d" % KA['ws'])
    if src[0] == 'arg':
        a("s_load_dwordx2 s[6:7], s[0:1], %d" % KA[src[1]])
    a("v_lshrrev_b32 v1, 6, v0")
    a("v_and_b32 v2, 63, v0")
    a("s_lshl_b32 s3, s2, 2")
    a("v_add_u32 v1, s3, v1")
    a("v_lshlrev_b32 v1, 11, v1")
    a("v_lshl_add_u32 v1, v2, 4, v1")
    a("s_waitcnt lgkmcnt(0)")
    if src[0] == 'arg':
        srd_from_ptr(a, 8, 6, S * D * 2)
    else:
        srd_from_ptr(a, 8, 4, S * D * 2, src[1])
    srd_from_ptr(a, 12, 4, S * D * 2, dst)
    a("buffer_load_dwordx4 v[4:7], v1, s[8:11], 0 offen")
    a("buffer_load_dwordx4 v[8:11], v1, s[8:11], 0 offen offset:1024")
    npf = 0
    if zero_kv:
        a("s_load_dwordx4 s[40:43], s[0:1], %d" % KA['wqkv'])
        a("v_lshlrev_b32 v3, 6, v0")
        a("s_lshl_b32 s3, s2, 14")
        a("v_add_u32 v3, s3, v3")
        a("s_waitcnt lgkmcnt(0)")
        srd_from_ptr(a, 52, 40, D * 3 * D * 2)
        srd_from_ptr(a, 56, 42, D * D * 2)
        a("buffer_load_dword v40, v3, s[52:55], 0 offen")
        a("v_subrev_u32 v3, 0x%x, v3" % (D * 3 * D * 2))
        a("buffer_load_dword v41, v3, s[56:59], 0 offen")
        npf = 2
    if zero_kv:
        skip = a.newlabel("nz")
        a("s_cmp_ge_u32 s2, 33")
        a("s_cbranch_scc1 %s" % skip)
        srd_from_ptr(a, 16, 4, 135168, WS_KV)
        a("s_lshl_b32 s3, s2, 12")
        a("v_lshlrev_b32 v3, 4, v0")
        a("v_add_u32 v3, s3, v3")
        a("v_mov_b32 v12, 0")
        a("v_mov_b32 v13, 0")
        a("v_mov_b32 v14, 0")
        a("v_mov_b32 v15, 0")
        a("buffer_store_dwordx4 v[12:15], v3, s[16:19], 0 offen")
        a.label(skip)
    a("s_waitcnt vmcnt(%d)" % (npf + (1 if zero_kv else 0)) if False else "s_waitcnt vmcnt(%d)" % npf)
    for i in range(8):
        a("v_lshlrev_b32 v%d, 16, v%d" % (16 + 2 * i, 4 + i))
        a("v_and_b32 v%d, 0xffff0000, v%d" % (17 + 2 * i, 4 + i))

    def reduce(v, t):
        a("s_nop 1")
        a("v_add_f32_dpp %s, %s, %s quad_perm:[1,0,3,2] row_mask:0xf bank_mask:0xf" % (t, v, v))
        a("s_nop 1")
        a("v_add_f32_dpp %s, %s, %s quad_perm:[2,3,0,1] row_mask:0xf bank_mask:0xf" % (v, t, t))
        a("s_nop 1")
        a("v_add_f32_dpp %s, %s, %s row_half_mirror row_mask:0xf bank_mask:0xf" % (t, v, v))
        a("s_nop 1")
        a("v_add_f32_dpp %s, %s, %s row_mirror row_mask:0xf bank_mask:0xf" % (v, t, t))
        a("s_nop 1")
        a("v_readlane_b32 s20, %s, 0" % v)
        a("v_readlane_b32 s21, %s, 16" % v)
        a("v_readlane_b32 s22, %s, 32" % v)
        a("v_readlane_b32 s23, %s, 48" % v)
        a("s_nop 1")
        a("v_mov_b32 %s, s20" % v)
        a("v_add_f32 %s, s21, %s" % (v, v))
        a("v_add_f32 %s, s22, %s" % (v, v))
        a("v_add_f32 %s, s23, %s" % (v, v))

    a("v_add_f32 v32, v16, v17")
    for i in range(2, 16):
        a("v_add_f32 v32, v32, v%d" % (16 + i))
    reduce("v32", "v33")
    a("v_mul_f32 v32, %s, v32" % f32hex(1.0 / D))
    a("v_sub_f32 v34, v16, v32")
    a("v_mul_f32 v35, v34, v34")
    for i in range(1, 16):
        a("v_sub_f32 v34, v%d, v32" % (16 + i))
        a("v_fmac_f32 v35, v34, v34")
    reduce("v35", "v33")
    a("v_mul_f32 v35, %s, v35" % f32hex(1.0 / D))
    a("v_cvt_pk_bf16_f32 v36, v32, v35")
    a("v_lshlrev_b32 v32, 16, v36")
    a("v_and_b32 v35, 0xffff0000, v36")
    a("v_add_f32 v35, %s, v35" % f32hex(1e-5))
    a("v_cvt_pk_bf16_f32 v36, v35, v35")
    a("v_lshlrev_b32 v35, 16, v36")
    a("v_sqrt_f32 v35, v35")
    a("s_nop 0")
    a("v_cvt_pk_bf16_f32 v36, v35, v35")
    a("v_lshlrev_b32 v35, 16, v36")
    a("v_rcp_f32 v35, v35")
    for i in range(16):
        a("v_sub_f32 v%d, v%d, v32" % (16 + i, 16 + i))
    for i in range(8):
        a("v_cvt_pk_bf16_f32 v%d, v%d, v%d" % (4 + i, 16 + 2 * i, 17 + 2 * i))
    for i in range(8):
        a("v_lshlrev_b32 v%d, 16, v%d" % (16 + 2 * i, 4 + i))
        a("v_and_b32 v%d, 0xffff0000, v%d" % (17 + 2 * i, 4 + i))
    for i in range(16):
        a("v_mul_f32 v%d, v%d, v35" % (16 + i, 16 + i))
    for i in range(8):
        a("v_cvt_pk_bf16_f32 v%d, v%d, v%d" % (4 + i, 16 + 2 * i, 17 + 2 * i))
    a("buffer_store_dwordx4 v[4:7], v1, s[12:15], 0 offen")
    a("buffer_store_dwordx4 v[8:11], v1, s[12:15], 0 offen offset:1024")
    a.label(end)
    a("s_endpgm")
    return kernel_desc(name, 44, 44)


def prefetch_kernel(a, name):
    kernel_header(a, name)
    end = a.newlabel("end")
    a("s_cmp_ge_u32 s2, 1024")
    a("s_cbranch_scc1 %s" % end)
    for i, k in enumerate(['wqkv', 'wo', 'wg', 'wu', 'wd']):
        a("s_load_dwordx2 s[%d:%d], s[0:1], %d" % (40 + 2 * i, 41 + 2 * i, KA[k]))
    a("v_lshlrev_b32 v1, 4, v0")
    a("s_lshl_b32 s3, s2, 12")
    a("v_add_u32 v1, s3, v1")
    a("s_waitcnt lgkmcnt(0)")
    sizes = [D * 3 * D * 2, D * D * 2, D * DF * 2, D * DF * 2, DF * D * 2]
    r = 4
    for i, sz in enumerate(sizes):
        srd_from_ptr(a, 8 + 4 * i, 40 + 2 * i, sz)
        for j in range((sz + (4 << 20) - 1) // (4 << 20)):
            a("s_mov_b32 s4, %d" % (j * (4 << 20)))
            a("buffer_load_dwordx4 v[%d:%d], v1, s[%d:%d], s4 offen" % (r, r + 3, 8 + 4 * i, 11 + 4 * i))
            r += 4
    a("s_waitcnt vmcnt(0)")
    a.label(end)
    a("s_endpgm")
    return kernel_desc(name, 64, 64)

def apply_kernel(a, name):
    kernel_header(a, name)
    end = a.newlabel("end")
    a("s_cmp_ge_u32 s2, 256")
    a("s_cbranch_scc1 %s" % end)
    a("s_load_dwordx2 s[4:5], s[0:1], %d" % KA['ws'])
    a("v_lshrrev_b32 v1, 6, v0")
    a("v_and_b32 v0, 63, v0")
    a("s_nop 0")
    a("v_readfirstlane_b32 s28, v1")
    a("v_and_b32 v2, 15, v0")
    a("v_lshrrev_b32 v3, 4, v0")
    a("s_and_b32 s29, s2, 7")
    a("s_lshr_b32 s30, s2, 3")
    a("s_lshl_b32 s29, s29, 2")
    a("s_add_u32 s29, s29, s28")
    a("s_waitcnt lgkmcnt(0)")
    srd_from_ptr(a, 8, 4, S * D * 2, WS_PQ)
    srd_from_ptr(a, 12, 4, 135168, WS_KV)
    srd_from_ptr(a, 16, 4, S * D * 2, WS_O)
    a("v_lshlrev_b32 v4, 7, v2")
    a("v_lshl_add_u32 v4, v3, 5, v4")
    a("s_lshl_b32 s31, s29, 12")
    a("buffer_load_dwordx4 v[8:11], v4, s[12:15], s31 offen")
    a("buffer_load_dwordx4 v[12:15], v4, s[12:15], s31 offen offset:16")
    a("buffer_load_dwordx4 v[16:19], v4, s[12:15], s31 offen offset:2048")
    a("buffer_load_dwordx4 v[20:23], v4, s[12:15], s31 offen offset:2064")
    a("v_lshlrev_b32 v5, 5, v3")
    a("s_lshl_b32 s32, s29, 7")
    a("s_add_u32 s32, s32, 131072")
    a("buffer_load_dwordx4 v[24:27], v5, s[12:15], s32 offen")
    a("buffer_load_dwordx4 v[28:31], v5, s[12:15], s32 offen offset:16")
    a("v_lshlrev_b32 v6, 11, v2")
    a("v_lshl_add_u32 v6, v3, 4, v6")
    a("s_lshl_b32 s33, s30, 17")
    a("s_lshl_b32 s34, s29, 6")
    a("s_add_u32 s33, s33, s34")
    for i in range(4):
        a("s_add_u32 s34, s33, %d" % (i * 32768))
        a("buffer_load_dwordx4 v[%d:%d], v6, s[8:11], s34 offen" % (32 + 4 * i, 35 + 4 * i))
    a("s_waitcnt vmcnt(4)")
    for j in range(4):
        a("v_cvt_pk_bf16_f32 v%d, v%d, v%d" % (48 + j, 8 + 2 * j, 9 + 2 * j))
        a("v_cvt_pk_bf16_f32 v%d, v%d, v%d" % (52 + j, 16 + 2 * j, 17 + 2 * j))
        a("v_cvt_pk_bf16_f32 v%d, v%d, v%d" % (56 + j, 24 + 2 * j, 25 + 2 * j))
    a("s_waitcnt vmcnt(0)")
    a("s_nop 1")
    for i in range(4):
        a("v_mfma_f32_16x16x32_bf16 v[%d:%d], v[48:51], v[%d:%d], 0" % (64 + 12 * i, 67 + 12 * i, 32 + 4 * i, 35 + 4 * i))
        a("v_mfma_f32_16x16x32_bf16 v[%d:%d], v[52:55], v[%d:%d], 0" % (68 + 12 * i, 71 + 12 * i, 32 + 4 * i, 35 + 4 * i))
        a("v_mfma_f32_16x16x32_bf16 v[%d:%d], v[56:59], v[%d:%d], 0" % (72 + 12 * i, 75 + 12 * i, 32 + 4 * i, 35 + 4 * i))
    a("v_lshlrev_b32 v7, 11, v2")
    a("v_lshl_add_u32 v7, v3, 3, v7")
    a("s_nop 7")
    a("s_nop 1")
    for i in range(4):
        b = 64 + 12 * i
        a("v_cvt_pk_bf16_f32 v%d, v%d, v%d" % (b + 8, b + 8, b + 8))
        a("v_lshlrev_b32 v%d, 16, v%d" % (b + 8, b + 8))
        a("v_add_f32 v%d, %s, v%d" % (b + 8, f32hex(1e-6), b + 8))
        a("v_rcp_f32 v%d, v%d" % (b + 8, b + 8))
        a("s_nop 0")
        for r in range(8):
            a("v_mul_f32 v%d, v%d, v%d" % (b + r, b + r, b + 8))
        for r in range(4):
            a("v_cvt_pk_bf16_f32 v%d, v%d, v%d" % (b + r, b + 2 * r, b + 2 * r + 1))
        a("s_add_u32 s34, s33, %d" % (i * 32768))
        a("buffer_store_dwordx2 v[%d:%d], v7, s[16:19], s34 offen" % (b, b + 1))
        a("buffer_store_dwordx2 v[%d:%d], v7, s[16:19], s34 offen offset:32" % (b + 2, b + 3))
    a.label(end)
    a("s_endpgm")
    return kernel_desc(name, 112, 112)


S_WAVE, S_TM, S_TN, S_CNT = 28, 29, 30, 31
S_KX, S_KW, S_RD, S_WR, S_MX, S_MW = 32, 33, 34, 35, 36, 37
S_B = [38, 39, 40]
S_T0 = 42
ACC0 = 28


def wave_affine(a, sd, coefs, tmp, base=0):
    a("s_mov_b32 s%d, %d" % (sd, base))
    for b, c in enumerate(coefs):
        if c:
            a("s_mul_i32 s%d, s%d, %d" % (tmp, S_B[b], c))
            a("s_add_u32 s%d, s%d, s%d" % (sd, sd, tmp))


def gemm_kernel(a, P):
    name = P['name']
    kernel_header(a, name)
    end = a.newlabel("end")
    a("s_cmp_ge_u32 s2, 256")
    a("s_cbranch_scc1 %s" % end)
    if "stamp" in EXP:
        a("s_memtime s[64:65]")
        a("s_load_dwordx2 s[72:73], s[0:1], %d" % KA['dbg'])
    a("s_load_dwordx2 s[4:5], s[0:1], %d" % KA['ws'])
    a("s_load_dwordx2 s[6:7], s[0:1], %d" % KA[P['w'][0]])
    if len(P['w']) > 1:
        a("s_load_dwordx2 s[60:61], s[0:1], %d" % KA[P['w'][1]])
    for (sd, key) in P.get('argptrs', []):
        a("s_load_dwordx2 s[%d:%d], s[0:1], %d" % (sd, sd + 1, KA[key]))
    for i, (key, nb) in enumerate(P.get('pf', [])):
        a("s_load_dwordx2 s[%d:%d], s[0:1], %d" % (82 + 2 * i, 83 + 2 * i, KA[key]))
    a("v_lshrrev_b32 v1, 6, v0")
    a("v_and_b32 v0, 63, v0")
    a("s_nop 0")
    a("v_readfirstlane_b32 s%d, v1" % S_WAVE)
    a("v_and_b32 v1, 15, v0")
    a("v_lshrrev_b32 v2, 4, v0")
    mblk_bits = P['mblk_bits']
    a("s_and_b32 s%d, s2, 7" % S_T0)
    a("s_lshr_b32 s%d, s2, 3" % (S_T0 + 1))
    a("s_and_b32 s%d, s%d, %d" % (S_TM, S_T0, (1 << mblk_bits) - 1))
    a("s_lshl_b32 s%d, s%d, 3" % (S_TM, S_TM))
    a("s_and_b32 s%d, s%d, 7" % (S_T0 + 2, S_T0 + 1))
    a("s_add_u32 s%d, s%d, s%d" % (S_TM, S_TM, S_T0 + 2))
    a("s_lshr_b32 s%d, s%d, %d" % (S_TN, S_T0, mblk_bits))
    a("s_lshl_b32 s%d, s%d, 2" % (S_TN, S_TN))
    a("s_lshr_b32 s%d, s%d, 3" % (S_T0 + 2, S_T0 + 1))
    a("s_add_u32 s%d, s%d, s%d" % (S_TN, S_TN, S_T0 + 2))
    a("s_and_b32 s%d, s%d, 1" % (S_B[0], S_WAVE))
    a("s_bfe_u32 s%d, s%d, 0x10001" % (S_B[1], S_WAVE))
    a("s_lshr_b32 s%d, s%d, 2" % (S_B[2], S_WAVE))
    roles = P['roles']
    maxv = 0
    if len(roles) == 2:
        r1 = a.newlabel("role1")
        a("s_cmp_ge_u32 s%d, 4" % S_WAVE)
        a("s_cbranch_scc1 %s" % r1)
        nv0 = gemm_body(a, P, roles[0], end)
        a("s_branch %s" % end)
        a.label(r1)
        nv1 = gemm_body(a, P, roles[1], end)
        arch = max(nv0[0], nv1[0]); acc_n = max(nv0[1], nv1[1])
    else:
        arch, acc_n = gemm_body(a, P, roles[0], end)
    a.label(end)
    a("s_endpgm")
    arch = (arch + 3) // 4 * 4
    assert arch + acc_n <= (256 if P['NW'] == 8 else 512), (name, arch, acc_n)
    return kernel_desc(name, arch + acc_n, arch)


S_RDX, S_WRX, S_RDW, S_WRW = 34, 35, 41, 27


def gemm_body(a, P, R, end):
    BM, K = P['BM'], P['K']
    kbx, kbw, NSX, NSW = P['kbx'], P['kbw'], P['NSX'], P['NSW']
    ldx, ldw = P['ldx'], P['ldw']
    nsteps = K // 32
    TX, TW = nsteps // kbx, nsteps // kbw
    XB = BM * kbx * 64
    WB = P['WB']
    WBASE = NSX * XB
    assert WBASE + NSW * WB <= 163840
    nxp = R['nxp']
    wsl = R['w_slot']
    nwp = len(wsl)
    mt = R['mt']
    ntl = R['ntiles']
    nt = len(ntl)
    wad = R['waddr']
    nwa = len(wad)
    V_L15, V_G = 1, 2
    v = 3
    V_XO = list(range(v, v + nxp)); v += nxp
    V_WO = list(range(v, v + nwp)); v += nwp
    nxa = kbx
    V_XAB = list(range(v, v + nxa)); v += nxa
    V_WAB = list(range(v, v + nwa)); v += nwa
    V_XA = list(range(v, v + nxa)); v += nxa
    V_WA = list(range(v, v + nwa)); v += nwa
    V_T = v; v += 4
    assert v <= ACC0 - 1, v
    nacc = mt * nt * 4

    def acc(i, j):
        return ACC0 + (j * mt + i) * 4
    FS = (mt + nt) * 4

    def xf(s, i):
        return s * FS + i * 4

    def wf(s, j):
        return s * FS + mt * 4 + j * 4

    t0, t1, t2, t3 = V_T, V_T + 1, V_T + 2, V_T + 3
    rpp = 8 if kbx == 2 else 16
    if kbx == 2:
        a("v_lshrrev_b32 v%d, 3, v0" % t0)
        a("v_and_b32 v%d, 7, v0" % t1)
        a("v_xor_b32 v%d, v%d, v%d" % (t1, t1, t0))
    else:
        a("v_lshrrev_b32 v%d, 2, v0" % t0)
        a("v_bfe_u32 v%d, v0, 4, 1" % t2)
        a("v_bfe_u32 v%d, v0, 5, 1" % t3)
        a("v_xor_b32 v%d, v%d, v%d" % (t2, t2, t3))
        a("v_lshl_or_b32 v%d, v%d, 1, v%d" % (t2, t2, t3))
        a("v_and_b32 v%d, 3, v0" % t1)
        a("v_xor_b32 v%d, v%d, v%d" % (t1, t1, t2))
    wave_affine(a, S_T0, [c * rpp for c in R['xp_coef']], S_T0 + 1)
    a("s_mul_i32 s%d, s%d, %d" % (S_T0 + 1, S_TM, BM))
    a("s_add_u32 s%d, s%d, s%d" % (S_T0, S_T0, S_T0 + 1))
    a("v_add_u32 v%d, s%d, v%d" % (t0, S_T0, t0))
    a("s_mov_b32 s%d, %d" % (S_T0 + 1, ldx))
    a("v_mul_lo_u32 v%d, v%d, s%d" % (t0, t0, S_T0 + 1))
    a("v_lshl_add_u32 v%d, v%d, 4, v%d" % (V_XO[0], t1, t0))
    for i in range(1, nxp):
        a("v_add_u32 v%d, 0x%x, v%d" % (V_XO[i], i * rpp * ldx, V_XO[0]))
    wave_affine(a, S_MX, [c * 1024 for c in R['xp_coef']], S_T0)
    a("s_mul_i32 s%d, s%d, %d" % (S_T0 + 2, S_TN, P['tn_bytes']))
    a("s_mov_b32 s%d, %d" % (S_T0 + 3, ldw))
    for typ in ('A', 'B'):
        sl = [i for i in range(nwp) if wsl[i][0] == typ]
        if not sl:
            continue
        if typ == 'A':
            a("v_lshrrev_b32 v%d, 3, v0" % t0)
            a("v_bfe_u32 v%d, v0, 4, 1" % t2)
            a("v_lshlrev_b32 v%d, 1, v%d" % (t2, t2))
            a("v_and_b32 v%d, 7, v0" % t1)
            a("v_xor_b32 v%d, v%d, v%d" % (t1, t1, t2))
        else:
            a("v_lshrrev_b32 v%d, 2, v0" % t0)
            a("v_lshrrev_b32 v%d, 5, v0" % t2)
            a("v_lshlrev_b32 v%d, 1, v%d" % (t2, t2))
            a("v_and_b32 v%d, 3, v0" % t1)
            a("v_xor_b32 v%d, v%d, v%d" % (t1, t1, t2))
        a("v_mul_lo_u32 v%d, v%d, s%d" % (t0, t0, S_T0 + 3))
        wave_affine(a, S_T0, R['wg_coef' + typ], S_T0 + 1)
        a("s_add_u32 s%d, s%d, s%d" % (S_T0, S_T0, S_T0 + 2))
        if 'par_off' + typ in P:
            c0, c1 = P['par_off' + typ]
            a("s_and_b32 s%d, s%d, 1" % (S_T0 + 1, S_TN))
            a("s_cmp_lg_u32 s%d, 0" % (S_T0 + 1))
            a("s_cselect_b32 s%d, %d, %d" % (S_T0 + 1, c1, c0))
            a("s_add_u32 s%d, s%d, s%d" % (S_T0, S_T0, S_T0 + 1))
        a("v_add_u32 v%d, s%d, v%d" % (t0, S_T0, t0))
        if typ == 'A':
            kp = R['ko_par']
            for i in sl:
                par_c, par_bit = wsl[i][3], kp
                if par_bit is None:
                    a("v_xor_b32 v%d, %d, v%d" % (t2, par_c * 4, t1))
                else:
                    a("s_lshl_b32 s%d, s%d, 2" % (S_T0 + 1, S_B[par_bit]))
                    a("s_xor_b32 s%d, s%d, %d" % (S_T0 + 1, S_T0 + 1, par_c * 4))
                    a("v_xor_b32 v%d, s%d, v%d" % (t2, S_T0 + 1, t1))
                a("v_lshl_add_u32 v%d, v%d, 4, v%d" % (t2, t2, t0))
                a("v_add_u32 v%d, 0x%x, v%d" % (V_WO[i], wsl[i][1], t2))
        else:
            a("v_lshl_add_u32 v%d, v%d, 4, v%d" % (t0, t1, t0))
            for i in sl:
                a("v_add_u32 v%d, 0x%x, v%d" % (V_WO[i], wsl[i][1], t0))
    S_MWA, S_MWB = S_MW, 26
    wave_affine(a, S_MWA, R['wl_coefA'], S_T0, base=WBASE)
    if any(w[0] == 'B' for w in wsl):
        wave_affine(a, S_MWB, R['wl_coefB'], S_T0, base=WBASE)
    a("s_waitcnt lgkmcnt(0)")
    srd_from_ptr(a, 8, 4, S * ldx, P['x_ws'])
    if len(P['w']) > 1:
        a("s_cmp_lg_u32 s%d, 0" % S_B[P['wsel_bit']])
        a("s_cselect_b32 s6, s60, s6")
        a("s_cselect_b32 s7, s61, s7")
    srd_from_ptr(a, 12, 6, K * ldw)

    def dma_x():
        g = []
        for i in range(nxp):
            g.append(["s_add_u32 s%d, s%d, s%d" % (S_T0, S_WRX, S_MX),
                      "s_add_u32 m0, s%d, %d" % (S_T0, i * 1024),
                      "s_nop 0",
                      "buffer_load_dwordx4 v%d, s[8:11], s%d offen lds" % (V_XO[i], S_KX)])
        g.append(["s_add_u32 s%d, s%d, %d" % (S_KX, S_KX, kbx * 64)])
        return g

    def dma_w():
        g = []
        for i in range(nwp):
            g.append(["s_add_u32 s%d, s%d, s%d" % (S_T0, S_WRW, S_MWA if wsl[i][0] == 'A' else S_MWB),
                      "s_add_u32 m0, s%d, %d" % (S_T0, wsl[i][2]),
                      "s_nop 0",
                      "buffer_load_dwordx4 v%d, s[12:15], s%d offen lds" % (V_WO[i], S_KW)])
        g.append(["s_add_u32 s%d, s%d, %d" % (S_KW, S_KW, kbw * 32 * ldw)])
        return g

    issued = []

    def sim_issue(op, tile):
        for _ in range(nxp if op == 'X' else nwp):
            issued.append((op, tile))

    def sim_wait(s):
        need = {('X', s // kbx), ('W', s // kbw)}
        last = max(i for i, e in enumerate(issued) if e in need)
        return len(issued) - 1 - last

    a("s_mov_b32 s%d, 0" % S_KX)
    a("s_mov_b32 s%d, 0" % S_KW)
    a("s_mov_b32 s%d, 0" % S_WRX)
    a("s_mov_b32 s%d, 0" % S_WRW)
    order = sorted([(t * kbx, 0, 'X', t) for t in range(NSX - 1)] + [(t * kbw, 1, 'W', t) for t in range(NSW - 1)])
    for (_, _, op, t) in order:
        for g in (dma_x() if op == 'X' else dma_w()):
            for x in g:
                a(x)
        sim_issue(op, t)
        if op == 'X':
            a("s_add_u32 s%d, s%d, %d" % (S_WRX, S_WRX, XB))
        else:
            a("s_add_u32 s%d, s%d, %d" % (S_WRW, S_WRW, WB))
    for i, (key, nb) in enumerate(P.get('pf', [])):
        per = (nb + 256 * P['NW'] * 4096 - 1) // (256 * P['NW'] * 4096)
        srd_from_ptr(a, 88, 82 + 2 * i, nb)
        a("s_mul_i32 s%d, s2, %d" % (S_T0, P['NW']))
        a("s_add_u32 s%d, s%d, s%d" % (S_T0, S_T0, S_WAVE))
        a("s_mul_i32 s%d, s%d, %d" % (S_T0, S_T0, per * 4096))
        a("v_lshlrev_b32 v%d, 6, v0" % t0)
        for j in range(per):
            a("buffer_load_dword v%d, v%d, s[88:91], s%d offen" % (ACC0 - 1, t0, S_T0))
            a("s_add_u32 s%d, s%d, 4096" % (S_T0, S_T0))
            issued.append(('P', 0))
    P['srds'](a)
    if kbx == 2:
        a("v_and_b32 v%d, 7, v0" % t0)
        a("v_xor_b32 v%d, v%d, v%d" % (t0, t0, V_G))
        a("v_lshlrev_b32 v%d, 4, v%d" % (t0, t0))
        a("v_lshl_add_u32 v%d, v%d, 7, v%d" % (t0, V_L15, t0))
        wave_affine(a, S_T0, [c * 128 for c in R['row_coef']], S_T0 + 1)
        a("v_add_u32 v%d, s%d, v%d" % (V_XAB[0], S_T0, t0))
        a("v_xor_b32 v%d, 64, v%d" % (V_XAB[1], V_XAB[0]))
        xmstride = 2048
    else:
        a("v_bfe_u32 v%d, v0, 2, 1" % t2)
        a("v_bfe_u32 v%d, v0, 3, 1" % t3)
        a("v_xor_b32 v%d, v%d, v%d" % (t2, t2, t3))
        a("v_lshl_or_b32 v%d, v%d, 1, v%d" % (t2, t2, t3))
        a("v_xor_b32 v%d, v%d, v%d" % (t0, t2, V_G))
        a("v_lshlrev_b32 v%d, 4, v%d" % (t0, t0))
        a("v_lshl_add_u32 v%d, v%d, 6, v%d" % (t0, V_L15, t0))
        wave_affine(a, S_T0, [c * 64 for c in R['row_coef']], S_T0 + 1)
        a("v_add_u32 v%d, s%d, v%d" % (V_XAB[0], S_T0, t0))
        xmstride = 1024
    done = {}
    for wi, (typ, xc) in enumerate(wad):
        if typ in done:
            a("v_xor_b32 v%d, %d, v%d" % (V_WAB[wi], xc, V_WAB[done[typ]]))
            continue
        done[typ] = wi
        assert xc == 0
        if typ == 'A':
            a("s_mov_b32 s%d, %d" % (S_T0, P['kostrideA']))
            a("v_mul_lo_u32 v%d, v%d, s%d" % (t0, V_G, S_T0))
            a("v_lshrrev_b32 v%d, 2, v%d" % (t2, V_L15))
            a("v_lshl_add_u32 v%d, v%d, 7, v%d" % (t0, t2, t0))
            a("v_bfe_u32 v%d, v0, 3, 2" % t1)
            wave_affine(a, S_T0, R['t_coefA'], S_T0 + 1)
            a("v_xor_b32 v%d, s%d, v%d" % (t1, S_T0, t1))
            a("v_lshl_add_u32 v%d, v%d, 5, v%d" % (t0, t1, t0))
        else:
            a("v_lshrrev_b32 v%d, 1, v%d" % (t0, V_G))
            a("s_mov_b32 s%d, %d" % (S_T0, P['k16strideB']))
            a("v_mul_lo_u32 v%d, v%d, s%d" % (t0, t0, S_T0))
            a("v_and_b32 v%d, 1, v%d" % (t1, V_G))
            a("v_lshrrev_b32 v%d, 2, v%d" % (t2, V_L15))
            a("v_lshl_add_u32 v%d, v%d, 3, v%d" % (t2, t1, t2))
            a("v_lshl_add_u32 v%d, v%d, 6, v%d" % (t0, t2, t0))
            wave_affine(a, S_T0, R['t_coefB'], S_T0 + 1)
            a("v_xor_b32 v%d, s%d, v%d" % (t1, S_T0, t1))
            a("v_lshl_add_u32 v%d, v%d, 5, v%d" % (t0, t1, t0))
        a("v_bfe_u32 v%d, v0, 1, 1" % t2)
        a("v_lshl_add_u32 v%d, v%d, 4, v%d" % (t0, t2, t0))
        a("v_and_b32 v%d, 1, v0" % t2)
        a("v_lshl_add_u32 v%d, v%d, 3, v%d" % (t0, t2, t0))
        wave_affine(a, S_T0, R['wr_coef'], S_T0 + 1, base=WBASE)
        a("v_add_u32 v%d, s%d, v%d" % (V_WAB[wi], S_T0, t0))

    def reads(fs, s):
        r = []
        ksx = s % kbx
        ksw = s % kbw
        for i in range(mt):
            r.append(["ds_read_b128 a[%d:%d], v%d offset:%d" % (xf(fs, i), xf(fs, i) + 3, V_XA[ksx], i * xmstride)])
        for j, (asel, loff, sw) in enumerate(ntl):
            typ = wad[asel][0]
            for hf in range(2):
                if typ == 'A':
                    off = loff + hf * 512 + ksw * 4 * P['kostrideA']
                else:
                    off = loff + hf * 256 + ksw * 2 * P['k16strideB']
                r.append(["ds_read_b64_tr_b16 a[%d:%d], v%d offset:%d" % (wf(fs, j) + 2 * hf, wf(fs, j) + 2 * hf + 1, V_WA[asel], off)])
        return r

    def mfmas(fs, first):
        m = []
        for j, (asel, loff, sw) in enumerate(ntl):
            for i in range(mt):
                A, B = (wf(fs, j), xf(fs, i)) if sw else (xf(fs, i), wf(fs, j))
                c = acc(i, j)
                cin = "0" if first else "v[%d:%d]" % (c, c + 3)
                m.append("v_mfma_f32_16x16x32_bf16 v[%d:%d], a[%d:%d], a[%d:%d], %s" % (c, c + 3, A, A + 3, B, B + 3, cin))
        return m

    def upd_x():
        return ["v_add_u32 v%d, s%d, v%d" % (V_XA[x], S_RDX, V_XAB[x]) for x in range(nxa)]

    def upd_w():
        return ["v_add_u32 v%d, s%d, v%d" % (V_WA[x], S_RDW, V_WAB[x]) for x in range(nwa)]

    a("s_mov_b32 s%d, 0" % S_RDX)
    a("s_mov_b32 s%d, 0" % S_RDW)
    for x in upd_x() + upd_w():
        a(x)
    a("s_waitcnt vmcnt(%d)" % sim_wait(0))
    a("s_barrier")
    for r in reads(0, 0):
        for x in r:
            a(x)
    for g in dma_x() + dma_w():
        for x in g:
            a(x)
    sim_issue('X', NSX - 1)
    sim_issue('W', NSW - 1)
    a("s_waitcnt lgkmcnt(0)")

    def gen_step(n):
        o = []
        fs = n & 1
        last = (n + 1 == nsteps)
        s1 = n + 1
        evx = (not last) and (s1 % kbx == 0)
        evw = (not last) and (s1 % kbw == 0)
        extras = []
        dmas = []
        if evx or evw:
            if evx:
                o += ["s_mov_b32 s%d, s%d" % (S_WRX, S_RDX),
                      "s_add_u32 s%d, s%d, %d" % (S_RDX, S_RDX, XB),
                      "s_cmp_eq_u32 s%d, %d" % (S_RDX, NSX * XB),
                      "s_cselect_b32 s%d, 0, s%d" % (S_RDX, S_RDX)] + upd_x()
            if evw:
                o += ["s_mov_b32 s%d, s%d" % (S_WRW, S_RDW),
                      "s_add_u32 s%d, s%d, %d" % (S_RDW, S_RDW, WB),
                      "s_cmp_eq_u32 s%d, %d" % (S_RDW, NSW * WB),
                      "s_cselect_b32 s%d, 0, s%d" % (S_RDW, S_RDW)] + upd_w()
            o.append("s_waitcnt vmcnt(%d)" % sim_wait(s1))
            o.append("s_barrier")
            if evw and s1 // kbw - 1 + NSW < TW:
                dmas += dma_w()
                sim_issue('W', s1 // kbw - 1 + NSW)
            if evx and s1 // kbx - 1 + NSX < TX:
                dmas += dma_x()
                sim_issue('X', s1 // kbx - 1 + NSX)
        if not last and "noread" not in EXP:
            extras += reads(fs ^ 1, s1)
        if "nodma" not in EXP:
            extras += dmas
        mm = mfmas(fs, n == 0)
        if "nomfma" in EXP:
            mm = ["s_nop 0"] * 2
        nm = len(mm)
        ne = len(extras)
        span = max(1, int(nm * P.get('span', 0.85)))
        pos = [min(nm - 1, (k * span) // max(ne, 1)) for k in range(ne)]
        k = 0
        for idx, m in enumerate(mm):
            o.append(m)
            while k < ne and pos[k] == idx:
                o += extras[k]
                k += 1
        if not last:
            o.append("s_waitcnt lgkmcnt(0)")
        return o

    if "stamp" in EXP:
        a("s_memtime s[66:67]")
        a("s_waitcnt lgkmcnt(0)")
    codes = [gen_step(n) for n in range(nsteps)]
    bodies = [codes[n] + codes[n + 1] for n in range(0, nsteps, 2)]
    i = 0
    while i < len(bodies):
        j = i
        while j + 1 < len(bodies) and bodies[j + 1] == bodies[i]:
            j += 1
        cnt = j - i + 1
        if cnt >= 3:
            a("s_mov_b32 s%d, %d" % (S_CNT, cnt))
            loop = a.newlabel("loop")
            a.label(loop)
            for x in bodies[i]:
                a(x)
            a("s_sub_u32 s%d, s%d, 1" % (S_CNT, S_CNT))
            a("s_cmp_lg_u32 s%d, 0" % S_CNT)
            a("s_cbranch_scc1 %s" % loop)
        else:
            for b in bodies[i:j + 1]:
                for x in b:
                    a(x)
        i = j + 1
    if "stamp" in EXP:
        a("s_memtime s[68:69]")
        a("s_waitcnt lgkmcnt(0)")
    a("s_nop 7")
    ctx = dict(acc=acc, mt=mt, nt=nt, V_L15=V_L15, V_G=V_G, BM=BM, nacc=nacc, R=R, free=ACC0 + nacc)
    top = P['epilogue'](a, ctx)
    if "stamp" in EXP:
        a("s_waitcnt vmcnt(0)")
        a("s_memtime s[70:71]")
        a("s_waitcnt lgkmcnt(0)")
        a("s_cmp_lg_u32 s%d, 0" % S_WAVE)
        a("s_cbranch_scc1 %s" % end)
        a("s_cmp_ge_u32 s2, 16")
        a("s_cbranch_scc1 %s" % end)
        a("s_sub_u32 s66, s66, s64")
        a("s_sub_u32 s68, s68, s64")
        a("s_sub_u32 s70, s70, s64")
        a("s_mov_b32 s76, s72")
        a("s_mov_b32 s77, s73")
        a("s_mov_b32 s78, 256")
        a("s_mov_b32 s79, 0x20000")
        a("v_mov_b32 v4, s64")
        a("v_mov_b32 v5, s66")
        a("v_mov_b32 v6, s68")
        a("v_mov_b32 v7, s70")
        a("s_lshl_b32 s80, s2, 4")
        a("v_mov_b32 v8, s80")
        a("s_mov_b64 exec, 1")
        a("buffer_store_dwordx4 v[4:7], v8, s[76:79], 0 offen")
    return max(top or 0, ACC0 + nacc), 2 * FS


def phi_ops(a, regs, tmp):
    for r, t in zip(regs, tmp):
        a("v_min_f32 v%d, 0, v%d" % (t, r))
    for r, t in zip(regs, tmp):
        a("v_mul_f32 v%d, %s, v%d" % (t, f32hex(LOG2E), t))
    for r, t in zip(regs, tmp):
        a("v_exp_f32 v%d, v%d" % (t, t))
    for r, t in zip(regs, tmp):
        a("v_max_f32 v%d, 0, v%d" % (r, r))
    for r, t in zip(regs, tmp):
        a("v_add_f32 v%d, v%d, v%d" % (r, r, t))
    for r, t in zip(regs, tmp):
        a("v_add_f32 v%d, %s, v%d" % (r, f32hex(1e-6), r))


def round4(a, c, t0, t1):
    a("v_cvt_pk_bf16_f32 v%d, v%d, v%d" % (t0, c, c + 1))
    a("v_cvt_pk_bf16_f32 v%d, v%d, v%d" % (t1, c + 2, c + 3))
    a("v_lshlrev_b32 v%d, 16, v%d" % (c, t0))
    a("v_and_b32 v%d, 0xffff0000, v%d" % (c + 1, t0))
    a("v_lshlrev_b32 v%d, 16, v%d" % (c + 2, t1))
    a("v_and_b32 v%d, 0xffff0000, v%d" % (c + 3, t1))


def epi_gemm1(a, c):
    acc, V_L15, V_G, R = c['acc'], c['V_L15'], c['V_G'], c['R']
    F = c['free']
    TMP = 4
    wave_affine(a, S_T0, [r * 2048 for r in R['row_coef']], S_T0 + 1)
    a("s_lshl_b32 s%d, s%d, 18" % (S_T0 + 1, S_TM))
    a("s_add_u32 s%d, s%d, s%d" % (S_T0, S_T0, S_T0 + 1))
    a("s_lshl_b32 s%d, s%d, 7" % (S_T0 + 1, S_TN))
    a("s_add_u32 s%d, s%d, s%d" % (S_T0, S_T0, S_T0 + 1))
    a("s_lshl_b32 s%d, s%d, 6" % (S_T0 + 1, S_B[1]))
    a("s_add_u32 s%d, s%d, s%d" % (S_T0, S_T0, S_T0 + 1))
    a("s_add_u32 s%d, s%d, %d" % (S_T0 + 1, S_T0, 16 * 2048))
    a("v_lshlrev_b32 v8, 11, v%d" % V_L15)
    a("v_lshl_add_u32 v8, v%d, 3, v8" % V_G)
    PK, VF, ONE, KVA, ZA = F, F + 8, F + 16, F + 20, F + 36
    top = F + 44
    for i in range(2):
        for dt in range(2):
            cc = acc(i, 2 + dt)
            round4(a, cc, TMP, TMP + 1)
            phi_ops(a, [cc + r for r in range(4)], [TMP + r for r in range(4)])
            d = PK + dt * 4 + i * 2
            a("v_cvt_pk_bf16_f32 v%d, v%d, v%d" % (d, cc, cc + 1))
            a("v_cvt_pk_bf16_f32 v%d, v%d, v%d" % (d + 1, cc + 2, cc + 3))
        for et in range(2):
            cc = acc(i, 4 + et)
            d = VF + et * 4 + i * 2
            a("v_cvt_pk_bf16_f32 v%d, v%d, v%d" % (d, cc, cc + 1))
            a("v_cvt_pk_bf16_f32 v%d, v%d, v%d" % (d + 1, cc + 2, cc + 3))
    for r in range(4):
        a("v_mov_b32 v%d, 0x3f803f80" % (ONE + r))
    a("s_nop 1")
    for et in range(2):
        for dt in range(2):
            d = KVA + (et * 2 + dt) * 4
            A = VF + et * 4
            B = PK + dt * 4
            a("v_mfma_f32_16x16x32_bf16 v[%d:%d], v[%d:%d], v[%d:%d], 0" % (d, d + 3, A, A + 3, B, B + 3))
    for dt in range(2):
        d = ZA + dt * 4
        B = PK + dt * 4
        a("v_mfma_f32_16x16x32_bf16 v[%d:%d], v[%d:%d], v[%d:%d], 0" % (d, d + 3, ONE, ONE + 3, B, B + 3))
    for i in range(2):
        for j in range(2):
            cc = acc(i, j)
            round4(a, cc, TMP, TMP + 1)
            phi_ops(a, [cc + r for r in range(4)], [TMP + r for r in range(4)])
            a("v_cvt_pk_bf16_f32 v%d, v%d, v%d" % (cc, cc, cc + 1))
            a("v_cvt_pk_bf16_f32 v%d, v%d, v%d" % (cc + 1, cc + 2, cc + 3))
            a("buffer_store_dwordx2 v[%d:%d], v8, s[16:19], s%d offen offset:%d" % (cc, cc + 1, S_T0 + i, j * 32))
    a("s_barrier")
    a("s_mul_i32 s%d, s%d, 5120" % (S_T0 + 2, S_WAVE))
    a("v_lshlrev_b32 v9, 4, v0")
    a("v_add_u32 v9, s%d, v9" % (S_T0 + 2))
    for t in range(4):
        a("ds_write_b128 v9, v[%d:%d] offset:%d" % (KVA + 4 * t, KVA + 4 * t + 3, t * 1024))
    a("v_mov_b32 v%d, v%d" % (ZA + 1, ZA + 4))
    a("ds_write_b64 v9, v[%d:%d] offset:4096" % (ZA, ZA + 1))
    a("s_waitcnt lgkmcnt(0)")
    a("s_barrier")
    wave_affine(a, S_T0 + 2, [1024, 2 * 5120, 2048], S_T0 + 3)
    a("v_lshlrev_b32 v9, 4, v0")
    a("v_add_u32 v9, s%d, v9" % (S_T0 + 2))
    for k, wv in enumerate((0, 1, 4, 5)):
        a("ds_read_b128 v[%d:%d], v9 offset:%d" % (KVA + 4 * k, KVA + 4 * k + 3, wv * 5120))
    wave_affine(a, S_T0 + 3, [0, 2 * 5120, 0], S_T0 + 4, base=4096)
    a("v_lshlrev_b32 v10, 4, v0")
    a("v_add_u32 v10, s%d, v10" % (S_T0 + 3))
    for k, wv in enumerate((0, 1, 4, 5)):
        a("ds_read_b64 v[%d:%d], v10 offset:%d" % (ZA + 2 * k, ZA + 2 * k + 1, wv * 5120))
    a("s_lshl_b32 s%d, s%d, 1" % (S_T0, S_TN))
    a("s_add_u32 s%d, s%d, s%d" % (S_T0, S_T0, S_B[1]))
    a("s_lshl_b32 s%d, s%d, 12" % (S_T0 + 1, S_T0))
    wave_affine(a, S_T0 + 4, [64, 0, 2048], S_T0 + 5)
    a("s_add_u32 s%d, s%d, s%d" % (S_T0 + 1, S_T0 + 1, S_T0 + 4))
    a("s_lshl_b32 s%d, s%d, 7" % (S_T0 + 2, S_T0))
    a("s_add_u32 s%d, s%d, 131072" % (S_T0 + 2, S_T0 + 2))
    a("v_lshlrev_b32 v8, 9, v%d" % V_G)
    a("v_lshl_add_u32 v8, v%d, 2, v8" % V_L15)
    a("v_lshlrev_b32 v9, 2, v%d" % V_L15)
    a("s_waitcnt lgkmcnt(0)")
    for r in range(4):
        a("v_add_f32 v%d, v%d, v%d" % (KVA + r, KVA + r, KVA + 4 + r))
        a("v_add_f32 v%d, v%d, v%d" % (KVA + 8 + r, KVA + 8 + r, KVA + 12 + r))
    for r in range(4):
        a("v_add_f32 v%d, v%d, v%d" % (KVA + r, KVA + r, KVA + 8 + r))
    for r in range(4):
        a("buffer_atomic_add_f32 v%d, v8, s[20:23], s%d offen offset:%d" % (KVA + r, S_T0 + 1, r * 128))
    skip = a.newlabel("noz")
    a("s_or_b32 s%d, s%d, s%d" % (S_T0 + 3, S_B[0], S_B[2]))
    a("s_cmp_lg_u32 s%d, 0" % (S_T0 + 3))
    a("s_cbranch_scc1 %s" % skip)
    for r in range(2):
        a("v_add_f32 v%d, v%d, v%d" % (ZA + r, ZA + r, ZA + 2 + r))
        a("v_add_f32 v%d, v%d, v%d" % (ZA + 4 + r, ZA + 4 + r, ZA + 6 + r))
    for r in range(2):
        a("v_add_f32 v%d, v%d, v%d" % (ZA + r, ZA + r, ZA + 4 + r))
    a("s_mov_b64 exec, 0xffff")
    for dt in range(2):
        a("buffer_atomic_add_f32 v%d, v9, s[20:23], s%d offen offset:%d" % (ZA + dt, S_T0 + 2, dt * 64))
    a("s_mov_b64 exec, -1")
    a.label(skip)
    return top


def epi_resid(a, c):
    acc, V_L15, V_G, mt, nt = c['acc'], c['V_L15'], c['V_G'], c['mt'], c['nt']
    F = c['free']
    a("s_lshl_b32 s%d, s%d, 6" % (S_T0, S_TM))
    a("s_lshl_b32 s%d, s%d, 5" % (S_T0 + 1, S_B[0]))
    a("s_add_u32 s%d, s%d, s%d" % (S_T0, S_T0, S_T0 + 1))
    a("s_lshl_b32 s%d, s%d, 11" % (S_T0, S_T0))
    a("s_lshl_b32 s%d, s%d, 8" % (S_T0 + 1, S_TN))
    a("s_add_u32 s%d, s%d, s%d" % (S_T0, S_T0, S_T0 + 1))
    a("s_lshl_b32 s%d, s%d, 5" % (S_T0 + 1, S_B[1]))
    a("s_add_u32 s%d, s%d, s%d" % (S_T0, S_T0, S_T0 + 1))
    a("s_add_u32 s%d, s%d, %d" % (S_T0 + 1, S_T0, 16 * 2048))
    a("v_lshlrev_b32 v8, 11, v%d" % V_L15)
    a("v_lshl_add_u32 v8, v%d, 3, v8" % V_G)
    Rr = F
    for i in range(mt):
        for j in range(nt):
            d = Rr + (i * nt + j) * 2
            a("buffer_load_dwordx2 v[%d:%d], v8, s[20:23], s%d offen offset:%d" % (d, d + 1, S_T0 + i, j * 64))
    for i in range(mt):
        for j in range(nt):
            round4(a, acc(i, j), 4, 5)
    a("s_waitcnt vmcnt(0)")
    for i in range(mt):
        for j in range(nt):
            d = Rr + (i * nt + j) * 2
            cc = acc(i, j)
            a("v_lshlrev_b32 v4, 16, v%d" % d)
            a("v_and_b32 v5, 0xffff0000, v%d" % d)
            a("v_add_f32 v%d, v%d, v4" % (cc, cc))
            a("v_add_f32 v%d, v%d, v5" % (cc + 1, cc + 1))
            a("v_lshlrev_b32 v4, 16, v%d" % (d + 1))
            a("v_and_b32 v5, 0xffff0000, v%d" % (d + 1))
            a("v_add_f32 v%d, v%d, v4" % (cc + 2, cc + 2))
            a("v_add_f32 v%d, v%d, v5" % (cc + 3, cc + 3))
            a("v_cvt_pk_bf16_f32 v%d, v%d, v%d" % (cc, cc, cc + 1))
            a("v_cvt_pk_bf16_f32 v%d, v%d, v%d" % (cc + 1, cc + 2, cc + 3))
            a("buffer_store_dwordx2 v[%d:%d], v8, s[16:19], s%d offen offset:%d" % (cc, cc + 1, S_T0 + i, j * 64))
    return F + mt * nt * 2


def epi_gemm3(a, c):
    acc, V_L15, V_G, R = c['acc'], c['V_L15'], c['V_G'], c['R']
    npair = c['nt'] // 2
    ocol = R['ocol']
    ldo = DF * 2
    a("s_lshl_b32 s%d, s%d, 7" % (S_T0, S_TM))
    a("s_lshl_b32 s%d, s%d, 6" % (S_T0 + 1, S_B[0]))
    a("s_add_u32 s%d, s%d, s%d" % (S_T0, S_T0, S_T0 + 1))
    a("s_mul_i32 s%d, s%d, %d" % (S_T0, S_T0, ldo))
    a("s_mul_i32 s%d, s%d, 448" % (S_T0 + 1, S_TN))
    a("s_add_u32 s%d, s%d, s%d" % (S_T0, S_T0, S_T0 + 1))
    a("s_lshl_b32 s%d, s%d, 5" % (S_T0 + 1, S_B[1]))
    a("s_add_u32 s%d, s%d, s%d" % (S_T0, S_T0, S_T0 + 1))
    for i in range(1, 4):
        a("s_add_u32 s%d, s%d, %d" % (S_T0 + i, S_T0, i * 16 * ldo))
    a("s_mov_b32 s%d, %d" % (S_T0 + 4, ldo))
    VA = 3
    a("v_mul_lo_u32 v%d, v%d, s%d" % (VA, V_L15, S_T0 + 4))
    a("v_lshl_add_u32 v%d, v%d, 3, v%d" % (VA, V_G, VA))
    a("s_and_b32 s%d, s%d, 1" % (S_T0 + 5, S_TN))
    a("s_cmp_lg_u32 s%d, 0" % (S_T0 + 5))
    a("s_cselect_b32 s%d, 0, 384" % (S_T0 + 6))
    a("s_cselect_b32 s%d, 64, 0" % (S_T0 + 5))
    a("v_add_u32 v10, s%d, v%d" % (S_T0 + 6, VA))
    a("v_add_u32 v%d, s%d, v%d" % (VA, S_T0 + 5, VA))
    c1 = -2.0 * LOG2E * 0.7978845608028654
    c2 = c1 * 0.044715
    a("s_mov_b32 s%d, %s" % (S_T0 + 8, f32hex(c2)))
    a("s_mov_b32 s%d, %s" % (S_T0 + 9, f32hex(c2)))
    a("v_mov_b32 v4, %s" % f32hex(c1))
    a("v_mov_b32 v5, %s" % f32hex(c1))
    T0 = 6
    for i in range(4):
        for j in range(npair):
            g = acc(i, j)
            u = acc(i, npair + j)
            for h in range(2):
                gg = g + 2 * h
                tt = T0 + 2 * h
                a("v_pk_mul_f32 v[%d:%d], v[%d:%d], v[%d:%d]" % (tt, tt + 1, gg, gg + 1, gg, gg + 1))
            for h in range(2):
                tt = T0 + 2 * h
                a("v_pk_fma_f32 v[%d:%d], v[%d:%d], s[%d:%d], v[4:5]" % (tt, tt + 1, tt, tt + 1, S_T0 + 8, S_T0 + 9))
            for h in range(2):
                gg = g + 2 * h
                tt = T0 + 2 * h
                a("v_pk_mul_f32 v[%d:%d], v[%d:%d], v[%d:%d]" % (tt, tt + 1, tt, tt + 1, gg, gg + 1))
            for r in range(4):
                a("v_exp_f32 v%d, v%d" % (T0 + r, T0 + r))
            for h in range(2):
                gg = g + 2 * h
                uu = u + 2 * h
                a("v_pk_mul_f32 v[%d:%d], v[%d:%d], v[%d:%d]" % (gg, gg + 1, gg, gg + 1, uu, uu + 1))
            for r in range(4):
                a("v_add_f32 v%d, 1.0, v%d" % (T0 + r, T0 + r))
            for r in range(4):
                a("v_rcp_f32 v%d, v%d" % (T0 + r, T0 + r))
            a("s_nop 0")
            for h in range(2):
                gg = g + 2 * h
                tt = T0 + 2 * h
                a("v_pk_mul_f32 v[%d:%d], v[%d:%d], v[%d:%d]" % (gg, gg + 1, gg, gg + 1, tt, tt + 1))
            a("v_cvt_pk_bf16_f32 v%d, v%d, v%d" % (g, g, g + 1))
            a("v_cvt_pk_bf16_f32 v%d, v%d, v%d" % (g + 1, g + 2, g + 3))
            a("buffer_store_dwordx2 v[%d:%d], v%d, s[16:19], s%d offen offset:%d" % (g, g + 1, VA if ocol[j][0] == 'A' else 10, S_T0 + i, ocol[j][1]))
    return 0


def build():
    a = Asm()
    descs = []
    launches = []

    if "pf" in EXP:
        descs.append(prefetch_kernel(a, "pf_kernel"))
        launches.append(("pf_kernel", 1024, 256, 0))
    descs.append(ln_kernel(a, "ln1_kernel", ('arg', 'x'), WS_XN, True))
    launches.append(("ln1_kernel", S // 4, 256, 0))

    ldw = 3 * D * 2

    def srds1(a):
        srd_from_ptr(a, 16, 4, S * D * 2, WS_PQ)
        srd_from_ptr(a, 20, 4, 135168, WS_KV)
    R1 = dict(nxp=2, xp_coef=[2, 4, 8], mt=2,
              waddr=[('A', 0), ('A', 32)], t_coefA=[0, 2, 0],
              ntiles=[(0, 0, True), (1, 0, True), (0, 1024, False), (1, 1024, False), (0, 2048, False), (1, 2048, False)],
              w_slot=[('A', i * 2048, i * 1024, 0) for i in range(3)], ko_par=0,
              wg_coefA=[8 * ldw, 16 * ldw, 32 * ldw], wl_coefA=[3 * 1024, 6 * 1024, 12 * 1024],
              row_coef=[32, 0, 64], wr_coef=[0, 0, 0])
    P1 = dict(name="gemm1_kernel", NW=8, BM=128, kbx=2, kbw=2, NSX=4, NSW=4, WB=24576, kostrideA=3072,
              K=D, ldx=D * 2, ldw=ldw, x_ws=WS_XN,
              w=['wqkv'], pf=[('wg', D * DF * 2), ('wu', D * DF * 2)], mblk_bits=1, srds=srds1, tn_bytes=128, epilogue=epi_gemm1, roles=[R1])
    descs.append(gemm_kernel(a, P1))
    launches.append(("gemm1_kernel", 256, 512, 4 * 16384 + 4 * 24576))

    descs.append(apply_kernel(a, "apply_kernel"))
    launches.append(("apply_kernel", 256, 256, 0))

    def srds2(a):
        srd_from_ptr(a, 16, 4, S * D * 2, WS_H)
        srd_from_ptr(a, 20, 62, S * D * 2)
    ldw = D * 2
    R2 = dict(nxp=2, xp_coef=[2, 4, 0], mt=2,
              waddr=[('A', 0), ('A', 64)], t_coefA=[0, 1, 0],
              ntiles=[(0, 0, True), (1, 0, True), (0, 1024, True), (1, 1024, True)],
              w_slot=[('A', (i >> 1) * 8 * ldw + (i & 1) * 128, i * 1024, i >> 1) for i in range(4)], ko_par=None,
              wg_coefA=[16 * ldw, 32 * ldw, 0], wl_coefA=[4 * 1024, 8 * 1024, 0],
              row_coef=[32, 0, 0], wr_coef=[0, 0, 0])
    NS2 = 6
    P2 = dict(name="gemm2_kernel", NW=4, BM=64, kbx=2, kbw=2, NSX=NS2, NSW=NS2, WB=16384, kostrideA=2048,
              K=D, ldx=D * 2, ldw=ldw, x_ws=WS_O,
              w=['wo'], argptrs=[(62, 'x')], mblk_bits=2, srds=srds2, tn_bytes=256, epilogue=epi_resid, roles=[R2])
    descs.append(gemm_kernel(a, P2))
    launches.append(("gemm2_kernel", 256, 256, NS2 * (8192 + 16384)))

    descs.append(ln_kernel(a, "ln2_kernel", ('ws', WS_H), WS_HN, False))
    launches.append(("ln2_kernel", S // 4, 256, 0))

    def srds3(a):
        srd_from_ptr(a, 16, 4, S * DF * 2, WS_HH)
    ldw = DF * 2
    KB = 1024
    R3a = dict(nxp=2, xp_coef=[2, 4, 8], mt=4,
               waddr=[('A', 0), ('A', 64)], t_coefA=[0, 1, 0],
               ntiles=[(a_, o_ + m_ * 14 * KB, True) for m_ in range(2) for (a_, o_) in ((0, 0), (1, 0), (0, KB), (1, KB))],
               w_slot=[('A', i * 128, i * KB, 0) for i in range(3)], ko_par=0,
               wg_coefA=[8 * ldw, 0, 0], wl_coefA=[3 * KB, 14 * KB, 0],
               row_coef=[64, 0, 0], wr_coef=[0, 0, 0],
               ocol=[('A', 0), ('A', 64), ('A', 128), ('A', 192)])
    R3b = dict(nxp=2, xp_coef=[2, 4, 8], mt=4,
               waddr=[('A', 0), ('A', 64), ('B', 0)], t_coefA=[0, 1, 0], t_coefB=[0, 1, 0],
               ntiles=[(a_, o_ + m_ * 14 * KB, True) for m_ in range(2) for (a_, o_) in ((0, 2 * KB), (1, 2 * KB), (2, 12 * KB))],
               w_slot=[('A', 16 * ldw + i * 128, 6 * KB + i * KB, 0) for i in range(3)] + [('B', 0, 12 * KB)], ko_par=0,
               wg_coefA=[8 * ldw, 0, 0], wl_coefA=[3 * KB, 14 * KB, 0],
               wg_coefB=[16 * ldw, 0, 0], wl_coefB=[KB, 14 * KB, 0],
               row_coef=[64, 0, 0], wr_coef=[0, 0, 0],
               ocol=[('A', 256), ('A', 320), ('B', 0)])
    P3 = dict(name="gemm3_kernel", NW=8, BM=128, kbx=2, kbw=1, NSX=3, NSW=4, WB=28 * KB, kostrideA=3 * KB, k16strideB=KB,
              par_offA=(0, 64), par_offB=(384, 0),
              K=D, ldx=D * 2, ldw=ldw, x_ws=WS_HN,
              w=['wg', 'wu'], pf=[('wd', D * DF * 2)], wsel_bit=1, mblk_bits=1, srds=srds3, tn_bytes=448, epilogue=epi_gemm3,
              roles=[R3a, R3b])
    descs.append(gemm_kernel(a, P3))
    launches.append(("gemm3_kernel", 256, 512, 3 * 16384 + 4 * 28 * KB))

    def srds4(a):
        srd_from_ptr(a, 16, 62, S * D * 2)
        srd_from_ptr(a, 20, 4, S * D * 2, WS_H)
    ldw = D * 2
    P4 = dict(P2)
    P4.update(name="gemm4_kernel", K=DF, ldx=DF * 2, x_ws=WS_HH, w=['wd'], argptrs=[(62, 'out')], srds=srds4)
    descs.append(gemm_kernel(a, P4))
    launches.append(("gemm4_kernel", 256, 256, NS2 * (8192 + 16384)))

    hdr = ["; pre-LN linear attention block + GEGLU FFN, hand-written gfx950 kernels (generated by gen/gen.py)"]
    for (k, g, b, l) in launches:
        hdr.append("; @launch kernel=%s grid=(%d,1,1) block=(%d,1,1) lds=%d" % (k, g, b, l))
    hdr.append('.amdgcn_target "amdgcn-amd-amdhsa--gfx950"')
    hdr.append(".text")
    txt = "\n".join(hdr) + "\n" + "\n".join(a.lines) + "\n" + '.section .rodata,"a"\n' + "".join(descs)
    return txt


if __name__ == "__main__":
    out = sys.argv[1] if len(sys.argv) > 1 else OUT
    open(out, "w").write(build())
    print("wrote", out)
```

```python
import sys, os
EXP = os.environ.get("EXP", "").split(",")

OUT = "sequential_preLN__linear_attn_block__glu_gated_geglu__prompt.s"

S, D, DF = 2048, 1024, 3584
MB = 1 << 20
WS_XN = 0
WS_PQ = 4 * MB
WS_KV = 8 * MB
WS_Z = WS_KV + 131072
WS_CS = WS_KV + 0x30000
WS_ST = WS_KV + 0x40000
WS_O = 9 * MB
WS_H = 13 * MB
WS_HN = 17 * MB
WS_HH = 21 * MB
KA = dict(x=0, wqkv=8, wo=16, bx=24, wg=32, wu=40, wd=48, out=56, dbg=64, ws=72)

LOG2E = 1.4426950408889634


def f32hex(x):
    import struct
    return "0x%08x" % struct.unpack("<I", struct.pack("<f", x))[0]


class Asm:
    def __init__(self):
        self.lines = []
        self.uid = 0

    def __call__(self, s):
        if "offset:" in s:
            off = int(s.split("offset:")[1].split()[0])
            assert off < (4096 if s.startswith("buffer_") else 65536), s
        self.lines.append("    " + s)

    def label(self, s):
        self.lines.append(s + ":")

    def raw(self, s):
        self.lines.append(s)

    def newlabel(self, p):
        self.uid += 1
        return "L_%s_%d" % (p, self.uid)


def kernel_header(a, name):
    a.raw(".globl %s" % name)
    a.raw(".p2align 8")
    a.raw(".type %s,@function" % name)
    a.label(name)


def kernel_desc(name, nvgpr, accum, nsgpr=102):
    return """.p2align 6
.amdhsa_kernel %s
  .amdhsa_next_free_vgpr %d
  .amdhsa_next_free_sgpr %d
  .amdhsa_accum_offset %d
  .amdhsa_group_segment_fixed_size 0
  .amdhsa_kernarg_size 80
  .amdhsa_user_sgpr_count 2
  .amdhsa_user_sgpr_kernarg_segment_ptr 1
  .amdhsa_system_sgpr_workgroup_id_x 1
.end_amdhsa_kernel
""" % (name, nvgpr, nsgpr, accum)


def srd_from_ptr(a, d, p, nbytes, off=0):
    if off:
        a("s_add_u32 s%d, s%d, 0x%x" % (d, p, off))
        a("s_addc_u32 s%d, s%d, 0" % (d + 1, p + 1))
    else:
        a("s_mov_b32 s%d, s%d" % (d, p))
        a("s_mov_b32 s%d, s%d" % (d + 1, p + 1))
    a("s_mov_b32 s%d, 0x%x" % (d + 2, nbytes))
    a("s_mov_b32 s%d, 0x00020000" % (d + 3))


def ln_kernel(a, name, src, dst, zero_kv):
    kernel_header(a, name)
    end = a.newlabel("end")
    cs = a.newlabel("cs")
    a("s_cmp_ge_u32 s2, %d" % (S // 4))
    a("s_cbranch_scc1 %s" % end)
    a("s_load_dwordx2 s[4:5], s[0:1], %d" % KA['ws'])
    if src[0] == 'arg':
        a("s_load_dwordx2 s[6:7], s[0:1], %d" % KA[src[1]])
    a("v_lshrrev_b32 v1, 6, v0")
    a("v_and_b32 v2, 63, v0")
    a("s_lshl_b32 s3, s2, 2")
    a("v_add_u32 v1, s3, v1")
    a("v_lshlrev_b32 v1, 11, v1")
    a("v_lshl_add_u32 v1, v2, 4, v1")
    a("s_waitcnt lgkmcnt(0)")
    if src[0] == 'arg':
        srd_from_ptr(a, 8, 6, S * D * 2)
    else:
        srd_from_ptr(a, 8, 4, S * D * 2, src[1])
    srd_from_ptr(a, 12, 4, S * D * 2, dst)
    a("buffer_load_dwordx4 v[4:7], v1, s[8:11], 0 offen")
    a("buffer_load_dwordx4 v[8:11], v1, s[8:11], 0 offen offset:1024")
    npf = 0
    if zero_kv:
        a("s_load_dwordx4 s[40:43], s[0:1], %d" % KA['wqkv'])
        a("v_lshlrev_b32 v3, 6, v0")
        a("s_lshl_b32 s3, s2, 14")
        a("v_add_u32 v3, s3, v3")
        a("s_waitcnt lgkmcnt(0)")
        srd_from_ptr(a, 52, 40, D * 3 * D * 2)
        srd_from_ptr(a, 56, 42, D * D * 2)
        a("buffer_load_dword v40, v3, s[52:55], 0 offen")
        a("v_subrev_u32 v3, 0x%x, v3" % (D * 3 * D * 2))
        a("buffer_load_dword v41, v3, s[56:59], 0 offen")
        npf = 2
    if zero_kv:
        skip = a.newlabel("nz")
        a("s_cmp_ge_u32 s2, 33")
        a("s_cbranch_scc1 %s" % skip)
        srd_from_ptr(a, 16, 4, 135168, WS_KV)
        a("s_lshl_b32 s3, s2, 12")
        a("v_lshlrev_b32 v3, 4, v0")
        a("v_add_u32 v3, s3, v3")
        a("v_mov_b32 v12, 0")
        a("v_mov_b32 v13, 0")
        a("v_mov_b32 v14, 0")
        a("v_mov_b32 v15, 0")
        a("buffer_store_dwordx4 v[12:15], v3, s[16:19], 0 offen")
        a.label(skip)
    a("s_waitcnt vmcnt(%d)" % (npf + (1 if zero_kv else 0)) if False else "s_waitcnt vmcnt(%d)" % npf)
    for i in range(8):
        a("v_lshlrev_b32 v%d, 16, v%d" % (16 + 2 * i, 4 + i))
        a("v_and_b32 v%d, 0xffff0000, v%d" % (17 + 2 * i, 4 + i))

    def reduce(v, t):
        a("s_nop 1")
        a("v_add_f32_dpp %s, %s, %s quad_perm:[1,0,3,2] row_mask:0xf bank_mask:0xf" % (t, v, v))
        a("s_nop 1")
        a("v_add_f32_dpp %s, %s, %s quad_perm:[2,3,0,1] row_mask:0xf bank_mask:0xf" % (v, t, t))
        a("s_nop 1")
        a("v_add_f32_dpp %s, %s, %s row_half_mirror row_mask:0xf bank_mask:0xf" % (t, v, v))
        a("s_nop 1")
        a("v_add_f32_dpp %s, %s, %s row_mirror row_mask:0xf bank_mask:0xf" % (v, t, t))
        a("s_nop 1")
        a("v_readlane_b32 s20, %s, 0" % v)
        a("v_readlane_b32 s21, %s, 16" % v)
        a("v_readlane_b32 s22, %s, 32" % v)
        a("v_readlane_b32 s23, %s, 48" % v)
        a("s_nop 1")
        a("v_mov_b32 %s, s20" % v)
        a("v_add_f32 %s, s21, %s" % (v, v))
        a("v_add_f32 %s, s22, %s" % (v, v))
        a("v_add_f32 %s, s23, %s" % (v, v))

    a("v_add_f32 v32, v16, v17")
    for i in range(2, 16):
        a("v_add_f32 v32, v32, v%d" % (16 + i))
    reduce("v32", "v33")
    a("v_mul_f32 v32, %s, v32" % f32hex(1.0 / D))
    a("v_sub_f32 v34, v16, v32")
    a("v_mul_f32 v35, v34, v34")
    for i in range(1, 16):
        a("v_sub_f32 v34, v%d, v32" % (16 + i))
        a("v_fmac_f32 v35, v34, v34")
    reduce("v35", "v33")
    a("v_mul_f32 v35, %s, v35" % f32hex(1.0 / D))
    a("v_cvt_pk_bf16_f32 v36, v32, v35")
    a("v_lshlrev_b32 v32, 16, v36")
    a("v_and_b32 v35, 0xffff0000, v36")
    a("v_add_f32 v35, %s, v35" % f32hex(1e-5))
    a("v_cvt_pk_bf16_f32 v36, v35, v35")
    a("v_lshlrev_b32 v35, 16, v36")
    a("v_sqrt_f32 v35, v35")
    a("s_nop 0")
    a("v_cvt_pk_bf16_f32 v36, v35, v35")
    a("v_lshlrev_b32 v35, 16, v36")
    a("v_rcp_f32 v35, v35")
    for i in range(16):
        a("v_sub_f32 v%d, v%d, v32" % (16 + i, 16 + i))
    for i in range(8):
        a("v_cvt_pk_bf16_f32 v%d, v%d, v%d" % (4 + i, 16 + 2 * i, 17 + 2 * i))
    for i in range(8):
        a("v_lshlrev_b32 v%d, 16, v%d" % (16 + 2 * i, 4 + i))
        a("v_and_b32 v%d, 0xffff0000, v%d" % (17 + 2 * i, 4 + i))
    for i in range(16):
        a("v_mul_f32 v%d, v%d, v35" % (16 + i, 16 + i))
    for i in range(8):
        a("v_cvt_pk_bf16_f32 v%d, v%d, v%d" % (4 + i, 16 + 2 * i, 17 + 2 * i))
    a("buffer_store_dwordx4 v[4:7], v1, s[12:15], 0 offen")
    a("buffer_store_dwordx4 v[8:11], v1, s[12:15], 0 offen offset:1024")
    a.label(end)
    a("s_endpgm")
    return kernel_desc(name, 44, 44)


def prefetch_kernel(a, name):
    kernel_header(a, name)
    end = a.newlabel("end")
    a("s_cmp_ge_u32 s2, 1024")
    a("s_cbranch_scc1 %s" % end)
    for i, k in enumerate(['wqkv', 'wo', 'wg', 'wu', 'wd']):
        a("s_load_dwordx2 s[%d:%d], s[0:1], %d" % (40 + 2 * i, 41 + 2 * i, KA[k]))
    a("v_lshlrev_b32 v1, 4, v0")
    a("s_lshl_b32 s3, s2, 12")
    a("v_add_u32 v1, s3, v1")
    a("s_waitcnt lgkmcnt(0)")
    sizes = [D * 3 * D * 2, D * D * 2, D * DF * 2, D * DF * 2, DF * D * 2]
    r = 4
    for i, sz in enumerate(sizes):
        srd_from_ptr(a, 8 + 4 * i, 40 + 2 * i, sz)
        for j in range((sz + (4 << 20) - 1) // (4 << 20)):
            a("s_mov_b32 s4, %d" % (j * (4 << 20)))
            a("buffer_load_dwordx4 v[%d:%d], v1, s[%d:%d], s4 offen" % (r, r + 3, 8 + 4 * i, 11 + 4 * i))
            r += 4
    a("s_waitcnt vmcnt(0)")
    a.label(end)
    a("s_endpgm")
    return kernel_desc(name, 64, 64)

def colsum_code(a, cs, end, NB0):
    a("s_endpgm")
    a.label(cs)
    a("s_cmp_ge_u32 s2, %d" % (NB0 + 112))
    a("s_cbranch_scc1 %s" % end)
    a("s_load_dwordx2 s[4:5], s[0:1], %d" % KA['ws'])
    a("s_load_dwordx4 s[40:43], s[0:1], %d" % KA['wg'])
    a("s_sub_u32 s3, s2, %d" % (NB0))
    a("s_cmp_ge_u32 s3, 56")
    a("s_cselect_b32 s44, 56, 0")
    a("s_sub_u32 s45, s3, s44")
    a("v_and_b32 v1, 7, v0")
    a("v_lshrrev_b32 v2, 3, v0")
    a("s_mov_b32 s46, %d" % (DF * 2))
    a("v_mul_lo_u32 v2, v2, s46")
    a("v_lshl_add_u32 v2, v1, 4, v2")
    a("s_lshl_b32 s46, s45, 7")
    a("v_add_u32 v2, s46, v2")
    a("s_waitcnt lgkmcnt(0)")
    a("s_cmp_ge_u32 s3, 56")
    a("s_cselect_b32 s40, s42, s40")
    a("s_cselect_b32 s41, s43, s41")
    srd_from_ptr(a, 8, 40, D * DF * 2)
    srd_from_ptr(a, 12, 4, 2 * DF * 4, WS_CS)
    for j in range(32):
        a("s_mov_b32 s46, %d" % (j * 32 * DF * 2))
        a("buffer_load_dwordx4 v[%d:%d], v2, s[8:11], s46 offen" % (16 + 4 * j, 19 + 4 * j))
    for j in range(32):
        a("s_waitcnt vmcnt(%d)" % (31 - j))
        for q in range(4):
            r = 16 + 4 * j + q
            if j == 0:
                a("v_lshlrev_b32 v%d, 16, v%d" % (4 + 2 * q, r))
                a("v_and_b32 v%d, 0xffff0000, v%d" % (5 + 2 * q, r))
            else:
                a("v_lshlrev_b32 v12, 16, v%d" % r)
                a("v_and_b32 v13, 0xffff0000, v%d" % r)
                a("v_add_f32 v%d, v%d, v12" % (4 + 2 * q, 4 + 2 * q))
                a("v_add_f32 v%d, v%d, v13" % (5 + 2 * q, 5 + 2 * q))
    a("v_lshlrev_b32 v3, 5, v0")
    a("ds_write_b128 v3, v[4:7]")
    a("ds_write_b128 v3, v[8:11] offset:16")
    a("s_waitcnt lgkmcnt(0)")
    a("s_barrier")
    a("v_and_b32 v1, 63, v0")
    a("v_lshrrev_b32 v2, 6, v0")
    a("v_lshlrev_b32 v3, 2, v1")
    a("v_lshl_add_u32 v3, v2, 11, v3")
    for j in range(8):
        a("ds_read_b32 v%d, v3 offset:%d" % (4 + j, j * 256))
    a("s_waitcnt lgkmcnt(0)")
    for j in range(1, 8):
        a("v_add_f32 v4, v4, v%d" % (4 + j))
    a("v_lshlrev_b32 v3, 2, v0")
    a("ds_write_b32 v3, v4 offset:8192")
    a("s_waitcnt lgkmcnt(0)")
    a("s_barrier")
    a("v_lshlrev_b32 v3, 2, v1")
    for j in range(4):
        a("ds_read_b32 v%d, v3 offset:%d" % (4 + j, 8192 + j * 256))
    a("s_waitcnt lgkmcnt(0)")
    for j in range(1, 4):
        a("v_add_f32 v4, v4, v%d" % (4 + j))
    a("s_lshl_b32 s46, s3, 8")
    a("v_cmp_gt_u32 vcc, 64, v0")
    a("s_and_saveexec_b64 s[48:49], vcc")
    a("s_cbranch_execz %s" % end)
    a("buffer_store_dword v4, v3, s[12:15], s46 offen")


def apply_kernel(a, name):
    kernel_header(a, name)
    end = a.newlabel("end")
    cs = a.newlabel("cs")
    a("s_cmp_ge_u32 s2, 256")
    a("s_cbranch_scc1 %s" % cs)
    a("s_load_dwordx2 s[4:5], s[0:1], %d" % KA['ws'])
    a("v_lshrrev_b32 v1, 6, v0")
    a("v_and_b32 v0, 63, v0")
    a("s_nop 0")
    a("v_readfirstlane_b32 s28, v1")
    a("v_and_b32 v2, 15, v0")
    a("v_lshrrev_b32 v3, 4, v0")
    a("s_and_b32 s29, s2, 7")
    a("s_lshr_b32 s30, s2, 3")
    a("s_lshl_b32 s29, s29, 2")
    a("s_add_u32 s29, s29, s28")
    a("s_waitcnt lgkmcnt(0)")
    srd_from_ptr(a, 8, 4, S * D * 2, WS_PQ)
    srd_from_ptr(a, 12, 4, 135168, WS_KV)
    srd_from_ptr(a, 16, 4, S * D * 2, WS_O)
    a("v_lshlrev_b32 v4, 7, v2")
    a("v_lshl_add_u32 v4, v3, 5, v4")
    a("s_lshl_b32 s31, s29, 12")
    a("buffer_load_dwordx4 v[8:11], v4, s[12:15], s31 offen")
    a("buffer_load_dwordx4 v[12:15], v4, s[12:15], s31 offen offset:16")
    a("buffer_load_dwordx4 v[16:19], v4, s[12:15], s31 offen offset:2048")
    a("buffer_load_dwordx4 v[20:23], v4, s[12:15], s31 offen offset:2064")
    a("v_lshlrev_b32 v5, 5, v3")
    a("s_lshl_b32 s32, s29, 7")
    a("s_add_u32 s32, s32, 131072")
    a("buffer_load_dwordx4 v[24:27], v5, s[12:15], s32 offen")
    a("buffer_load_dwordx4 v[28:31], v5, s[12:15], s32 offen offset:16")
    a("v_lshlrev_b32 v6, 11, v2")
    a("v_lshl_add_u32 v6, v3, 4, v6")
    a("s_lshl_b32 s33, s30, 17")
    a("s_lshl_b32 s34, s29, 6")
    a("s_add_u32 s33, s33, s34")
    for i in range(4):
        a("s_add_u32 s34, s33, %d" % (i * 32768))
        a("buffer_load_dwordx4 v[%d:%d], v6, s[8:11], s34 offen" % (32 + 4 * i, 35 + 4 * i))
    a("s_waitcnt vmcnt(4)")
    for j in range(4):
        a("v_cvt_pk_bf16_f32 v%d, v%d, v%d" % (48 + j, 8 + 2 * j, 9 + 2 * j))
        a("v_cvt_pk_bf16_f32 v%d, v%d, v%d" % (52 + j, 16 + 2 * j, 17 + 2 * j))
        a("v_cvt_pk_bf16_f32 v%d, v%d, v%d" % (56 + j, 24 + 2 * j, 25 + 2 * j))
    a("s_waitcnt vmcnt(0)")
    a("s_nop 1")
    for i in range(4):
        a("v_mfma_f32_16x16x32_bf16 v[%d:%d], v[48:51], v[%d:%d], 0" % (64 + 12 * i, 67 + 12 * i, 32 + 4 * i, 35 + 4 * i))
        a("v_mfma_f32_16x16x32_bf16 v[%d:%d], v[52:55], v[%d:%d], 0" % (68 + 12 * i, 71 + 12 * i, 32 + 4 * i, 35 + 4 * i))
        a("v_mfma_f32_16x16x32_bf16 v[%d:%d], v[56:59], v[%d:%d], 0" % (72 + 12 * i, 75 + 12 * i, 32 + 4 * i, 35 + 4 * i))
    a("v_lshlrev_b32 v7, 11, v2")
    a("v_lshl_add_u32 v7, v3, 3, v7")
    a("s_nop 7")
    a("s_nop 1")
    for i in range(4):
        b = 64 + 12 * i
        a("v_cvt_pk_bf16_f32 v%d, v%d, v%d" % (b + 8, b + 8, b + 8))
        a("v_lshlrev_b32 v%d, 16, v%d" % (b + 8, b + 8))
        a("v_add_f32 v%d, %s, v%d" % (b + 8, f32hex(1e-6), b + 8))
        a("v_rcp_f32 v%d, v%d" % (b + 8, b + 8))
        a("s_nop 0")
        for r in range(8):
            a("v_mul_f32 v%d, v%d, v%d" % (b + r, b + r, b + 8))
        for r in range(4):
            a("v_cvt_pk_bf16_f32 v%d, v%d, v%d" % (b + r, b + 2 * r, b + 2 * r + 1))
        a("s_add_u32 s34, s33, %d" % (i * 32768))
        a("buffer_store_dwordx2 v[%d:%d], v7, s[16:19], s34 offen" % (b, b + 1))
        a("buffer_store_dwordx2 v[%d:%d], v7, s[16:19], s34 offen offset:32" % (b + 2, b + 3))
    colsum_code(a, cs, end, 256)
    a.label(end)
    a("s_endpgm")
    return kernel_desc(name, 144, 144)


S_WAVE, S_TM, S_TN, S_CNT = 28, 29, 30, 31
S_KX, S_KW, S_RD, S_WR, S_MX, S_MW = 32, 33, 34, 35, 36, 37
S_B = [38, 39, 40]
S_T0 = 42
ACC0 = 28


def wave_affine(a, sd, coefs, tmp, base=0):
    a("s_mov_b32 s%d, %d" % (sd, base))
    for b, c in enumerate(coefs):
        if c:
            a("s_mul_i32 s%d, s%d, %d" % (tmp, S_B[b], c))
            a("s_add_u32 s%d, s%d, s%d" % (sd, sd, tmp))


def gemm_kernel(a, P):
    name = P['name']
    kernel_header(a, name)
    end = a.newlabel("end")
    a("s_cmp_ge_u32 s2, 256")
    a("s_cbranch_scc1 %s" % end)
    if "stamp" in EXP:
        a("s_memtime s[64:65]")
        a("s_load_dwordx2 s[72:73], s[0:1], %d" % KA['dbg'])
    a("s_load_dwordx2 s[4:5], s[0:1], %d" % KA['ws'])
    a("s_load_dwordx2 s[6:7], s[0:1], %d" % KA[P['w'][0]])
    if len(P['w']) > 1:
        a("s_load_dwordx2 s[60:61], s[0:1], %d" % KA[P['w'][1]])
    for (sd, key) in P.get('argptrs', []):
        a("s_load_dwordx2 s[%d:%d], s[0:1], %d" % (sd, sd + 1, KA[key]))
    for i, (key, nb) in enumerate(P.get('pf', [])):
        a("s_load_dwordx2 s[%d:%d], s[0:1], %d" % (82 + 2 * i, 83 + 2 * i, KA[key]))
    a("v_lshrrev_b32 v1, 6, v0")
    a("v_and_b32 v0, 63, v0")
    a("s_nop 0")
    a("v_readfirstlane_b32 s%d, v1" % S_WAVE)
    a("v_and_b32 v1, 15, v0")
    a("v_lshrrev_b32 v2, 4, v0")
    mblk_bits = P['mblk_bits']
    a("s_and_b32 s%d, s2, 7" % S_T0)
    a("s_lshr_b32 s%d, s2, 3" % (S_T0 + 1))
    a("s_and_b32 s%d, s%d, %d" % (S_TM, S_T0, (1 << mblk_bits) - 1))
    a("s_lshl_b32 s%d, s%d, 3" % (S_TM, S_TM))
    a("s_and_b32 s%d, s%d, 7" % (S_T0 + 2, S_T0 + 1))
    a("s_add_u32 s%d, s%d, s%d" % (S_TM, S_TM, S_T0 + 2))
    a("s_lshr_b32 s%d, s%d, %d" % (S_TN, S_T0, mblk_bits))
    a("s_lshl_b32 s%d, s%d, 2" % (S_TN, S_TN))
    a("s_lshr_b32 s%d, s%d, 3" % (S_T0 + 2, S_T0 + 1))
    a("s_add_u32 s%d, s%d, s%d" % (S_TN, S_TN, S_T0 + 2))
    a("s_and_b32 s%d, s%d, 1" % (S_B[0], S_WAVE))
    a("s_bfe_u32 s%d, s%d, 0x10001" % (S_B[1], S_WAVE))
    a("s_lshr_b32 s%d, s%d, 2" % (S_B[2], S_WAVE))
    roles = P['roles']
    maxv = 0
    if len(roles) == 2:
        r1 = a.newlabel("role1")
        a("s_cmp_ge_u32 s%d, 4" % S_WAVE)
        a("s_cbranch_scc1 %s" % r1)
        nv0 = gemm_body(a, P, roles[0], end)
        a("s_branch %s" % end)
        a.label(r1)
        nv1 = gemm_body(a, P, roles[1], end)
        arch = max(nv0[0], nv1[0]); acc_n = max(nv0[1], nv1[1])
    else:
        arch, acc_n = gemm_body(a, P, roles[0], end)
    a.label(end)
    a("s_endpgm")
    arch = (arch + 3) // 4 * 4
    assert arch + acc_n <= (256 if P['NW'] == 8 else 512), (name, arch, acc_n)
    return kernel_desc(name, arch + acc_n, arch)


S_RDX, S_WRX, S_RDW, S_WRW = 34, 35, 41, 96


def gemm_body(a, P, R, end):
    BM, K = P['BM'], P['K']
    kbx, kbw, NSX, NSW = P['kbx'], P['kbw'], P['NSX'], P['NSW']
    ldx, ldw = P['ldx'], P['ldw']
    nsteps = K // 32
    TX, TW = nsteps // kbx, nsteps // kbw
    XB = BM * kbx * 64
    WB = P['WB']
    WBASE = NSX * XB
    assert WBASE + NSW * WB <= 163840
    nxp = R['nxp']
    wsl = R['w_slot']
    nwp = len(wsl)
    mt = R['mt']
    ntl = R['ntiles']
    nt = len(ntl)
    wad = R['waddr']
    nwa = len(wad)
    V_L15, V_G = 1, 2
    v = 3
    V_XO = list(range(v, v + nxp)); v += nxp
    V_WO = list(range(v, v + nwp)); v += nwp
    nxa = kbx
    V_XAB = list(range(v, v + nxa)); v += nxa
    V_WAB = list(range(v, v + nwa)); v += nwa
    V_XA = list(range(v, v + nxa)); v += nxa
    V_WA = list(range(v, v + nwa)); v += nwa
    V_T = v; v += 4
    assert v <= ACC0 - 1, v
    nacc = mt * nt * 4

    def acc(i, j):
        return ACC0 + (j * mt + i) * 4
    FS = (mt + nt) * 4

    def xf(s, i):
        return s * FS + i * 4

    def wf(s, j):
        return s * FS + mt * 4 + j * 4

    t0, t1, t2, t3 = V_T, V_T + 1, V_T + 2, V_T + 3
    rpp = 8 if kbx == 2 else 16
    if kbx == 2:
        a("v_lshrrev_b32 v%d, 3, v0" % t0)
        a("v_and_b32 v%d, 7, v0" % t1)
        a("v_xor_b32 v%d, v%d, v%d" % (t1, t1, t0))
    else:
        a("v_lshrrev_b32 v%d, 2, v0" % t0)
        a("v_bfe_u32 v%d, v0, 4, 1" % t2)
        a("v_bfe_u32 v%d, v0, 5, 1" % t3)
        a("v_xor_b32 v%d, v%d, v%d" % (t2, t2, t3))
        a("v_lshl_or_b32 v%d, v%d, 1, v%d" % (t2, t2, t3))
        a("v_and_b32 v%d, 3, v0" % t1)
        a("v_xor_b32 v%d, v%d, v%d" % (t1, t1, t2))
    wave_affine(a, S_T0, [c * rpp for c in R['xp_coef']], S_T0 + 1)
    a("s_mul_i32 s%d, s%d, %d" % (S_T0 + 1, S_TM, BM))
    a("s_add_u32 s%d, s%d, s%d" % (S_T0, S_T0, S_T0 + 1))
    a("v_add_u32 v%d, s%d, v%d" % (t0, S_T0, t0))
    a("s_mov_b32 s%d, %d" % (S_T0 + 1, ldx))
    a("v_mul_lo_u32 v%d, v%d, s%d" % (t0, t0, S_T0 + 1))
    a("v_lshl_add_u32 v%d, v%d, 4, v%d" % (V_XO[0], t1, t0))
    for i in range(1, nxp):
        a("v_add_u32 v%d, 0x%x, v%d" % (V_XO[i], i * rpp * ldx, V_XO[0]))
    wave_affine(a, S_MX, [c * 1024 for c in R['xp_coef']], S_T0)
    a("s_mul_i32 s%d, s%d, %d" % (S_T0 + 2, S_TN, P['tn_bytes']))
    a("s_mov_b32 s%d, %d" % (S_T0 + 3, ldw))
    for typ in ('A', 'B'):
        sl = [i for i in range(nwp) if wsl[i][0] == typ]
        if not sl:
            continue
        if typ == 'A':
            a("v_lshrrev_b32 v%d, 3, v0" % t0)
            a("v_bfe_u32 v%d, v0, 4, 1" % t2)
            a("v_lshlrev_b32 v%d, 1, v%d" % (t2, t2))
            a("v_and_b32 v%d, 7, v0" % t1)
            a("v_xor_b32 v%d, v%d, v%d" % (t1, t1, t2))
        else:
            a("v_lshrrev_b32 v%d, 2, v0" % t0)
            a("v_lshrrev_b32 v%d, 5, v0" % t2)
            a("v_lshlrev_b32 v%d, 1, v%d" % (t2, t2))
            a("v_and_b32 v%d, 3, v0" % t1)
            a("v_xor_b32 v%d, v%d, v%d" % (t1, t1, t2))
        a("v_mul_lo_u32 v%d, v%d, s%d" % (t0, t0, S_T0 + 3))
        wave_affine(a, S_T0, R['wg_coef' + typ], S_T0 + 1)
        a("s_add_u32 s%d, s%d, s%d" % (S_T0, S_T0, S_T0 + 2))
        if 'par_off' + typ in P:
            c0, c1 = P['par_off' + typ]
            a("s_and_b32 s%d, s%d, 1" % (S_T0 + 1, S_TN))
            a("s_cmp_lg_u32 s%d, 0" % (S_T0 + 1))
            a("s_cselect_b32 s%d, %d, %d" % (S_T0 + 1, c1, c0))
            a("s_add_u32 s%d, s%d, s%d" % (S_T0, S_T0, S_T0 + 1))
        a("v_add_u32 v%d, s%d, v%d" % (t0, S_T0, t0))
        if typ == 'A':
            kp = R['ko_par']
            for i in sl:
                par_c, par_bit = wsl[i][3], kp
                if par_bit is None:
                    a("v_xor_b32 v%d, %d, v%d" % (t2, par_c * 4, t1))
                else:
                    a("s_lshl_b32 s%d, s%d, 2" % (S_T0 + 1, S_B[par_bit]))
                    a("s_xor_b32 s%d, s%d, %d" % (S_T0 + 1, S_T0 + 1, par_c * 4))
                    a("v_xor_b32 v%d, s%d, v%d" % (t2, S_T0 + 1, t1))
                a("v_lshl_add_u32 v%d, v%d, 4, v%d" % (t2, t2, t0))
                a("v_add_u32 v%d, 0x%x, v%d" % (V_WO[i], wsl[i][1], t2))
        else:
            a("v_lshl_add_u32 v%d, v%d, 4, v%d" % (t0, t1, t0))
            for i in sl:
                a("v_add_u32 v%d, 0x%x, v%d" % (V_WO[i], wsl[i][1], t0))
    S_MWA, S_MWB = S_MW, 97
    wave_affine(a, S_MWA, R['wl_coefA'], S_T0, base=WBASE)
    if any(w[0] == 'B' for w in wsl):
        wave_affine(a, S_MWB, R['wl_coefB'], S_T0, base=WBASE)
    a("s_waitcnt lgkmcnt(0)")
    srd_from_ptr(a, 8, 4, S * ldx, P['x_ws'])
    if len(P['w']) > 1:
        a("s_cmp_lg_u32 s%d, 0" % S_B[P['wsel_bit']])
        a("s_cselect_b32 s6, s60, s6")
        a("s_cselect_b32 s7, s61, s7")
    srd_from_ptr(a, 12, 6, K * ldw)

    def dma_x():
        g = []
        for i in range(nxp):
            g.append(["s_add_u32 s%d, s%d, s%d" % (S_T0, S_WRX, S_MX),
                      "s_add_u32 m0, s%d, %d" % (S_T0, i * 1024),
                      "s_nop 0",
                      "buffer_load_dwordx4 v%d, s[8:11], s%d offen lds" % (V_XO[i], S_KX)])
        g.append(["s_add_u32 s%d, s%d, %d" % (S_KX, S_KX, kbx * 64)])
        return g

    def dma_w():
        g = []
        for i in range(nwp):
            g.append(["s_add_u32 s%d, s%d, s%d" % (S_T0, S_WRW, S_MWA if wsl[i][0] == 'A' else S_MWB),
                      "s_add_u32 m0, s%d, %d" % (S_T0, wsl[i][2]),
                      "s_nop 0",
                      "buffer_load_dwordx4 v%d, s[12:15], s%d offen lds" % (V_WO[i], S_KW)])
        g.append(["s_add_u32 s%d, s%d, %d" % (S_KW, S_KW, kbw * 32 * ldw)])
        return g

    issued = []

    def sim_issue(op, tile):
        for _ in range(nxp if op == 'X' else nwp):
            issued.append((op, tile))

    def sim_wait(s):
        need = {('X', s // kbx), ('W', s // kbw)}
        last = max(i for i, e in enumerate(issued) if e in need)
        return len(issued) - 1 - last

    npre = 0
    if 'pre' in P:
        npre = P['pre'](a, dict(R=R, V_L15=V_L15, V_G=V_G, V_T=V_T))
        issued.extend([('P', 0)] * npre)
    a("s_mov_b32 s%d, 0" % S_KX)
    a("s_mov_b32 s%d, 0" % S_KW)
    a("s_mov_b32 s%d, 0" % S_WRX)
    a("s_mov_b32 s%d, 0" % S_WRW)
    order = sorted([(t * kbx, 0, 'X', t) for t in range(NSX - 1)] + [(t * kbw, 1, 'W', t) for t in range(NSW - 1)])
    for (_, _, op, t) in order:
        for g in (dma_x() if op == 'X' else dma_w()):
            for x in g:
                a(x)
        sim_issue(op, t)
        if op == 'X':
            a("s_add_u32 s%d, s%d, %d" % (S_WRX, S_WRX, XB))
        else:
            a("s_add_u32 s%d, s%d, %d" % (S_WRW, S_WRW, WB))
    P['srds'](a)
    if kbx == 2:
        a("v_and_b32 v%d, 7, v0" % t0)
        a("v_xor_b32 v%d, v%d, v%d" % (t0, t0, V_G))
        a("v_lshlrev_b32 v%d, 4, v%d" % (t0, t0))
        a("v_lshl_add_u32 v%d, v%d, 7, v%d" % (t0, V_L15, t0))
        wave_affine(a, S_T0, [c * 128 for c in R['row_coef']], S_T0 + 1)
        a("v_add_u32 v%d, s%d, v%d" % (V_XAB[0], S_T0, t0))
        a("v_xor_b32 v%d, 64, v%d" % (V_XAB[1], V_XAB[0]))
        xmstride = 2048
    else:
        a("v_bfe_u32 v%d, v0, 2, 1" % t2)
        a("v_bfe_u32 v%d, v0, 3, 1" % t3)
        a("v_xor_b32 v%d, v%d, v%d" % (t2, t2, t3))
        a("v_lshl_or_b32 v%d, v%d, 1, v%d" % (t2, t2, t3))
        a("v_xor_b32 v%d, v%d, v%d" % (t0, t2, V_G))
        a("v_lshlrev_b32 v%d, 4, v%d" % (t0, t0))
        a("v_lshl_add_u32 v%d, v%d, 6, v%d" % (t0, V_L15, t0))
        wave_affine(a, S_T0, [c * 64 for c in R['row_coef']], S_T0 + 1)
        a("v_add_u32 v%d, s%d, v%d" % (V_XAB[0], S_T0, t0))
        xmstride = 1024
    done = {}
    for wi, (typ, xc) in enumerate(wad):
        if typ in done:
            a("v_xor_b32 v%d, %d, v%d" % (V_WAB[wi], xc, V_WAB[done[typ]]))
            continue
        done[typ] = wi
        assert xc == 0
        if typ == 'A':
            a("s_mov_b32 s%d, %d" % (S_T0, P['kostrideA']))
            a("v_mul_lo_u32 v%d, v%d, s%d" % (t0, V_G, S_T0))
            a("v_lshrrev_b32 v%d, 2, v%d" % (t2, V_L15))
            a("v_lshl_add_u32 v%d, v%d, 7, v%d" % (t0, t2, t0))
            a("v_bfe_u32 v%d, v0, 3, 2" % t1)
            wave_affine(a, S_T0, R['t_coefA'], S_T0 + 1)
            a("v_xor_b32 v%d, s%d, v%d" % (t1, S_T0, t1))
            a("v_lshl_add_u32 v%d, v%d, 5, v%d" % (t0, t1, t0))
        else:
            a("v_lshrrev_b32 v%d, 1, v%d" % (t0, V_G))
            a("s_mov_b32 s%d, %d" % (S_T0, P['k16strideB']))
            a("v_mul_lo_u32 v%d, v%d, s%d" % (t0, t0, S_T0))
            a("v_and_b32 v%d, 1, v%d" % (t1, V_G))
            a("v_lshrrev_b32 v%d, 2, v%d" % (t2, V_L15))
            a("v_lshl_add_u32 v%d, v%d, 3, v%d" % (t2, t1, t2))
            a("v_lshl_add_u32 v%d, v%d, 6, v%d" % (t0, t2, t0))
            wave_affine(a, S_T0, R['t_coefB'], S_T0 + 1)
            a("v_xor_b32 v%d, s%d, v%d" % (t1, S_T0, t1))
            a("v_lshl_add_u32 v%d, v%d, 5, v%d" % (t0, t1, t0))
        a("v_bfe_u32 v%d, v0, 1, 1" % t2)
        a("v_lshl_add_u32 v%d, v%d, 4, v%d" % (t0, t2, t0))
        a("v_and_b32 v%d, 1, v0" % t2)
        a("v_lshl_add_u32 v%d, v%d, 3, v%d" % (t0, t2, t0))
        wave_affine(a, S_T0, R['wr_coef'], S_T0 + 1, base=WBASE)
        a("v_add_u32 v%d, s%d, v%d" % (V_WAB[wi], S_T0, t0))

    def reads(fs, s):
        r = []
        ksx = s % kbx
        ksw = s % kbw
        for i in range(mt):
            r.append(["ds_read_b128 a[%d:%d], v%d offset:%d" % (xf(fs, i), xf(fs, i) + 3, V_XA[ksx], i * xmstride)])
        for j, (asel, loff, sw) in enumerate(ntl):
            typ = wad[asel][0]
            for hf in range(2):
                if typ == 'A':
                    off = loff + hf * 512 + ksw * 4 * P['kostrideA']
                else:
                    off = loff + hf * 256 + ksw * 2 * P['k16strideB']
                r.append(["ds_read_b64_tr_b16 a[%d:%d], v%d offset:%d" % (wf(fs, j) + 2 * hf, wf(fs, j) + 2 * hf + 1, V_WA[asel], off)])
        return r

    def mfmas(fs, first):
        m = []
        for j, (asel, loff, sw) in enumerate(ntl):
            for i in range(mt):
                A, B = (wf(fs, j), xf(fs, i)) if sw else (xf(fs, i), wf(fs, j))
                c = acc(i, j)
                cin = "0" if first else "v[%d:%d]" % (c, c + 3)
                m.append("v_mfma_f32_16x16x32_bf16 v[%d:%d], a[%d:%d], a[%d:%d], %s" % (c, c + 3, A, A + 3, B, B + 3, cin))
        return m

    def upd_x():
        return ["v_add_u32 v%d, s%d, v%d" % (V_XA[x], S_RDX, V_XAB[x]) for x in range(nxa)]

    def upd_w():
        return ["v_add_u32 v%d, s%d, v%d" % (V_WA[x], S_RDW, V_WAB[x]) for x in range(nwa)]

    if 'pro' in P:
        P['pro'](a, dict(R=R, V_L15=V_L15, V_G=V_G, V_T=V_T, nissued=len(issued) - npre))
    a("s_mov_b32 s%d, 0" % S_RDX)
    a("s_mov_b32 s%d, 0" % S_RDW)
    for x in upd_x() + upd_w():
        a(x)
    a("s_waitcnt vmcnt(%d)" % sim_wait(0))
    a("s_barrier")
    for r in reads(0, 0):
        for x in r:
            a(x)
    for g in dma_x() + dma_w():
        for x in g:
            a(x)
    sim_issue('X', NSX - 1)
    sim_issue('W', NSW - 1)
    a("s_waitcnt lgkmcnt(0)")

    def gen_step(n):
        o = []
        fs = n & 1
        last = (n + 1 == nsteps)
        s1 = n + 1
        evx = (not last) and (s1 % kbx == 0)
        evw = (not last) and (s1 % kbw == 0)
        extras = []
        dmas = []
        if evx or evw:
            if evx:
                o += ["s_mov_b32 s%d, s%d" % (S_WRX, S_RDX),
                      "s_add_u32 s%d, s%d, %d" % (S_RDX, S_RDX, XB),
                      "s_cmp_eq_u32 s%d, %d" % (S_RDX, NSX * XB),
                      "s_cselect_b32 s%d, 0, s%d" % (S_RDX, S_RDX)] + upd_x()
            if evw:
                o += ["s_mov_b32 s%d, s%d" % (S_WRW, S_RDW),
                      "s_add_u32 s%d, s%d, %d" % (S_RDW, S_RDW, WB),
                      "s_cmp_eq_u32 s%d, %d" % (S_RDW, NSW * WB),
                      "s_cselect_b32 s%d, 0, s%d" % (S_RDW, S_RDW)] + upd_w()
            o.append("s_waitcnt vmcnt(%d)" % sim_wait(s1))
            o.append("s_barrier")
            if evw and s1 // kbw - 1 + NSW < TW:
                dmas += dma_w()
                sim_issue('W', s1 // kbw - 1 + NSW)
            if evx and s1 // kbx - 1 + NSX < TX:
                dmas += dma_x()
                sim_issue('X', s1 // kbx - 1 + NSX)
        if not last and "noread" not in EXP:
            extras += reads(fs ^ 1, s1)
        if "nodma" not in EXP:
            extras += dmas
        if n == nsteps - 4 and P.get('pf'):
            g = []
            for i, (key, nb) in enumerate(P['pf']):
                per = (nb + 256 * P['NW'] * 4096 - 1) // (256 * P['NW'] * 4096)
                g += ["s_mov_b32 s88, s%d" % (82 + 2 * i), "s_mov_b32 s89, s%d" % (83 + 2 * i),
                      "s_mov_b32 s90, 0x%x" % nb, "s_mov_b32 s91, 0x00020000",
                      "s_mul_i32 s%d, s2, %d" % (S_T0, P['NW']),
                      "s_add_u32 s%d, s%d, s%d" % (S_T0, S_T0, S_WAVE),
                      "s_mul_i32 s%d, s%d, %d" % (S_T0, S_T0, per * 4096),
                      "v_lshlrev_b32 v%d, 6, v0" % V_XO[0]]
                for j in range(per):
                    g += ["buffer_load_dword v%d, v%d, s[88:91], s%d offen" % (ACC0 - 1, V_XO[0], S_T0),
                          "s_add_u32 s%d, s%d, 4096" % (S_T0, S_T0)]
                    issued.append(('P', 0))
            extras.append(g)
        if last and 'last_extras' in P:
            extras += P['last_extras'](dict(R=R, V_L15=V_L15, V_G=V_G, V_XO=V_XO, afree=xf(fs ^ 1, 0)))
        mm = mfmas(fs, n == 0)
        if "nomfma" in EXP:
            mm = ["s_nop 0"] * 2
        nm = len(mm)
        ne = len(extras)
        span = max(1, int(nm * P.get('span', 0.85)))
        pos = [min(nm - 1, (k * span) // max(ne, 1)) for k in range(ne)]
        k = 0
        for idx, m in enumerate(mm):
            o.append(m)
            while k < ne and pos[k] == idx:
                o += extras[k]
                k += 1
        if not last:
            o.append("s_waitcnt lgkmcnt(0)")
        return o

    if "stamp" in EXP:
        a("s_memtime s[66:67]")
        a("s_memrealtime s[92:93]")
        a("s_waitcnt lgkmcnt(0)")
    codes = [gen_step(n) for n in range(nsteps)]
    bodies = [codes[n] + codes[n + 1] for n in range(0, nsteps, 2)]
    i = 0
    while i < len(bodies):
        j = i
        while j + 1 < len(bodies) and bodies[j + 1] == bodies[i]:
            j += 1
        cnt = j - i + 1
        if cnt >= 3:
            a("s_mov_b32 s%d, %d" % (S_CNT, cnt))
            loop = a.newlabel("loop")
            a.label(loop)
            for x in bodies[i]:
                a(x)
            a("s_sub_u32 s%d, s%d, 1" % (S_CNT, S_CNT))
            a("s_cmp_lg_u32 s%d, 0" % S_CNT)
            a("s_cbranch_scc1 %s" % loop)
        else:
            for b in bodies[i:j + 1]:
                for x in b:
                    a(x)
        i = j + 1
    if "stamp" in EXP:
        a("s_memtime s[68:69]")
        a("s_memrealtime s[94:95]")
        a("s_waitcnt lgkmcnt(0)")
    a("s_nop 7")
    ctx = dict(acc=acc, mt=mt, nt=nt, V_L15=V_L15, V_G=V_G, BM=BM, nacc=nacc, R=R, free=ACC0 + nacc, afree=xf(nsteps & 1, 0))
    top = P['epilogue'](a, ctx)
    if "stamp" in EXP:
        a("s_waitcnt vmcnt(0)")
        a("s_memtime s[70:71]")
        a("s_waitcnt lgkmcnt(0)")
        a("s_cmp_lg_u32 s%d, 0" % S_WAVE)
        a("s_cbranch_scc1 %s" % end)
        a("s_cmp_ge_u32 s2, 16")
        a("s_cbranch_scc1 %s" % end)
        a("s_sub_u32 s66, s66, s64")
        a("s_sub_u32 s68, s68, s64")
        a("s_sub_u32 s70, s70, s64")
        a("s_mov_b32 s76, s72")
        a("s_mov_b32 s77, s73")
        a("s_mov_b32 s78, 256")
        a("s_mov_b32 s79, 0x20000")
        a("s_sub_u32 s64, s94, s92")
        a("v_mov_b32 v4, s64")
        a("v_mov_b32 v5, s66")
        a("v_mov_b32 v6, s68")
        a("v_mov_b32 v7, s70")
        a("s_lshl_b32 s80, s2, 4")
        a("v_mov_b32 v8, s80")
        a("s_mov_b64 exec, 1")
        a("buffer_store_dwordx4 v[4:7], v8, s[76:79], 0 offen")
    return max(top or 0, ACC0 + nacc), 2 * FS


def phi_ops(a, regs, tmp):
    for r, t in zip(regs, tmp):
        a("v_min_f32 v%d, 0, v%d" % (t, r))
    for r, t in zip(regs, tmp):
        a("v_mul_f32 v%d, %s, v%d" % (t, f32hex(LOG2E), t))
    for r, t in zip(regs, tmp):
        a("v_exp_f32 v%d, v%d" % (t, t))
    for r, t in zip(regs, tmp):
        a("v_max_f32 v%d, 0, v%d" % (r, r))
    for r, t in zip(regs, tmp):
        a("v_add_f32 v%d, v%d, v%d" % (r, r, t))
    for r, t in zip(regs, tmp):
        a("v_add_f32 v%d, %s, v%d" % (r, f32hex(1e-6), r))


def round4(a, c, t0, t1):
    a("v_cvt_pk_bf16_f32 v%d, v%d, v%d" % (t0, c, c + 1))
    a("v_cvt_pk_bf16_f32 v%d, v%d, v%d" % (t1, c + 2, c + 3))
    a("v_lshlrev_b32 v%d, 16, v%d" % (c, t0))
    a("v_and_b32 v%d, 0xffff0000, v%d" % (c + 1, t0))
    a("v_lshlrev_b32 v%d, 16, v%d" % (c + 2, t1))
    a("v_and_b32 v%d, 0xffff0000, v%d" % (c + 3, t1))


def epi_gemm1(a, c):
    acc, V_L15, V_G, R = c['acc'], c['V_L15'], c['V_G'], c['R']
    F = c['free']
    TMP = 4
    wave_affine(a, S_T0, [r * 2048 for r in R['row_coef']], S_T0 + 1)
    a("s_lshl_b32 s%d, s%d, 18" % (S_T0 + 1, S_TM))
    a("s_add_u32 s%d, s%d, s%d" % (S_T0, S_T0, S_T0 + 1))
    a("s_lshl_b32 s%d, s%d, 7" % (S_T0 + 1, S_TN))
    a("s_add_u32 s%d, s%d, s%d" % (S_T0, S_T0, S_T0 + 1))
    a("s_lshl_b32 s%d, s%d, 6" % (S_T0 + 1, S_B[1]))
    a("s_add_u32 s%d, s%d, s%d" % (S_T0, S_T0, S_T0 + 1))
    a("s_add_u32 s%d, s%d, %d" % (S_T0 + 1, S_T0, 16 * 2048))
    a("v_lshlrev_b32 v8, 11, v%d" % V_L15)
    a("v_lshl_add_u32 v8, v%d, 3, v8" % V_G)
    PK, VF, ONE, KVA, ZA = F, F + 8, F + 16, F + 20, F + 36
    top = F + 44
    for i in range(2):
        for dt in range(2):
            cc = acc(i, 2 + dt)
            round4(a, cc, TMP, TMP + 1)
            phi_ops(a, [cc + r for r in range(4)], [TMP + r for r in range(4)])
            d = PK + dt * 4 + i * 2
            a("v_cvt_pk_bf16_f32 v%d, v%d, v%d" % (d, cc, cc + 1))
            a("v_cvt_pk_bf16_f32 v%d, v%d, v%d" % (d + 1, cc + 2, cc + 3))
        for et in range(2):
            cc = acc(i, 4 + et)
            d = VF + et * 4 + i * 2
            a("v_cvt_pk_bf16_f32 v%d, v%d, v%d" % (d, cc, cc + 1))
            a("v_cvt_pk_bf16_f32 v%d, v%d, v%d" % (d + 1, cc + 2, cc + 3))
    for r in range(4):
        a("v_mov_b32 v%d, 0x3f803f80" % (ONE + r))
    a("s_nop 1")
    for et in range(2):
        for dt in range(2):
            d = KVA + (et * 2 + dt) * 4
            A = VF + et * 4
            B = PK + dt * 4
            a("v_mfma_f32_16x16x32_bf16 v[%d:%d], v[%d:%d], v[%d:%d], 0" % (d, d + 3, A, A + 3, B, B + 3))
    for dt in range(2):
        d = ZA + dt * 4
        B = PK + dt * 4
        a("v_mfma_f32_16x16x32_bf16 v[%d:%d], v[%d:%d], v[%d:%d], 0" % (d, d + 3, ONE, ONE + 3, B, B + 3))
    for i in range(2):
        for j in range(2):
            cc = acc(i, j)
            round4(a, cc, TMP, TMP + 1)
            phi_ops(a, [cc + r for r in range(4)], [TMP + r for r in range(4)])
            a("v_cvt_pk_bf16_f32 v%d, v%d, v%d" % (cc, cc, cc + 1))
            a("v_cvt_pk_bf16_f32 v%d, v%d, v%d" % (cc + 1, cc + 2, cc + 3))
            a("buffer_store_dwordx2 v[%d:%d], v8, s[16:19], s%d offen offset:%d" % (cc, cc + 1, S_T0 + i, j * 32))
    a("s_barrier")
    a("s_mul_i32 s%d, s%d, 5120" % (S_T0 + 2, S_WAVE))
    a("v_lshlrev_b32 v9, 4, v0")
    a("v_add_u32 v9, s%d, v9" % (S_T0 + 2))
    for t in range(4):
        a("ds_write_b128 v9, v[%d:%d] offset:%d" % (KVA + 4 * t, KVA + 4 * t + 3, t * 1024))
    a("v_mov_b32 v%d, v%d" % (ZA + 1, ZA + 4))
    a("ds_write_b64 v9, v[%d:%d] offset:4096" % (ZA, ZA + 1))
    a("s_waitcnt lgkmcnt(0)")
    a("s_barrier")
    wave_affine(a, S_T0 + 2, [1024, 2 * 5120, 2048], S_T0 + 3)
    a("v_lshlrev_b32 v9, 4, v0")
    a("v_add_u32 v9, s%d, v9" % (S_T0 + 2))
    for k, wv in enumerate((0, 1, 4, 5)):
        a("ds_read_b128 v[%d:%d], v9 offset:%d" % (KVA + 4 * k, KVA + 4 * k + 3, wv * 5120))
    wave_affine(a, S_T0 + 3, [0, 2 * 5120, 0], S_T0 + 4, base=4096)
    a("v_lshlrev_b32 v10, 4, v0")
    a("v_add_u32 v10, s%d, v10" % (S_T0 + 3))
    for k, wv in enumerate((0, 1, 4, 5)):
        a("ds_read_b64 v[%d:%d], v10 offset:%d" % (ZA + 2 * k, ZA + 2 * k + 1, wv * 5120))
    a("s_lshl_b32 s%d, s%d, 1" % (S_T0, S_TN))
    a("s_add_u32 s%d, s%d, s%d" % (S_T0, S_T0, S_B[1]))
    a("s_lshl_b32 s%d, s%d, 12" % (S_T0 + 1, S_T0))
    wave_affine(a, S_T0 + 4, [64, 0, 2048], S_T0 + 5)
    a("s_add_u32 s%d, s%d, s%d" % (S_T0 + 1, S_T0 + 1, S_T0 + 4))
    a("s_lshl_b32 s%d, s%d, 7" % (S_T0 + 2, S_T0))
    a("s_add_u32 s%d, s%d, 131072" % (S_T0 + 2, S_T0 + 2))
    a("v_lshlrev_b32 v8, 9, v%d" % V_G)
    a("v_lshl_add_u32 v8, v%d, 2, v8" % V_L15)
    a("v_lshlrev_b32 v9, 2, v%d" % V_L15)
    a("s_waitcnt lgkmcnt(0)")
    for r in range(4):
        a("v_add_f32 v%d, v%d, v%d" % (KVA + r, KVA + r, KVA + 4 + r))
        a("v_add_f32 v%d, v%d, v%d" % (KVA + 8 + r, KVA + 8 + r, KVA + 12 + r))
    for r in range(4):
        a("v_add_f32 v%d, v%d, v%d" % (KVA + r, KVA + r, KVA + 8 + r))
    for r in range(4):
        a("buffer_atomic_add_f32 v%d, v8, s[20:23], s%d offen offset:%d" % (KVA + r, S_T0 + 1, r * 128))
    skip = a.newlabel("noz")
    a("s_or_b32 s%d, s%d, s%d" % (S_T0 + 3, S_B[0], S_B[2]))
    a("s_cmp_lg_u32 s%d, 0" % (S_T0 + 3))
    a("s_cbranch_scc1 %s" % skip)
    for r in range(2):
        a("v_add_f32 v%d, v%d, v%d" % (ZA + r, ZA + r, ZA + 2 + r))
        a("v_add_f32 v%d, v%d, v%d" % (ZA + 4 + r, ZA + 4 + r, ZA + 6 + r))
    for r in range(2):
        a("v_add_f32 v%d, v%d, v%d" % (ZA + r, ZA + r, ZA + 4 + r))
    a("s_mov_b64 exec, 0xffff")
    for dt in range(2):
        a("buffer_atomic_add_f32 v%d, v9, s[20:23], s%d offen offset:%d" % (ZA + dt, S_T0 + 2, dt * 64))
    a("s_mov_b64 exec, -1")
    a.label(skip)
    return top


def xreduce(a, v, t):
    a("v_mov_b32 v%d, v%d" % (t, v))
    a("s_nop 1")
    a("v_permlane16_swap_b32 v%d, v%d" % (v, t))
    a("s_nop 1")
    a("v_add_f32 v%d, v%d, v%d" % (v, v, t))
    a("v_mov_b32 v%d, v%d" % (t, v))
    a("s_nop 1")
    a("v_permlane32_swap_b32 v%d, v%d" % (v, t))
    a("s_nop 1")
    a("v_add_f32 v%d, v%d, v%d" % (v, v, t))


def epi_resid_stats(a, c):
    return epi_resid(a, c, True)


def epi_resid(a, c, stats=False):
    acc, V_L15, V_G, mt, nt = c['acc'], c['V_L15'], c['V_G'], c['mt'], c['nt']
    F = c['free']
    a("s_lshl_b32 s%d, s%d, 6" % (S_T0, S_TM))
    a("s_lshl_b32 s%d, s%d, 5" % (S_T0 + 1, S_B[0]))
    a("s_add_u32 s%d, s%d, s%d" % (S_T0, S_T0, S_T0 + 1))
    a("s_lshl_b32 s%d, s%d, 11" % (S_T0, S_T0))
    a("s_lshl_b32 s%d, s%d, 8" % (S_T0 + 1, S_TN))
    a("s_add_u32 s%d, s%d, s%d" % (S_T0, S_T0, S_T0 + 1))
    a("s_lshl_b32 s%d, s%d, 5" % (S_T0 + 1, S_B[1]))
    a("s_add_u32 s%d, s%d, s%d" % (S_T0, S_T0, S_T0 + 1))
    a("s_add_u32 s%d, s%d, %d" % (S_T0 + 1, S_T0, 16 * 2048))
    a("v_lshlrev_b32 v8, 11, v%d" % V_L15)
    a("v_lshl_add_u32 v8, v%d, 3, v8" % V_G)
    Rr = F
    for i in range(mt):
        for j in range(nt):
            d = Rr + (i * nt + j) * 2
            a("buffer_load_dwordx2 v[%d:%d], v8, s[20:23], s%d offen offset:%d" % (d, d + 1, S_T0 + i, j * 64))
    for i in range(mt):
        for j in range(nt):
            round4(a, acc(i, j), 4, 5)
    a("s_waitcnt vmcnt(0)")
    for i in range(mt):
        for j in range(nt):
            d = Rr + (i * nt + j) * 2
            cc = acc(i, j)
            a("v_lshlrev_b32 v4, 16, v%d" % d)
            a("v_and_b32 v5, 0xffff0000, v%d" % d)
            a("v_add_f32 v%d, v%d, v4" % (cc, cc))
            a("v_add_f32 v%d, v%d, v5" % (cc + 1, cc + 1))
            a("v_lshlrev_b32 v4, 16, v%d" % (d + 1))
            a("v_and_b32 v5, 0xffff0000, v%d" % (d + 1))
            a("v_add_f32 v%d, v%d, v4" % (cc + 2, cc + 2))
            a("v_add_f32 v%d, v%d, v5" % (cc + 3, cc + 3))
            a("v_cvt_pk_bf16_f32 v%d, v%d, v%d" % (d, cc, cc + 1))
            a("v_cvt_pk_bf16_f32 v%d, v%d, v%d" % (d + 1, cc + 2, cc + 3))
            a("buffer_store_dwordx2 v[%d:%d], v8, s[16:19], s%d offen offset:%d" % (d, d + 1, S_T0 + i, j * 64))
    if stats:
        a("s_lshl_b32 s%d, s%d, 6" % (S_T0 + 2, S_TM))
        a("s_lshl_b32 s%d, s%d, 5" % (S_T0 + 3, S_B[0]))
        a("s_add_u32 s%d, s%d, s%d" % (S_T0 + 2, S_T0 + 2, S_T0 + 3))
        a("s_lshl_b32 s%d, s%d, 7" % (S_T0 + 2, S_T0 + 2))
        a("s_lshl_b32 s%d, s%d, 4" % (S_T0 + 3, S_TN))
        a("s_add_u32 s%d, s%d, s%d" % (S_T0 + 2, S_T0 + 2, S_T0 + 3))
        a("s_lshl_b32 s%d, s%d, 3" % (S_T0 + 3, S_B[1]))
        a("s_add_u32 s%d, s%d, s%d" % (S_T0 + 2, S_T0 + 2, S_T0 + 3))
        a("v_lshlrev_b32 v9, 7, v%d" % V_L15)
        for i in range(mt):
            regs = [acc(i, j) + r for j in range(nt) for r in range(4)]
            m, q = 10 + 2 * i, 11 + 2 * i
            a("v_add_f32 v%d, v%d, v%d" % (m, regs[0], regs[1]))
            for r in regs[2:]:
                a("v_add_f32 v%d, v%d, v%d" % (m, m, r))
            xreduce(a, m, 4)
            a("v_mul_f32 v%d, %s, v%d" % (m, f32hex(1.0 / 64), m))
            a("v_sub_f32 v4, v%d, v%d" % (regs[0], m))
            a("v_mul_f32 v%d, v4, v4" % q)
            for r in regs[1:]:
                a("v_sub_f32 v4, v%d, v%d" % (r, m))
                a("v_fmac_f32 v%d, v4, v4" % q)
            xreduce(a, q, 4)
        a("s_mov_b64 exec, 0xffff")
        for i in range(mt):
            a("buffer_store_dwordx2 v[%d:%d], v9, s[24:27], s%d offen offset:%d" % (10 + 2 * i, 11 + 2 * i, S_T0 + 2, i * 2048))
        a("s_mov_b64 exec, -1")
    return F + mt * nt * 2


V_ST = 19
V_PAR = 20


def pre_gemm3(a, c):
    V_L15, V_G, t = c['V_L15'], c['V_G'], c['V_T']
    srd_from_ptr(a, 20, 4, S * 128, WS_ST)
    a("s_lshl_b32 s%d, s%d, 7" % (S_T0, S_TM))
    a("s_lshl_b32 s%d, s%d, 6" % (S_T0 + 1, S_B[0]))
    a("s_add_u32 s%d, s%d, s%d" % (S_T0, S_T0, S_T0 + 1))
    a("s_lshl_b32 s%d, s%d, 7" % (S_T0, S_T0))
    a("v_lshlrev_b32 v%d, 7, v%d" % (t, V_L15))
    a("v_lshl_add_u32 v%d, v%d, 5, v%d" % (t, V_G, t))
    a("s_add_u32 s%d, s%d, 4096" % (S_T0 + 1, S_T0))
    for i in range(4):
        so = S_T0 + (i >> 1)
        a("buffer_load_dwordx4 v[%d:%d], v%d, s[20:23], s%d offen offset:%d" % (ACC0 + 8 * i, ACC0 + 8 * i + 3, t, so, (i & 1) * 2048))
        a("buffer_load_dwordx4 v[%d:%d], v%d, s[20:23], s%d offen offset:%d" % (ACC0 + 8 * i + 4, ACC0 + 8 * i + 7, t, so, (i & 1) * 2048 + 16))
    return 8


def pro_gemm3(a, c):
    a("s_waitcnt vmcnt(%d)" % c['nissued'])
    T = ACC0 + 40
    for i in range(4):
        b = ACC0 + 8 * i
        m, q = T, T + 1
        a("v_add_f32 v%d, v%d, v%d" % (m, b, b + 2))
        a("v_add_f32 v%d, v%d, v%d" % (m, m, b + 4))
        a("v_add_f32 v%d, v%d, v%d" % (m, m, b + 6))
        xreduce(a, m, T + 2)
        a("v_mul_f32 v%d, %s, v%d" % (m, f32hex(1.0 / 16), m))
        a("v_add_f32 v%d, v%d, v%d" % (q, b + 1, b + 3))
        a("v_add_f32 v%d, v%d, v%d" % (q, q, b + 5))
        a("v_add_f32 v%d, v%d, v%d" % (q, q, b + 7))
        a("v_mov_b32 v%d, 0" % (T + 3))
        for k in range(4):
            a("v_sub_f32 v%d, v%d, v%d" % (T + 2, b + 2 * k, m))
            a("v_fmac_f32 v%d, v%d, v%d" % (T + 3, T + 2, T + 2))
        a("v_fmac_f32 v%d, %s, v%d" % (q, f32hex(64.0), T + 3))
        xreduce(a, q, T + 2)
        a("v_mul_f32 v%d, %s, v%d" % (q, f32hex(1.0 / D), q))
        a("v_cvt_pk_bf16_f32 v%d, v%d, v%d" % (T + 2, m, q))
        a("v_lshlrev_b32 v%d, 16, v%d" % (m, T + 2))
        a("v_and_b32 v%d, 0xffff0000, v%d" % (q, T + 2))
        a("v_add_f32 v%d, %s, v%d" % (q, f32hex(1e-5), q))
        a("v_cvt_pk_bf16_f32 v%d, v%d, v%d" % (T + 2, q, q))
        a("v_lshlrev_b32 v%d, 16, v%d" % (q, T + 2))
        a("v_sqrt_f32 v%d, v%d" % (q, q))
        a("s_nop 0")
        a("v_cvt_pk_bf16_f32 v%d, v%d, v%d" % (T + 2, q, q))
        a("v_lshlrev_b32 v%d, 16, v%d" % (q, T + 2))
        a("v_rcp_f32 v%d, v%d" % (V_PAR + 2 * i, q))
        a("s_nop 0")
        a("v_mul_f32 v%d, v%d, v%d" % (V_PAR + 2 * i + 1, m, V_PAR + 2 * i))
        a("v_sub_f32 v%d, 0, v%d" % (V_PAR + 2 * i + 1, V_PAR + 2 * i + 1))


def last_gemm3(c):
    R, V_G, VX, af = c['R'], c['V_G'], c['V_XO'], c['afree']
    ocol = R['ocol']
    g = ["s_add_u32 s88, s4, 0x%x" % WS_CS, "s_addc_u32 s89, s5, 0", "s_mov_b32 s90, %d" % (2 * DF * 4), "s_mov_b32 s91, 0x00020000",
         "s_mul_i32 s%d, s%d, 896" % (S_T0, S_TN),
         "s_lshl_b32 s%d, s%d, 6" % (S_T0 + 1, S_B[1]),
         "s_add_u32 s%d, s%d, s%d" % (S_T0, S_T0, S_T0 + 1),
         "s_and_b32 s%d, s%d, 1" % (S_T0 + 1, S_TN),
         "s_cmp_lg_u32 s%d, 0" % (S_T0 + 1),
         "s_cselect_b32 s%d, 0, 768" % (S_T0 + 2),
         "s_cselect_b32 s%d, 128, 0" % (S_T0 + 1),
         "s_add_u32 s%d, s%d, s%d" % (S_T0 + 2, S_T0 + 2, S_T0),
         "s_add_u32 s%d, s%d, s%d" % (S_T0 + 1, S_T0 + 1, S_T0),
         "s_add_u32 s%d, s%d, %d" % (S_T0 + 3, S_T0 + 1, DF * 4),
         "s_add_u32 s%d, s%d, %d" % (S_T0 + 4, S_T0 + 2, DF * 4),
         "v_lshlrev_b32 v%d, 4, v%d" % (VX[0], V_G)]
    np_ = len(ocol)
    for m in range(2):
        for j, (typ, off) in enumerate(ocol):
            so = (S_T0 + 1 if typ == 'A' else S_T0 + 2) + 2 * m
            d = af + (m * np_ + j) * 4
            g.append("buffer_load_dwordx4 a[%d:%d], v%d, s[88:91], s%d offen offset:%d" % (d, d + 3, VX[0], so, off * 2))
    return [g]


def epi_gemm3(a, c):
    acc, V_L15, V_G, R = c['acc'], c['V_L15'], c['V_G'], c['R']
    npair = c['nt'] // 2
    ocol = R['ocol']
    ldo = DF * 2
    a("s_lshl_b32 s%d, s%d, 7" % (S_T0, S_TM))
    a("s_lshl_b32 s%d, s%d, 6" % (S_T0 + 1, S_B[0]))
    a("s_add_u32 s%d, s%d, s%d" % (S_T0, S_T0, S_T0 + 1))
    a("s_mul_i32 s%d, s%d, %d" % (S_T0, S_T0, ldo))
    a("s_mul_i32 s%d, s%d, 448" % (S_T0 + 1, S_TN))
    a("s_add_u32 s%d, s%d, s%d" % (S_T0, S_T0, S_T0 + 1))
    a("s_lshl_b32 s%d, s%d, 5" % (S_T0 + 1, S_B[1]))
    a("s_add_u32 s%d, s%d, s%d" % (S_T0, S_T0, S_T0 + 1))
    for i in range(1, 4):
        a("s_add_u32 s%d, s%d, %d" % (S_T0 + i, S_T0, i * 16 * ldo))
    a("s_mov_b32 s%d, %d" % (S_T0 + 4, ldo))
    VA = 3
    a("v_mul_lo_u32 v%d, v%d, s%d" % (VA, V_L15, S_T0 + 4))
    a("v_lshl_add_u32 v%d, v%d, 3, v%d" % (VA, V_G, VA))
    a("s_and_b32 s%d, s%d, 1" % (S_T0 + 5, S_TN))
    a("s_cmp_lg_u32 s%d, 0" % (S_T0 + 5))
    a("s_cselect_b32 s%d, 0, 384" % (S_T0 + 6))
    a("s_cselect_b32 s%d, 64, 0" % (S_T0 + 5))
    a("v_add_u32 v10, s%d, v%d" % (S_T0 + 6, VA))
    a("v_add_u32 v%d, s%d, v%d" % (VA, S_T0 + 5, VA))
    c1 = -2.0 * LOG2E * 0.7978845608028654
    c2 = c1 * 0.044715
    a("s_mov_b32 s%d, %s" % (S_T0 + 8, f32hex(c2)))
    a("s_mov_b32 s%d, %s" % (S_T0 + 9, f32hex(c2)))
    a("v_mov_b32 v4, %s" % f32hex(c1))
    a("v_mov_b32 v5, %s" % f32hex(c1))
    T0 = 6
    af = c['afree']
    a("s_waitcnt vmcnt(0)")
    for j in range(npair):
        for m in range(2):
            for r in range(4):
                a("v_accvgpr_read_b32 v%d, a%d" % (12 + r, af + (m * npair + j) * 4 + r))
            for i in range(4):
                cc = acc(i, m * npair + j)
                pr = V_PAR + 2 * i
                for h in range(2):
                    a("v_pk_mul_f32 v[%d:%d], v[%d:%d], v[%d:%d] op_sel:[0,1] op_sel_hi:[1,1]" % (16, 17, 12 + 2 * h, 13 + 2 * h, pr, pr + 1))
                    a("v_pk_fma_f32 v[%d:%d], v[%d:%d], v[%d:%d], v[16:17] op_sel:[0,0,0] op_sel_hi:[1,0,1]" % (cc + 2 * h, cc + 2 * h + 1, cc + 2 * h, cc + 2 * h + 1, pr, pr + 1))
    for i in range(4):
        for j in range(npair):
            g = acc(i, j)
            u = acc(i, npair + j)
            for h in range(2):
                gg = g + 2 * h
                tt = T0 + 2 * h
                a("v_pk_mul_f32 v[%d:%d], v[%d:%d], v[%d:%d]" % (tt, tt + 1, gg, gg + 1, gg, gg + 1))
            for h in range(2):
                tt = T0 + 2 * h
                a("v_pk_fma_f32 v[%d:%d], v[%d:%d], s[%d:%d], v[4:5]" % (tt, tt + 1, tt, tt + 1, S_T0 + 8, S_T0 + 9))
            for h in range(2):
                gg = g + 2 * h
                tt = T0 + 2 * h
                a("v_pk_mul_f32 v[%d:%d], v[%d:%d], v[%d:%d]" % (tt, tt + 1, tt, tt + 1, gg, gg + 1))
            for r in range(4):
                a("v_exp_f32 v%d, v%d" % (T0 + r, T0 + r))
            for h in range(2):
                gg = g + 2 * h
                uu = u + 2 * h
                a("v_pk_mul_f32 v[%d:%d], v[%d:%d], v[%d:%d]" % (gg, gg + 1, gg, gg + 1, uu, uu + 1))
            for r in range(4):
                a("v_add_f32 v%d, 1.0, v%d" % (T0 + r, T0 + r))
            for r in range(4):
                a("v_rcp_f32 v%d, v%d" % (T0 + r, T0 + r))
            a("s_nop 0")
            for h in range(2):
                gg = g + 2 * h
                tt = T0 + 2 * h
                a("v_pk_mul_f32 v[%d:%d], v[%d:%d], v[%d:%d]" % (gg, gg + 1, gg, gg + 1, tt, tt + 1))
            a("v_cvt_pk_bf16_f32 v%d, v%d, v%d" % (g, g, g + 1))
            a("v_cvt_pk_bf16_f32 v%d, v%d, v%d" % (g + 1, g + 2, g + 3))
            a("buffer_store_dwordx2 v[%d:%d], v%d, s[16:19], s%d offen offset:%d" % (g, g + 1, VA if ocol[j][0] == 'A' else 10, S_T0 + i, ocol[j][1]))
    return 0


def build():
    a = Asm()
    descs = []
    launches = []

    if "pf" in EXP:
        descs.append(prefetch_kernel(a, "pf_kernel"))
        launches.append(("pf_kernel", 1024, 256, 0))
    descs.append(ln_kernel(a, "ln1_kernel", ('arg', 'x'), WS_XN, True))
    launches.append(("ln1_kernel", S // 4, 256, 0))

    ldw = 3 * D * 2

    def srds1(a):
        srd_from_ptr(a, 16, 4, S * D * 2, WS_PQ)
        srd_from_ptr(a, 20, 4, 135168, WS_KV)
    R1 = dict(nxp=2, xp_coef=[2, 4, 8], mt=2,
              waddr=[('A', 0), ('A', 32)], t_coefA=[0, 2, 0],
              ntiles=[(0, 0, True), (1, 0, True), (0, 1024, False), (1, 1024, False), (0, 2048, False), (1, 2048, False)],
              w_slot=[('A', i * 2048, i * 1024, 0) for i in range(3)], ko_par=0,
              wg_coefA=[8 * ldw, 16 * ldw, 32 * ldw], wl_coefA=[3 * 1024, 6 * 1024, 12 * 1024],
              row_coef=[32, 0, 64], wr_coef=[0, 0, 0])
    P1 = dict(name="gemm1_kernel", NW=8, BM=128, kbx=2, kbw=2, NSX=4, NSW=4, WB=24576, kostrideA=3072,
              K=D, ldx=D * 2, ldw=ldw, x_ws=WS_XN,
              w=['wqkv'], pf=[('wg', D * DF * 2), ('wu', D * DF * 2)], mblk_bits=1, srds=srds1, tn_bytes=128, epilogue=epi_gemm1, roles=[R1])
    descs.append(gemm_kernel(a, P1))
    launches.append(("gemm1_kernel", 256, 512, 4 * 16384 + 4 * 24576))

    descs.append(apply_kernel(a, "apply_kernel"))
    launches.append(("apply_kernel", 256 + 112, 256, 9216))

    def srds2(a):
        srd_from_ptr(a, 16, 4, S * D * 2, WS_H)
        srd_from_ptr(a, 20, 62, S * D * 2)
        srd_from_ptr(a, 24, 4, S * 128, WS_ST)
    ldw = D * 2
    R2 = dict(nxp=2, xp_coef=[2, 4, 0], mt=2,
              waddr=[('A', 0), ('A', 64)], t_coefA=[0, 1, 0],
              ntiles=[(0, 0, True), (1, 0, True), (0, 1024, True), (1, 1024, True)],
              w_slot=[('A', (i >> 1) * 8 * ldw + (i & 1) * 128, i * 1024, i >> 1) for i in range(4)], ko_par=None,
              wg_coefA=[16 * ldw, 32 * ldw, 0], wl_coefA=[4 * 1024, 8 * 1024, 0],
              row_coef=[32, 0, 0], wr_coef=[0, 0, 0])
    NS2 = 6
    P2 = dict(name="gemm2_kernel", NW=4, BM=64, kbx=2, kbw=2, NSX=NS2, NSW=NS2, WB=16384, kostrideA=2048,
              K=D, ldx=D * 2, ldw=ldw, x_ws=WS_O,
              w=['wo'], pf=[('wd', D * DF * 2)], argptrs=[(62, 'x')], mblk_bits=2, srds=srds2, tn_bytes=256, epilogue=epi_resid_stats, roles=[R2])
    descs.append(gemm_kernel(a, P2))
    launches.append(("gemm2_kernel", 256, 256, NS2 * (8192 + 16384)))


    def srds3(a):
        srd_from_ptr(a, 16, 4, S * DF * 2, WS_HH)
    ldw = DF * 2
    KB = 1024
    R3a = dict(nxp=2, xp_coef=[2, 4, 8], mt=4,
               waddr=[('A', 0), ('A', 64)], t_coefA=[0, 1, 0],
               ntiles=[(a_, o_ + m_ * 14 * KB, True) for m_ in range(2) for (a_, o_) in ((0, 0), (1, 0), (0, KB), (1, KB))],
               w_slot=[('A', i * 128, i * KB, 0) for i in range(3)], ko_par=0,
               wg_coefA=[8 * ldw, 0, 0], wl_coefA=[3 * KB, 14 * KB, 0],
               row_coef=[64, 0, 0], wr_coef=[0, 0, 0],
               ocol=[('A', 0), ('A', 64), ('A', 128), ('A', 192)])
    R3b = dict(nxp=2, xp_coef=[2, 4, 8], mt=4,
               waddr=[('A', 0), ('A', 64), ('B', 0)], t_coefA=[0, 1, 0], t_coefB=[0, 1, 0],
               ntiles=[(a_, o_ + m_ * 14 * KB, True) for m_ in range(2) for (a_, o_) in ((0, 2 * KB), (1, 2 * KB), (2, 12 * KB))],
               w_slot=[('A', 16 * ldw + i * 128, 6 * KB + i * KB, 0) for i in range(3)] + [('B', 0, 12 * KB)], ko_par=0,
               wg_coefA=[8 * ldw, 0, 0], wl_coefA=[3 * KB, 14 * KB, 0],
               wg_coefB=[16 * ldw, 0, 0], wl_coefB=[KB, 14 * KB, 0],
               row_coef=[64, 0, 0], wr_coef=[0, 0, 0],
               ocol=[('A', 256), ('A', 320), ('B', 0)])
    P3 = dict(name="gemm3_kernel", NW=8, BM=128, kbx=2, kbw=1, NSX=3, NSW=4, WB=28 * KB, kostrideA=3 * KB, k16strideB=KB,
              par_offA=(0, 64), par_offB=(384, 0),
              K=D, ldx=D * 2, ldw=ldw, x_ws=WS_H,
              w=['wg', 'wu'], pre=pre_gemm3, pro=pro_gemm3, last_extras=last_gemm3, wsel_bit=1, mblk_bits=1, srds=srds3, tn_bytes=448, epilogue=epi_gemm3,
              roles=[R3a, R3b])
    descs.append(gemm_kernel(a, P3))
    launches.append(("gemm3_kernel", 256, 512, 3 * 16384 + 4 * 28 * KB))

    def srds4(a):
        srd_from_ptr(a, 16, 62, S * D * 2)
        srd_from_ptr(a, 20, 4, S * D * 2, WS_H)
    ldw = D * 2
    P4 = dict(P2)
    P4.update(name="gemm4_kernel", K=DF, ldx=DF * 2, x_ws=WS_HH, w=['wd'], pf=[], argptrs=[(62, 'out')], srds=srds4, epilogue=epi_resid)
    descs.append(gemm_kernel(a, P4))
    launches.append(("gemm4_kernel", 256, 256, NS2 * (8192 + 16384)))

    hdr = ["; pre-LN linear attention block + GEGLU FFN, hand-written gfx950 kernels (generated by gen/gen.py)"]
    for (k, g, b, l) in launches:
        hdr.append("; @launch kernel=%s grid=(%d,1,1) block=(%d,1,1) lds=%d" % (k, g, b, l))
    hdr.append('.amdgcn_target "amdgcn-amd-amdhsa--gfx950"')
    hdr.append(".text")
    txt = "\n".join(hdr) + "\n" + "\n".join(a.lines) + "\n" + '.section .rodata,"a"\n' + "".join(descs)
    return txt


if __name__ == "__main__":
    out = sys.argv[1] if len(sys.argv) > 1 else OUT
    open(out, "w").write(build())
    print("wrote", out)
```

```python
import sys, os
EXP = os.environ.get("EXP", "").split(",")

OUT = "sequential_preLN__linear_attn_block__glu_gated_geglu__prompt.s"

S, D, DF = 2048, 1024, 3584
MB = 1 << 20
WS_XN = 0
WS_PQ = 4 * MB
WS_KV = 8 * MB
WS_Z = WS_KV + 131072
WS_CS = WS_KV + 0x30000
WS_ST = WS_KV + 0x40000
WS_O = 9 * MB
WS_H = 13 * MB
WS_HN = 17 * MB
WS_HH = 21 * MB
WS_SLAB = 40 * MB
KA = dict(x=0, wqkv=8, wo=16, bx=24, wg=32, wu=40, wd=48, out=56, dbg=64, ws=72)

LOG2E = 1.4426950408889634


def f32hex(x):
    import struct
    return "0x%08x" % struct.unpack("<I", struct.pack("<f", x))[0]


class Asm:
    def __init__(self):
        self.lines = []
        self.uid = 0

    def __call__(self, s):
        if "offset:" in s:
            off = int(s.split("offset:")[1].split()[0])
            assert off < (4096 if s.startswith("buffer_") else 65536), s
        self.lines.append("    " + s)

    def label(self, s):
        self.lines.append(s + ":")

    def raw(self, s):
        self.lines.append(s)

    def newlabel(self, p):
        self.uid += 1
        return "L_%s_%d" % (p, self.uid)


def kernel_header(a, name):
    a.raw(".globl %s" % name)
    a.raw(".p2align 8")
    a.raw(".type %s,@function" % name)
    a.label(name)


def kernel_desc(name, nvgpr, accum, nsgpr=102):
    return """.p2align 6
.amdhsa_kernel %s
  .amdhsa_next_free_vgpr %d
  .amdhsa_next_free_sgpr %d
  .amdhsa_accum_offset %d
  .amdhsa_group_segment_fixed_size 0
  .amdhsa_kernarg_size 80
  .amdhsa_user_sgpr_count 2
  .amdhsa_user_sgpr_kernarg_segment_ptr 1
  .amdhsa_system_sgpr_workgroup_id_x 1
.end_amdhsa_kernel
""" % (name, nvgpr, nsgpr, accum)


def srd_from_ptr(a, d, p, nbytes, off=0):
    if off:
        a("s_add_u32 s%d, s%d, 0x%x" % (d, p, off))
        a("s_addc_u32 s%d, s%d, 0" % (d + 1, p + 1))
    else:
        a("s_mov_b32 s%d, s%d" % (d, p))
        a("s_mov_b32 s%d, s%d" % (d + 1, p + 1))
    a("s_mov_b32 s%d, 0x%x" % (d + 2, nbytes))
    a("s_mov_b32 s%d, 0x00020000" % (d + 3))


def rt_begin(a):
    if "rt" in EXP:
        a("s_memrealtime s[64:65]")


def rt_end(a, idx):
    if "rt" not in EXP:
        return
    a("s_waitcnt vmcnt(0)")
    a("s_memrealtime s[70:71]")
    a("s_waitcnt lgkmcnt(0)")
    srd_from_ptr(a, 76, 4, 65536, 64 * MB + idx * 65536)
    a("v_mov_b32 v4, s64")
    a("v_mov_b32 v5, s64")
    a("v_mov_b32 v6, s70")
    a("v_mov_b32 v7, s70")
    a("s_lshl_b32 s80, s2, 4")
    a("v_mov_b32 v8, s80")
    a("s_mov_b64 exec, 1")
    a("buffer_store_dwordx4 v[4:7], v8, s[76:79], 0 offen")

def ln_kernel(a, name, src, dst, zero_kv):
    kernel_header(a, name)
    end = a.newlabel("end")
    cs = a.newlabel("cs")
    a("s_cmp_ge_u32 s2, %d" % (S // 4))
    a("s_cbranch_scc1 %s" % end)
    rt_begin(a)
    a("s_load_dwordx2 s[4:5], s[0:1], %d" % KA['ws'])
    if src[0] == 'arg':
        a("s_load_dwordx2 s[6:7], s[0:1], %d" % KA[src[1]])
    a("v_lshrrev_b32 v1, 6, v0")
    a("v_and_b32 v2, 63, v0")
    a("s_lshl_b32 s3, s2, 2")
    a("v_add_u32 v1, s3, v1")
    a("v_lshlrev_b32 v1, 11, v1")
    a("v_lshl_add_u32 v1, v2, 4, v1")
    a("s_waitcnt lgkmcnt(0)")
    if src[0] == 'arg':
        srd_from_ptr(a, 8, 6, S * D * 2)
    else:
        srd_from_ptr(a, 8, 4, S * D * 2, src[1])
    srd_from_ptr(a, 12, 4, S * D * 2, dst)
    a("buffer_load_dwordx4 v[4:7], v1, s[8:11], 0 offen")
    a("buffer_load_dwordx4 v[8:11], v1, s[8:11], 0 offen offset:1024")
    npf = 0
    if zero_kv:
        a("s_load_dwordx4 s[40:43], s[0:1], %d" % KA['wqkv'])
        a("v_lshlrev_b32 v3, 6, v0")
        a("s_lshl_b32 s3, s2, 14")
        a("v_add_u32 v3, s3, v3")
        a("s_waitcnt lgkmcnt(0)")
        srd_from_ptr(a, 52, 40, D * 3 * D * 2)
        srd_from_ptr(a, 56, 42, D * D * 2)
        a("buffer_load_dword v40, v3, s[52:55], 0 offen")
        a("v_subrev_u32 v3, 0x%x, v3" % (D * 3 * D * 2))
        a("buffer_load_dword v41, v3, s[56:59], 0 offen")
        npf = 2
        if "nocodepf" not in EXP:
            sk = a.newlabel("ncp")
            a("s_cmp_ge_u32 s2, 16")
            a("s_cbranch_scc1 %s" % sk)
            a("s_getpc_b64 s[60:61]")
            a("v_lshlrev_b32 v42, 6, v0")
            for j in range(4):
                a("global_load_dword v43, v42, s[60:61]")
                a("v_add_u32 v42, 0x3400, v42")
            a("s_waitcnt vmcnt(0)")
            a.label(sk)
    if zero_kv:
        skip = a.newlabel("nz")
        a("s_cmp_ge_u32 s2, 55")
        a("s_cbranch_scc1 %s" % skip)
        srd_from_ptr(a, 16, 4, 0x37000, WS_KV)
        a("s_lshl_b32 s3, s2, 12")
        a("v_lshlrev_b32 v3, 4, v0")
        a("v_add_u32 v3, s3, v3")
        a("v_mov_b32 v12, 0")
        a("v_mov_b32 v13, 0")
        a("v_mov_b32 v14, 0")
        a("v_mov_b32 v15, 0")
        a("buffer_store_dwordx4 v[12:15], v3, s[16:19], 0 offen")
        a.label(skip)
    a("s_waitcnt vmcnt(%d)" % (npf + (1 if zero_kv else 0)) if False else "s_waitcnt vmcnt(%d)" % npf)
    for i in range(8):
        a("v_lshlrev_b32 v%d, 16, v%d" % (16 + 2 * i, 4 + i))
        a("v_and_b32 v%d, 0xffff0000, v%d" % (17 + 2 * i, 4 + i))

    def reduce(v, t):
        a("s_nop 1")
        a("v_add_f32_dpp %s, %s, %s quad_perm:[1,0,3,2] row_mask:0xf bank_mask:0xf" % (t, v, v))
        a("s_nop 1")
        a("v_add_f32_dpp %s, %s, %s quad_perm:[2,3,0,1] row_mask:0xf bank_mask:0xf" % (v, t, t))
        a("s_nop 1")
        a("v_add_f32_dpp %s, %s, %s row_half_mirror row_mask:0xf bank_mask:0xf" % (t, v, v))
        a("s_nop 1")
        a("v_add_f32_dpp %s, %s, %s row_mirror row_mask:0xf bank_mask:0xf" % (v, t, t))
        a("s_nop 1")
        a("v_readlane_b32 s20, %s, 0" % v)
        a("v_readlane_b32 s21, %s, 16" % v)
        a("v_readlane_b32 s22, %s, 32" % v)
        a("v_readlane_b32 s23, %s, 48" % v)
        a("s_nop 1")
        a("v_mov_b32 %s, s20" % v)
        a("v_add_f32 %s, s21, %s" % (v, v))
        a("v_add_f32 %s, s22, %s" % (v, v))
        a("v_add_f32 %s, s23, %s" % (v, v))

    a("v_add_f32 v32, v16, v17")
    for i in range(2, 16):
        a("v_add_f32 v32, v32, v%d" % (16 + i))
    reduce("v32", "v33")
    a("v_mul_f32 v32, %s, v32" % f32hex(1.0 / D))
    a("v_sub_f32 v34, v16, v32")
    a("v_mul_f32 v35, v34, v34")
    for i in range(1, 16):
        a("v_sub_f32 v34, v%d, v32" % (16 + i))
        a("v_fmac_f32 v35, v34, v34")
    reduce("v35", "v33")
    a("v_mul_f32 v35, %s, v35" % f32hex(1.0 / D))
    a("v_cvt_pk_bf16_f32 v36, v32, v35")
    a("v_lshlrev_b32 v32, 16, v36")
    a("v_and_b32 v35, 0xffff0000, v36")
    a("v_add_f32 v35, %s, v35" % f32hex(1e-5))
    a("v_cvt_pk_bf16_f32 v36, v35, v35")
    a("v_lshlrev_b32 v35, 16, v36")
    a("v_sqrt_f32 v35, v35")
    a("s_nop 0")
    a("v_cvt_pk_bf16_f32 v36, v35, v35")
    a("v_lshlrev_b32 v35, 16, v36")
    a("v_rcp_f32 v35, v35")
    for i in range(16):
        a("v_sub_f32 v%d, v%d, v32" % (16 + i, 16 + i))
    for i in range(8):
        a("v_cvt_pk_bf16_f32 v%d, v%d, v%d" % (4 + i, 16 + 2 * i, 17 + 2 * i))
    for i in range(8):
        a("v_lshlrev_b32 v%d, 16, v%d" % (16 + 2 * i, 4 + i))
        a("v_and_b32 v%d, 0xffff0000, v%d" % (17 + 2 * i, 4 + i))
    for i in range(16):
        a("v_mul_f32 v%d, v%d, v35" % (16 + i, 16 + i))
    for i in range(8):
        a("v_cvt_pk_bf16_f32 v%d, v%d, v%d" % (4 + i, 16 + 2 * i, 17 + 2 * i))
    a("buffer_store_dwordx4 v[4:7], v1, s[12:15], 0 offen")
    a("buffer_store_dwordx4 v[8:11], v1, s[12:15], 0 offen offset:1024")
    rt_end(a, 4)
    a.label(end)
    a("s_endpgm")
    return kernel_desc(name, 44, 44)


def prefetch_kernel(a, name):
    kernel_header(a, name)
    end = a.newlabel("end")
    a("s_cmp_ge_u32 s2, 1024")
    a("s_cbranch_scc1 %s" % end)
    for i, k in enumerate(['wqkv', 'wo', 'wg', 'wu', 'wd']):
        a("s_load_dwordx2 s[%d:%d], s[0:1], %d" % (40 + 2 * i, 41 + 2 * i, KA[k]))
    a("v_lshlrev_b32 v1, 4, v0")
    a("s_lshl_b32 s3, s2, 12")
    a("v_add_u32 v1, s3, v1")
    a("s_waitcnt lgkmcnt(0)")
    sizes = [D * 3 * D * 2, D * D * 2, D * DF * 2, D * DF * 2, DF * D * 2]
    r = 4
    for i, sz in enumerate(sizes):
        srd_from_ptr(a, 8 + 4 * i, 40 + 2 * i, sz)
        for j in range((sz + (4 << 20) - 1) // (4 << 20)):
            a("s_mov_b32 s4, %d" % (j * (4 << 20)))
            a("buffer_load_dwordx4 v[%d:%d], v1, s[%d:%d], s4 offen" % (r, r + 3, 8 + 4 * i, 11 + 4 * i))
            r += 4
    a("s_waitcnt vmcnt(0)")
    a.label(end)
    a("s_endpgm")
    return kernel_desc(name, 64, 64)

def colsum_code(a, cs, end, NB0):
    a("s_endpgm")
    a.label(cs)
    a("s_cmp_ge_u32 s2, %d" % (NB0 + 448))
    a("s_cbranch_scc1 %s" % end)
    a("s_load_dwordx2 s[4:5], s[0:1], %d" % KA['ws'])
    a("s_load_dwordx4 s[40:43], s[0:1], %d" % KA['wg'])
    a("s_sub_u32 s3, s2, %d" % (NB0))
    a("s_and_b32 s47, s3, 3")
    a("s_lshr_b32 s3, s3, 2")
    a("s_cmp_ge_u32 s3, 56")
    a("s_cselect_b32 s44, 56, 0")
    a("s_sub_u32 s45, s3, s44")
    a("v_and_b32 v1, 7, v0")
    a("v_lshrrev_b32 v2, 3, v0")
    a("s_mov_b32 s46, %d" % (DF * 2))
    a("v_mul_lo_u32 v2, v2, s46")
    a("v_lshl_add_u32 v2, v1, 4, v2")
    a("s_lshl_b32 s46, s45, 7")
    a("v_add_u32 v2, s46, v2")
    a("s_mul_i32 s46, s47, %d" % (256 * DF * 2))
    a("v_add_u32 v2, s46, v2")
    a("s_waitcnt lgkmcnt(0)")
    a("s_cmp_ge_u32 s3, 56")
    a("s_cselect_b32 s40, s42, s40")
    a("s_cselect_b32 s41, s43, s41")
    srd_from_ptr(a, 8, 40, D * DF * 2)
    srd_from_ptr(a, 12, 4, 2 * DF * 4, WS_CS)
    for j in range(8):
        a("s_mov_b32 s46, %d" % (j * 32 * DF * 2))
        a("buffer_load_dwordx4 v[%d:%d], v2, s[8:11], s46 offen" % (16 + 4 * j, 19 + 4 * j))
    for j in range(8):
        a("s_waitcnt vmcnt(%d)" % (7 - j))
        for q in range(4):
            r = 16 + 4 * j + q
            if j == 0:
                a("v_lshlrev_b32 v%d, 16, v%d" % (4 + 2 * q, r))
                a("v_and_b32 v%d, 0xffff0000, v%d" % (5 + 2 * q, r))
            else:
                a("v_lshlrev_b32 v12, 16, v%d" % r)
                a("v_and_b32 v13, 0xffff0000, v%d" % r)
                a("v_add_f32 v%d, v%d, v12" % (4 + 2 * q, 4 + 2 * q))
                a("v_add_f32 v%d, v%d, v13" % (5 + 2 * q, 5 + 2 * q))
    a("v_lshlrev_b32 v3, 5, v0")
    a("ds_write_b128 v3, v[4:7]")
    a("ds_write_b128 v3, v[8:11] offset:16")
    a("s_waitcnt lgkmcnt(0)")
    a("s_barrier")
    a("v_and_b32 v1, 63, v0")
    a("v_lshrrev_b32 v2, 6, v0")
    a("v_lshlrev_b32 v3, 2, v1")
    a("v_lshl_add_u32 v3, v2, 11, v3")
    for j in range(8):
        a("ds_read_b32 v%d, v3 offset:%d" % (4 + j, j * 256))
    a("s_waitcnt lgkmcnt(0)")
    for j in range(1, 8):
        a("v_add_f32 v4, v4, v%d" % (4 + j))
    a("v_lshlrev_b32 v3, 2, v0")
    a("ds_write_b32 v3, v4 offset:8192")
    a("s_waitcnt lgkmcnt(0)")
    a("s_barrier")
    a("v_lshlrev_b32 v3, 2, v1")
    for j in range(4):
        a("ds_read_b32 v%d, v3 offset:%d" % (4 + j, 8192 + j * 256))
    a("s_waitcnt lgkmcnt(0)")
    for j in range(1, 4):
        a("v_add_f32 v4, v4, v%d" % (4 + j))
    a("s_lshl_b32 s46, s3, 8")
    a("v_cmp_gt_u32 vcc, 64, v0")
    a("s_and_saveexec_b64 s[48:49], vcc")
    a("s_cbranch_execz %s" % end)
    a("buffer_atomic_add_f32 v4, v3, s[12:15], s46 offen")


def apply_kernel(a, name):
    kernel_header(a, name)
    end = a.newlabel("end")
    cs = a.newlabel("cs")
    a("s_cmp_ge_u32 s2, 256")
    a("s_cbranch_scc1 %s" % cs)
    rt_begin(a)
    a("s_load_dwordx2 s[4:5], s[0:1], %d" % KA['ws'])
    a("v_lshrrev_b32 v1, 6, v0")
    a("v_and_b32 v0, 63, v0")
    a("s_nop 0")
    a("v_readfirstlane_b32 s28, v1")
    a("v_and_b32 v2, 15, v0")
    a("v_lshrrev_b32 v3, 4, v0")
    a("s_and_b32 s29, s2, 7")
    a("s_lshr_b32 s30, s2, 3")
    a("s_lshl_b32 s29, s29, 2")
    a("s_add_u32 s29, s29, s28")
    a("s_waitcnt lgkmcnt(0)")
    srd_from_ptr(a, 8, 4, S * D * 2, WS_PQ)
    srd_from_ptr(a, 12, 4, 135168, WS_KV)
    srd_from_ptr(a, 16, 4, S * D * 2, WS_O)
    a("v_lshlrev_b32 v4, 7, v2")
    a("v_lshl_add_u32 v4, v3, 5, v4")
    a("s_lshl_b32 s31, s29, 12")
    a("buffer_load_dwordx4 v[8:11], v4, s[12:15], s31 offen")
    a("buffer_load_dwordx4 v[12:15], v4, s[12:15], s31 offen offset:16")
    a("buffer_load_dwordx4 v[16:19], v4, s[12:15], s31 offen offset:2048")
    a("buffer_load_dwordx4 v[20:23], v4, s[12:15], s31 offen offset:2064")
    a("v_lshlrev_b32 v5, 5, v3")
    a("s_lshl_b32 s32, s29, 7")
    a("s_add_u32 s32, s32, 131072")
    a("buffer_load_dwordx4 v[24:27], v5, s[12:15], s32 offen")
    a("buffer_load_dwordx4 v[28:31], v5, s[12:15], s32 offen offset:16")
    a("v_lshlrev_b32 v6, 11, v2")
    a("v_lshl_add_u32 v6, v3, 4, v6")
    a("s_lshl_b32 s33, s30, 17")
    a("s_lshl_b32 s34, s29, 6")
    a("s_add_u32 s33, s33, s34")
    for i in range(4):
        a("s_add_u32 s34, s33, %d" % (i * 32768))
        a("buffer_load_dwordx4 v[%d:%d], v6, s[8:11], s34 offen" % (32 + 4 * i, 35 + 4 * i))
    a("s_waitcnt vmcnt(4)")
    for j in range(4):
        a("v_cvt_pk_bf16_f32 v%d, v%d, v%d" % (48 + j, 8 + 2 * j, 9 + 2 * j))
        a("v_cvt_pk_bf16_f32 v%d, v%d, v%d" % (52 + j, 16 + 2 * j, 17 + 2 * j))
        a("v_cvt_pk_bf16_f32 v%d, v%d, v%d" % (56 + j, 24 + 2 * j, 25 + 2 * j))
    a("s_waitcnt vmcnt(0)")
    a("s_nop 1")
    for i in range(4):
        a("v_mfma_f32_16x16x32_bf16 v[%d:%d], v[48:51], v[%d:%d], 0" % (64 + 12 * i, 67 + 12 * i, 32 + 4 * i, 35 + 4 * i))
        a("v_mfma_f32_16x16x32_bf16 v[%d:%d], v[52:55], v[%d:%d], 0" % (68 + 12 * i, 71 + 12 * i, 32 + 4 * i, 35 + 4 * i))
        a("v_mfma_f32_16x16x32_bf16 v[%d:%d], v[56:59], v[%d:%d], 0" % (72 + 12 * i, 75 + 12 * i, 32 + 4 * i, 35 + 4 * i))
    a("v_lshlrev_b32 v7, 11, v2")
    a("v_lshl_add_u32 v7, v3, 3, v7")
    a("s_nop 7")
    a("s_nop 1")
    for i in range(4):
        b = 64 + 12 * i
        a("v_cvt_pk_bf16_f32 v%d, v%d, v%d" % (b + 8, b + 8, b + 8))
        a("v_lshlrev_b32 v%d, 16, v%d" % (b + 8, b + 8))
        a("v_add_f32 v%d, %s, v%d" % (b + 8, f32hex(1e-6), b + 8))
        a("v_rcp_f32 v%d, v%d" % (b + 8, b + 8))
        a("s_nop 0")
        for r in range(8):
            a("v_mul_f32 v%d, v%d, v%d" % (b + r, b + r, b + 8))
        for r in range(4):
            a("v_cvt_pk_bf16_f32 v%d, v%d, v%d" % (b + r, b + 2 * r, b + 2 * r + 1))
        a("s_add_u32 s34, s33, %d" % (i * 32768))
        a("buffer_store_dwordx2 v[%d:%d], v7, s[16:19], s34 offen" % (b, b + 1))
        a("buffer_store_dwordx2 v[%d:%d], v7, s[16:19], s34 offen offset:32" % (b + 2, b + 3))
    rt_end(a, 5)
    colsum_code(a, cs, end, 256)
    a.label(end)
    a("s_endpgm")
    return kernel_desc(name, 144, 144)


S_WAVE, S_TM, S_TN, S_CNT = 28, 29, 30, 31
S_KX, S_KW, S_RD, S_WR, S_MX, S_MW = 32, 33, 34, 35, 36, 37
S_B = [38, 39, 40]
S_T0 = 42
ACC0 = 28


def wave_affine(a, sd, coefs, tmp, base=0):
    a("s_mov_b32 s%d, %d" % (sd, base))
    for b, c in enumerate(coefs):
        if c:
            a("s_mul_i32 s%d, s%d, %d" % (tmp, S_B[b], c))
            a("s_add_u32 s%d, s%d, s%d" % (sd, sd, tmp))


def helper_colsum(a, nbar):
    a("s_waitcnt lgkmcnt(0)")
    idle = a.newlabel("hidle")
    a("s_cmp_ge_u32 s2, 224")
    a("s_cbranch_scc1 %s" % idle)
    a("s_lshr_b32 s40, s2, 1")
    a("s_and_b32 s41, s2, 1")
    a("s_cmp_ge_u32 s40, 56")
    a("s_cselect_b32 s82, s84, s82")
    a("s_cselect_b32 s83, s85, s83")
    a("s_cselect_b32 s42, 56, 0")
    a("s_sub_u32 s42, s40, s42")
    srd_from_ptr(a, 8, 82, D * DF * 2)
    srd_from_ptr(a, 12, 4, 2 * DF * 4, WS_CS)
    a("v_and_b32 v3, 7, v0")
    a("v_lshrrev_b32 v4, 3, v0")
    a("s_mov_b32 s43, %d" % (DF * 2))
    a("v_mul_lo_u32 v4, v4, s43")
    a("v_lshl_add_u32 v4, v3, 4, v4")
    a("s_lshl_b32 s43, s42, 7")
    a("s_mul_i32 s44, s41, %d" % (512 * DF * 2))
    a("s_add_u32 s43, s43, s44")
    for r in range(8):
        a("v_mov_b32 v%d, 0" % (8 + r))
    NB = 8
    bar = 0

    def issue(b):
        for j in range(8):
            a("buffer_load_dwordx4 v[%d:%d], v4, s[8:11], s43 offen" % (16 + (b & 1) * 32 + 4 * j, 19 + (b & 1) * 32 + 4 * j))
            a("s_add_u32 s43, s43, %d" % (8 * DF * 2))

    def consume(b):
        for j in range(8):
            for q in range(4):
                r = 16 + (b & 1) * 32 + 4 * j + q
                a("v_lshlrev_b32 v5, 16, v%d" % r)
                a("v_and_b32 v6, 0xffff0000, v%d" % r)
                a("v_add_f32 v%d, v%d, v5" % (8 + 2 * q, 8 + 2 * q))
                a("v_add_f32 v%d, v%d, v6" % (9 + 2 * q, 9 + 2 * q))
    issue(0)
    for b in range(NB):
        a("s_barrier"); bar += 1
        if b + 1 < NB:
            issue(b + 1)
        a("s_barrier"); bar += 1
        a("s_waitcnt vmcnt(%d)" % (8 if b + 1 < NB else 0))
        consume(b)
    for r in range(8):
        v = 8 + r
        a("s_nop 1")
        a("v_add_f32_dpp v5, v%d, v%d row_ror:8 row_mask:0xf bank_mask:0xf" % (v, v))
        a("v_mov_b32 v%d, v5" % v)
        xreduce(a, v, 5)
    a("v_lshlrev_b32 v3, 5, v0")
    a("s_lshl_b32 s43, s40, 8")
    a("s_mov_b64 exec, 0xff")
    for r in range(8):
        a("buffer_atomic_add_f32 v%d, v3, s[12:15], s43 offen offset:%d" % (8 + r, 4 * r))
    a("s_mov_b64 exec, -1")
    assert bar <= nbar
    for _ in range(nbar - bar):
        a("s_barrier")
    a("s_endpgm")
    a.label(idle)
    for _ in range(nbar):
        a("s_barrier")


def gemm_kernel(a, P):
    name = P['name']
    kernel_header(a, name)
    end = a.newlabel("end")
    a("s_cmp_ge_u32 s2, 256")
    a("s_cbranch_scc1 %s" % end)
    if "stamp" in EXP:
        a("s_memtime s[64:65]")
        a("s_load_dwordx2 s[72:73], s[0:1], %d" % KA['dbg'])
    if "rt" in EXP:
        a("s_memrealtime s[64:65]")
    a("s_load_dwordx2 s[4:5], s[0:1], %d" % KA['ws'])
    a("s_load_dwordx2 s[6:7], s[0:1], %d" % KA[P['w'][0]])
    if len(P['w']) > 1:
        a("s_load_dwordx2 s[60:61], s[0:1], %d" % KA[P['w'][1]])
    for (sd, key) in P.get('argptrs', []):
        a("s_load_dwordx2 s[%d:%d], s[0:1], %d" % (sd, sd + 1, KA[key]))
    for i, (key, nb) in enumerate(P.get('pf', []) + P.get('helper', [])):
        a("s_load_dwordx2 s[%d:%d], s[0:1], %d" % (82 + 2 * i, 83 + 2 * i, KA[key]))
    a("v_lshrrev_b32 v1, 6, v0")
    a("v_and_b32 v0, 63, v0")
    a("s_nop 0")
    a("v_readfirstlane_b32 s%d, v1" % S_WAVE)
    a("v_and_b32 v1, 15, v0")
    a("v_lshrrev_b32 v2, 4, v0")
    mblk_bits = P['mblk_bits']
    if P.get('splitk'):
        a("s_and_b32 s%d, s2, 7" % S_T0)
        a("s_lshr_b32 s%d, s2, 3" % (S_T0 + 1))
        a("s_and_b32 s99, s%d, 1" % (S_T0 + 1))
        a("s_lshr_b32 s%d, s%d, 1" % (S_T0 + 1, S_T0 + 1))
        a("s_and_b32 s%d, s%d, 3" % (S_TM, S_T0))
        a("s_lshl_b32 s%d, s%d, 2" % (S_TM, S_TM))
        a("s_and_b32 s%d, s%d, 3" % (S_T0 + 2, S_T0 + 1))
        a("s_add_u32 s%d, s%d, s%d" % (S_TM, S_TM, S_T0 + 2))
        a("s_lshr_b32 s%d, s%d, 2" % (S_TN, S_T0))
        a("s_lshl_b32 s%d, s%d, 2" % (S_TN, S_TN))
        a("s_lshr_b32 s%d, s%d, 2" % (S_T0 + 2, S_T0 + 1))
        a("s_add_u32 s%d, s%d, s%d" % (S_TN, S_TN, S_T0 + 2))
    else:
        a("s_and_b32 s%d, s2, 7" % S_T0)
        a("s_lshr_b32 s%d, s2, 3" % (S_T0 + 1))
        a("s_and_b32 s%d, s%d, %d" % (S_TM, S_T0, (1 << mblk_bits) - 1))
        a("s_lshl_b32 s%d, s%d, 3" % (S_TM, S_TM))
        a("s_and_b32 s%d, s%d, 7" % (S_T0 + 2, S_T0 + 1))
        a("s_add_u32 s%d, s%d, s%d" % (S_TM, S_TM, S_T0 + 2))
        a("s_lshr_b32 s%d, s%d, %d" % (S_TN, S_T0, mblk_bits))
        a("s_lshl_b32 s%d, s%d, 2" % (S_TN, S_TN))
        a("s_lshr_b32 s%d, s%d, 3" % (S_T0 + 2, S_T0 + 1))
        a("s_add_u32 s%d, s%d, s%d" % (S_TN, S_TN, S_T0 + 2))
    a("s_and_b32 s%d, s%d, 1" % (S_B[0], S_WAVE))
    a("s_bfe_u32 s%d, s%d, 0x10001" % (S_B[1], S_WAVE))
    a("s_lshr_b32 s%d, s%d, 2" % (S_B[2], S_WAVE))
    roles = P['roles']
    maxv = 0
    hl = None
    if P.get('helper'):
        hl = a.newlabel("helper")
        a("s_cmp_ge_u32 s%d, %d" % (S_WAVE, P['NW']))
        a("s_cbranch_scc1 %s" % hl)
    if len(roles) == 2:
        r1 = a.newlabel("role1")
        a("s_cmp_ge_u32 s%d, 4" % S_WAVE)
        a("s_cbranch_scc1 %s" % r1)
        nv0 = gemm_body(a, P, roles[0], end)
        a("s_branch %s" % end)
        a.label(r1)
        nv1 = gemm_body(a, P, roles[1], end)
        arch = max(nv0[0], nv1[0]); acc_n = max(nv0[1], nv1[1])
    else:
        arch, acc_n = gemm_body(a, P, roles[0], end)
    if hl:
        a("s_branch %s" % end)
        a.label(hl)
        helper_colsum(a, P['_nbar'])
    a.label(end)
    a("s_endpgm")
    arch = (arch + 3) // 4 * 4
    lim = 512 if P['NW'] == 4 else 256
    if hl:
        lim = 256 if P['NW'] == 4 else 168
    assert arch + acc_n <= lim, (name, arch, acc_n)
    return kernel_desc(name, arch + acc_n, arch)


S_RDX, S_WRX, S_RDW, S_WRW = 34, 35, 41, 96


def gemm_body(a, P, R, end):
    BM, K = P['BM'], P['K']
    kbx, kbw, NSX, NSW = P['kbx'], P['kbw'], P['NSX'], P['NSW']
    ldx, ldw = P['ldx'], P['ldw']
    nsteps = K // 32
    TX, TW = nsteps // kbx, nsteps // kbw
    XB = BM * kbx * 64
    WB = P['WB']
    WBASE = NSX * XB
    assert WBASE + NSW * WB <= 163840
    nxp = R['nxp']
    wsl = R['w_slot']
    nwp = len(wsl)
    mt = R['mt']
    ntl = R['ntiles']
    nt = len(ntl)
    wad = R['waddr']
    nwa = len(wad)
    V_L15, V_G = 1, 2
    v = 3
    V_XO = list(range(v, v + nxp)); v += nxp
    V_WO = list(range(v, v + nwp)); v += nwp
    nxa = kbx
    V_XAB = list(range(v, v + nxa)); v += nxa
    V_WAB = list(range(v, v + nwa)); v += nwa
    V_XA = list(range(v, v + nxa)); v += nxa
    V_WA = list(range(v, v + nwa)); v += nwa
    V_T = v; v += 4
    V_PF = V_T + 1 if 'pro' not in P else V_T
    assert v <= ACC0 - 1, v
    nacc = mt * nt * 4

    def acc(i, j):
        return ACC0 + (j * mt + i) * 4
    FS = (mt + nt) * 4

    def xf(s, i):
        return s * FS + i * 4

    def wf(s, j):
        return s * FS + mt * 4 + j * 4

    t0, t1, t2, t3 = V_T, V_T + 1, V_T + 2, V_T + 3
    rpp = 8 if kbx == 2 else 16
    if kbx == 2:
        a("v_lshrrev_b32 v%d, 3, v0" % t0)
        a("v_and_b32 v%d, 7, v0" % t1)
        a("v_xor_b32 v%d, v%d, v%d" % (t1, t1, t0))
    else:
        a("v_lshrrev_b32 v%d, 2, v0" % t0)
        a("v_bfe_u32 v%d, v0, 4, 1" % t2)
        a("v_bfe_u32 v%d, v0, 5, 1" % t3)
        a("v_xor_b32 v%d, v%d, v%d" % (t2, t2, t3))
        a("v_lshl_or_b32 v%d, v%d, 1, v%d" % (t2, t2, t3))
        a("v_and_b32 v%d, 3, v0" % t1)
        a("v_xor_b32 v%d, v%d, v%d" % (t1, t1, t2))
    if nxp:
        wave_affine(a, S_T0, [c * rpp for c in R['xp_coef']], S_T0 + 1)
        a("s_mul_i32 s%d, s%d, %d" % (S_T0 + 1, S_TM, BM))
        a("s_add_u32 s%d, s%d, s%d" % (S_T0, S_T0, S_T0 + 1))
        a("v_add_u32 v%d, s%d, v%d" % (t0, S_T0, t0))
        a("s_mov_b32 s%d, %d" % (S_T0 + 1, ldx))
        a("v_mul_lo_u32 v%d, v%d, s%d" % (t0, t0, S_T0 + 1))
        a("v_lshl_add_u32 v%d, v%d, 4, v%d" % (V_XO[0], t1, t0))
        for i in range(1, nxp):
            a("v_add_u32 v%d, 0x%x, v%d" % (V_XO[i], i * rpp * ldx, V_XO[0]))
        wave_affine(a, S_MX, [c * 1024 for c in R['xp_coef']], S_T0)
    a("s_mul_i32 s%d, s%d, %d" % (S_T0 + 2, S_TN, P['tn_bytes']))
    a("s_mov_b32 s%d, %d" % (S_T0 + 3, ldw))
    for typ in ('A', 'B'):
        sl = [i for i in range(nwp) if wsl[i][0] == typ]
        if not sl:
            continue
        if typ == 'A':
            a("v_lshrrev_b32 v%d, 3, v0" % t0)
            a("v_bfe_u32 v%d, v0, 4, 1" % t2)
            a("v_lshlrev_b32 v%d, 1, v%d" % (t2, t2))
            a("v_and_b32 v%d, 7, v0" % t1)
            a("v_xor_b32 v%d, v%d, v%d" % (t1, t1, t2))
        else:
            a("v_lshrrev_b32 v%d, 2, v0" % t0)
            a("v_lshrrev_b32 v%d, 5, v0" % t2)
            a("v_lshlrev_b32 v%d, 1, v%d" % (t2, t2))
            a("v_and_b32 v%d, 3, v0" % t1)
            a("v_xor_b32 v%d, v%d, v%d" % (t1, t1, t2))
        a("v_mul_lo_u32 v%d, v%d, s%d" % (t0, t0, S_T0 + 3))
        wave_affine(a, S_T0, R['wg_coef' + typ], S_T0 + 1)
        a("s_add_u32 s%d, s%d, s%d" % (S_T0, S_T0, S_T0 + 2))
        if 'par_off' + typ in P:
            c0, c1 = P['par_off' + typ]
            a("s_and_b32 s%d, s%d, 1" % (S_T0 + 1, S_TN))
            a("s_cmp_lg_u32 s%d, 0" % (S_T0 + 1))
            a("s_cselect_b32 s%d, %d, %d" % (S_T0 + 1, c1, c0))
            a("s_add_u32 s%d, s%d, s%d" % (S_T0, S_T0, S_T0 + 1))
        a("v_add_u32 v%d, s%d, v%d" % (t0, S_T0, t0))
        if typ == 'A':
            kp = R['ko_par']
            for i in sl:
                par_c, par_bit = wsl[i][3], kp
                if par_bit is None:
                    a("v_xor_b32 v%d, %d, v%d" % (t2, par_c * 4, t1))
                else:
                    a("s_lshl_b32 s%d, s%d, 2" % (S_T0 + 1, S_B[par_bit]))
                    a("s_xor_b32 s%d, s%d, %d" % (S_T0 + 1, S_T0 + 1, par_c * 4))
                    a("v_xor_b32 v%d, s%d, v%d" % (t2, S_T0 + 1, t1))
                a("v_lshl_add_u32 v%d, v%d, 4, v%d" % (t2, t2, t0))
                a("v_add_u32 v%d, 0x%x, v%d" % (V_WO[i], wsl[i][1], t2))
        else:
            a("v_lshl_add_u32 v%d, v%d, 4, v%d" % (t0, t1, t0))
            for i in sl:
                a("v_add_u32 v%d, 0x%x, v%d" % (V_WO[i], wsl[i][1], t0))
    S_MWA, S_MWB = S_MW, 97
    wave_affine(a, S_MWA, R['wl_coefA'], S_T0, base=WBASE)
    if any(w[0] == 'B' for w in wsl):
        wave_affine(a, S_MWB, R['wl_coefB'], S_T0, base=WBASE)
    a("s_waitcnt lgkmcnt(0)")
    srd_from_ptr(a, 8, 4, S * ldx, P['x_ws'])
    if len(P['w']) > 1:
        a("s_cmp_lg_u32 s%d, 0" % S_B[P['wsel_bit']])
        a("s_cselect_b32 s6, s60, s6")
        a("s_cselect_b32 s7, s61, s7")
    srd_from_ptr(a, 12, 6, K * ldw * P.get('splitk', 1))

    def dma_x():
        g = []
        for i in range(nxp):
            g.append(["s_add_u32 s%d, s%d, s%d" % (S_T0, S_WRX, S_MX),
                      "s_add_u32 m0, s%d, %d" % (S_T0, i * 1024),
                      "s_nop 0",
                      "buffer_load_dwordx4 v%d, s[8:11], s%d offen lds" % (V_XO[i], S_KX)])
        g.append(["s_add_u32 s%d, s%d, %d" % (S_KX, S_KX, kbx * 64)])
        return g

    def dma_w():
        g = []
        for i in range(nwp):
            g.append(["s_add_u32 s%d, s%d, s%d" % (S_T0, S_WRW, S_MWA if wsl[i][0] == 'A' else S_MWB),
                      "s_add_u32 m0, s%d, %d" % (S_T0, wsl[i][2]),
                      "s_nop 0",
                      "buffer_load_dwordx4 v%d, s[12:15], s%d offen lds" % (V_WO[i], S_KW)])
        g.append(["s_add_u32 s%d, s%d, %d" % (S_KW, S_KW, kbw * 32 * ldw)])
        return g

    issued = []

    def sim_issue(op, tile):
        for _ in range(nxp if op == 'X' else nwp):
            issued.append((op, tile))

    xst = P.get('x_static', False)
    protop = 0

    def sim_wait(s):
        need = {('X', s // kbx), ('W', s // kbw)}
        last = max(i for i, e in enumerate(issued) if e in need)
        return len(issued) - 1 - last

    npre = 0
    if 'pre' in P and 'nostat' not in EXP:
        npre = P['pre'](a, dict(R=R, V_L15=V_L15, V_G=V_G, V_T=V_T))
        issued.extend([('P', 0)] * npre)
    if P.get('splitk'):
        a("s_mul_i32 s%d, s99, %d" % (S_KX, K * 2))
        a("s_mul_i32 s%d, s99, %d" % (S_KW, K * ldw))
    else:
        a("s_mov_b32 s%d, 0" % S_KX)
        a("s_mov_b32 s%d, 0" % S_KW)
    a("s_mov_b32 s%d, 0" % S_WRX)
    a("s_mov_b32 s%d, 0" % S_WRW)
    order = sorted([(t * kbx, 0, 'X', t) for t in range(0 if xst else NSX - 1)] + [(t * kbw, 1, 'W', t) for t in range(NSW - 1)])
    for (_, _, op, t) in order:
        for g in (dma_x() if op == 'X' else dma_w()):
            for x in g:
                a(x)
        sim_issue(op, t)
        if op == 'X':
            a("s_add_u32 s%d, s%d, %d" % (S_WRX, S_WRX, XB))
        else:
            a("s_add_u32 s%d, s%d, %d" % (S_WRW, S_WRW, WB))
    P['srds'](a)
    if kbx == 2:
        a("v_and_b32 v%d, 7, v0" % t0)
        a("v_xor_b32 v%d, v%d, v%d" % (t0, t0, V_G))
        a("v_lshlrev_b32 v%d, 4, v%d" % (t0, t0))
        a("v_lshl_add_u32 v%d, v%d, 7, v%d" % (t0, V_L15, t0))
        wave_affine(a, S_T0, [c * 128 for c in R['row_coef']], S_T0 + 1)
        a("v_add_u32 v%d, s%d, v%d" % (V_XAB[0], S_T0, t0))
        a("v_xor_b32 v%d, 64, v%d" % (V_XAB[1], V_XAB[0]))
        xmstride = 2048
    else:
        a("v_bfe_u32 v%d, v0, 2, 1" % t2)
        a("v_bfe_u32 v%d, v0, 3, 1" % t3)
        a("v_xor_b32 v%d, v%d, v%d" % (t2, t2, t3))
        a("v_lshl_or_b32 v%d, v%d, 1, v%d" % (t2, t2, t3))
        a("v_xor_b32 v%d, v%d, v%d" % (t0, t2, V_G))
        a("v_lshlrev_b32 v%d, 4, v%d" % (t0, t0))
        a("v_lshl_add_u32 v%d, v%d, 6, v%d" % (t0, V_L15, t0))
        wave_affine(a, S_T0, [c * 64 for c in R['row_coef']], S_T0 + 1)
        a("v_add_u32 v%d, s%d, v%d" % (V_XAB[0], S_T0, t0))
        xmstride = 1024
    done = {}
    for wi, (typ, xc) in enumerate(wad):
        if typ in done:
            a("v_xor_b32 v%d, %d, v%d" % (V_WAB[wi], xc, V_WAB[done[typ]]))
            continue
        done[typ] = wi
        assert xc == 0
        if typ == 'A':
            a("s_mov_b32 s%d, %d" % (S_T0, P['kostrideA']))
            a("v_mul_lo_u32 v%d, v%d, s%d" % (t0, V_G, S_T0))
            a("v_lshrrev_b32 v%d, 2, v%d" % (t2, V_L15))
            a("v_lshl_add_u32 v%d, v%d, 7, v%d" % (t0, t2, t0))
            a("v_bfe_u32 v%d, v0, 3, 2" % t1)
            wave_affine(a, S_T0, R['t_coefA'], S_T0 + 1)
            a("v_xor_b32 v%d, s%d, v%d" % (t1, S_T0, t1))
            a("v_lshl_add_u32 v%d, v%d, 5, v%d" % (t0, t1, t0))
        else:
            a("v_lshrrev_b32 v%d, 1, v%d" % (t0, V_G))
            a("s_mov_b32 s%d, %d" % (S_T0, P['k16strideB']))
            a("v_mul_lo_u32 v%d, v%d, s%d" % (t0, t0, S_T0))
            a("v_and_b32 v%d, 1, v%d" % (t1, V_G))
            a("v_lshrrev_b32 v%d, 2, v%d" % (t2, V_L15))
            a("v_lshl_add_u32 v%d, v%d, 3, v%d" % (t2, t1, t2))
            a("v_lshl_add_u32 v%d, v%d, 6, v%d" % (t0, t2, t0))
            wave_affine(a, S_T0, R['t_coefB'], S_T0 + 1)
            a("v_xor_b32 v%d, s%d, v%d" % (t1, S_T0, t1))
            a("v_lshl_add_u32 v%d, v%d, 5, v%d" % (t0, t1, t0))
        a("v_bfe_u32 v%d, v0, 1, 1" % t2)
        a("v_lshl_add_u32 v%d, v%d, 4, v%d" % (t0, t2, t0))
        a("v_and_b32 v%d, 1, v0" % t2)
        a("v_lshl_add_u32 v%d, v%d, 3, v%d" % (t0, t2, t0))
        wave_affine(a, S_T0, R['wr_coef'], S_T0 + 1, base=WBASE)
        a("v_add_u32 v%d, s%d, v%d" % (V_WAB[wi], S_T0, t0))

    def reads(fs, s):
        r = []
        ksx = s % kbx
        ksw = s % kbw
        for i in range(mt):
            r.append(["ds_read_b128 a[%d:%d], v%d offset:%d" % (xf(fs, i), xf(fs, i) + 3, V_XA[ksx], i * xmstride)])
        for j, (asel, loff, sw) in enumerate(ntl):
            typ = wad[asel][0]
            for hf in range(2):
                if typ == 'A':
                    off = loff + hf * 512 + ksw * 4 * P['kostrideA']
                else:
                    off = loff + hf * 256 + ksw * 2 * P['k16strideB']
                r.append(["ds_read_b64_tr_b16 a[%d:%d], v%d offset:%d" % (wf(fs, j) + 2 * hf, wf(fs, j) + 2 * hf + 1, V_WA[asel], off)])
        return r

    def mfmas(fs, first):
        m = []
        for j, (asel, loff, sw) in enumerate(ntl):
            for i in range(mt):
                A, B = (wf(fs, j), xf(fs, i)) if sw else (xf(fs, i), wf(fs, j))
                c = acc(i, j)
                cin = "0" if first else "v[%d:%d]" % (c, c + 3)
                m.append("v_mfma_f32_16x16x32_bf16 v[%d:%d], a[%d:%d], a[%d:%d], %s" % (c, c + 3, A, A + 3, B, B + 3, cin))
        return m

    def upd_x():
        return ["v_add_u32 v%d, s%d, v%d" % (V_XA[x], S_RDX, V_XAB[x]) for x in range(nxa)]

    def upd_w():
        return ["v_add_u32 v%d, s%d, v%d" % (V_WA[x], S_RDW, V_WAB[x]) for x in range(nwa)]

    if 'pro' in P and 'nostat' not in EXP:
        protop = P['pro'](a, dict(R=R, V_L15=V_L15, V_G=V_G, V_T=V_T, nissued=len(issued) - npre)) or 0
        issued.append(('P', 0))
    a("s_mov_b32 s%d, 0" % S_RDX)
    a("s_mov_b32 s%d, 0" % S_RDW)
    for x in upd_x() + upd_w():
        a(x)
    a("s_waitcnt vmcnt(%d) lgkmcnt(0)" % sim_wait(0))
    a("s_barrier")
    for r in reads(0, 0):
        for x in r:
            a(x)
    for g in ([] if xst else dma_x()) + dma_w():
        for x in g:
            a(x)
    if not xst:
        sim_issue('X', NSX - 1)
    sim_issue('W', NSW - 1)
    a("s_waitcnt lgkmcnt(0)")

    def gen_step(n):
        o = []
        fs = n & 1
        last = (n + 1 == nsteps)
        s1 = n + 1
        evx = (not last) and (s1 % kbx == 0)
        evw = (not last) and (s1 % kbw == 0)
        extras = []
        dmas = []
        if evx or evw:
            if evx:
                o += ["s_mov_b32 s%d, s%d" % (S_WRX, S_RDX),
                      "s_add_u32 s%d, s%d, %d" % (S_RDX, S_RDX, XB),
                      "s_cmp_eq_u32 s%d, %d" % (S_RDX, NSX * XB),
                      "s_cselect_b32 s%d, 0, s%d" % (S_RDX, S_RDX)] + upd_x()
            if evw:
                o += ["s_mov_b32 s%d, s%d" % (S_WRW, S_RDW),
                      "s_add_u32 s%d, s%d, %d" % (S_RDW, S_RDW, WB),
                      "s_cmp_eq_u32 s%d, %d" % (S_RDW, NSW * WB),
                      "s_cselect_b32 s%d, 0, s%d" % (S_RDW, S_RDW)] + upd_w()
            o.append("s_waitcnt vmcnt(%d)" % sim_wait(s1))
            o.append("s_barrier")
            if evw and s1 // kbw - 1 + NSW < TW:
                dmas += dma_w()
                sim_issue('W', s1 // kbw - 1 + NSW)
            if evx and s1 // kbx - 1 + NSX < TX and not xst:
                dmas += dma_x()
                sim_issue('X', s1 // kbx - 1 + NSX)
        if not last and "noread" not in EXP:
            extras += reads(fs ^ 1, s1)
        if "nodma" not in EXP:
            extras += dmas
        if n == P.get('pf_step', nsteps - 4) and P.get('pf'):
            g = []
            for i, (key, nb) in enumerate(P['pf']):
                per = (nb + 256 * P['NW'] * 4096 - 1) // (256 * P['NW'] * 4096)
                g += ["s_mov_b32 s88, s%d" % (82 + 2 * i), "s_mov_b32 s89, s%d" % (83 + 2 * i),
                      "s_mov_b32 s90, 0x%x" % nb, "s_mov_b32 s91, 0x00020000",
                      "s_mul_i32 s98, s2, %d" % P['NW'],
                      "s_add_u32 s98, s98, s%d" % S_WAVE,
                      "s_mul_i32 s98, s98, %d" % (per * 4096),
                      "v_lshlrev_b32 v%d, 6, v0" % V_T]
                for j in range(per):
                    g += ["buffer_load_dword v%d, v%d, s[88:91], s%d offen" % (V_PF, V_T, 98),
                          "s_add_u32 s98, s98, 4096"]
                    issued.append(('P', 0))
            extras.append(g)
        if n == nsteps - 3 and 'early' in P:
            ee = P['early'](dict(R=R, V_L15=V_L15, V_G=V_G, mt=mt, nt=nt, free=ACC0 + nacc))
            extras += ee
            issued.extend([('P', 0)] * sum(1 for g in ee for x in g if x.startswith("buffer_")))
        if last and 'last_extras' in P:
            extras += P['last_extras'](dict(R=R, V_L15=V_L15, V_G=V_G, V_XO=V_XO, afree=xf(fs ^ 1, 0)))
        mm = mfmas(fs, n == 0)
        if "nomfma" in EXP:
            mm = ["s_nop 0"] * 2
        nm = len(mm)
        ne = len(extras)
        span = max(1, int(nm * P.get('span', 0.85)))
        pos = [min(nm - 1, (k * span) // max(ne, 1)) for k in range(ne)]
        k = 0
        for idx, m in enumerate(mm):
            o.append(m)
            while k < ne and pos[k] == idx:
                o += extras[k]
                k += 1
        if not last:
            o.append("s_waitcnt lgkmcnt(0)")
        return o

    if "stamp" in EXP:
        a("s_memtime s[66:67]")
        a("s_memrealtime s[92:93]")
        a("s_waitcnt lgkmcnt(0)")
    if "rt" in EXP:
        a("s_memrealtime s[66:67]")
        a("s_waitcnt lgkmcnt(0)")
    codes = [gen_step(n) for n in range(nsteps)]
    P['_nbar'] = 1 + sum(c.count("s_barrier") for c in codes) + P.get('epi_bars', 0)
    bodies = [codes[n] + codes[n + 1] for n in range(0, nsteps, 2)]
    i = 0
    while i < len(bodies):
        j = i
        while j + 1 < len(bodies) and bodies[j + 1] == bodies[i]:
            j += 1
        cnt = j - i + 1
        if cnt >= 3:
            a("s_mov_b32 s%d, %d" % (S_CNT, cnt))
            loop = a.newlabel("loop")
            a.label(loop)
            for x in bodies[i]:
                a(x)
            a("s_sub_u32 s%d, s%d, 1" % (S_CNT, S_CNT))
            a("s_cmp_lg_u32 s%d, 0" % S_CNT)
            a("s_cbranch_scc1 %s" % loop)
        else:
            for b in bodies[i:j + 1]:
                for x in b:
                    a(x)
        i = j + 1
    if "stamp" in EXP:
        a("s_memtime s[68:69]")
        a("s_memrealtime s[94:95]")
        a("s_waitcnt lgkmcnt(0)")
    if "rt" in EXP:
        a("s_memrealtime s[68:69]")
        a("s_waitcnt lgkmcnt(0)")
    a("s_nop 7")
    ctx = dict(acc=acc, mt=mt, nt=nt, V_L15=V_L15, V_G=V_G, BM=BM, nacc=nacc, R=R, free=ACC0 + nacc, afree=xf(nsteps & 1, 0))
    top = P['epilogue'](a, ctx)
    if "rt" in EXP:
        a("s_waitcnt vmcnt(0)")
        a("s_memrealtime s[70:71]")
        a("s_waitcnt lgkmcnt(0)")
        a("s_cmp_lg_u32 s%d, 0" % S_WAVE)
        a("s_cbranch_scc1 %s" % end)
        srd_from_ptr(a, 76, 4, 65536, 64 * MB + P['rtidx'] * 65536)
        a("v_mov_b32 v4, s64")
        a("v_mov_b32 v5, s66")
        a("v_mov_b32 v6, s68")
        a("v_mov_b32 v7, s70")
        a("s_lshl_b32 s80, s2, 4")
        a("v_mov_b32 v8, s80")
        a("s_mov_b64 exec, 1")
        a("buffer_store_dwordx4 v[4:7], v8, s[76:79], 0 offen")
    if "stamp" in EXP:
        a("s_waitcnt vmcnt(0)")
        a("s_memtime s[70:71]")
        a("s_waitcnt lgkmcnt(0)")
        a("s_cmp_lg_u32 s%d, 0" % S_WAVE)
        a("s_cbranch_scc1 %s" % end)
        a("s_cmp_ge_u32 s2, 16")
        a("s_cbranch_scc1 %s" % end)
        a("s_sub_u32 s66, s66, s64")
        a("s_sub_u32 s68, s68, s64")
        a("s_sub_u32 s70, s70, s64")
        a("s_mov_b32 s76, s72")
        a("s_mov_b32 s77, s73")
        a("s_mov_b32 s78, 256")
        a("s_mov_b32 s79, 0x20000")
        a("s_sub_u32 s64, s94, s92")
        a("v_mov_b32 v4, s64")
        a("v_mov_b32 v5, s66")
        a("v_mov_b32 v6, s68")
        a("v_mov_b32 v7, s70")
        a("s_lshl_b32 s80, s2, 4")
        a("v_mov_b32 v8, s80")
        a("s_mov_b64 exec, 1")
        a("buffer_store_dwordx4 v[4:7], v8, s[76:79], 0 offen")
    return max(top or 0, ACC0 + nacc, protop), 2 * FS


def phi_ops(a, regs, tmp):
    for r, t in zip(regs, tmp):
        a("v_min_f32 v%d, 0, v%d" % (t, r))
    for r, t in zip(regs, tmp):
        a("v_mul_f32 v%d, %s, v%d" % (t, f32hex(LOG2E), t))
    for r, t in zip(regs, tmp):
        a("v_exp_f32 v%d, v%d" % (t, t))
    for r, t in zip(regs, tmp):
        a("v_max_f32 v%d, 0, v%d" % (r, r))
    for r, t in zip(regs, tmp):
        a("v_add_f32 v%d, v%d, v%d" % (r, r, t))
    for r, t in zip(regs, tmp):
        a("v_add_f32 v%d, %s, v%d" % (r, f32hex(1e-6), r))


def round4(a, c, t0, t1):
    a("v_cvt_pk_bf16_f32 v%d, v%d, v%d" % (t0, c, c + 1))
    a("v_cvt_pk_bf16_f32 v%d, v%d, v%d" % (t1, c + 2, c + 3))
    a("v_lshlrev_b32 v%d, 16, v%d" % (c, t0))
    a("v_and_b32 v%d, 0xffff0000, v%d" % (c + 1, t0))
    a("v_lshlrev_b32 v%d, 16, v%d" % (c + 2, t1))
    a("v_and_b32 v%d, 0xffff0000, v%d" % (c + 3, t1))


def epi_gemm1(a, c):
    acc, V_L15, V_G, R = c['acc'], c['V_L15'], c['V_G'], c['R']
    F = c['free']
    TMP = 4
    wave_affine(a, S_T0, [r * 2048 for r in R['row_coef']], S_T0 + 1)
    a("s_lshl_b32 s%d, s%d, 18" % (S_T0 + 1, S_TM))
    a("s_add_u32 s%d, s%d, s%d" % (S_T0, S_T0, S_T0 + 1))
    a("s_lshl_b32 s%d, s%d, 7" % (S_T0 + 1, S_TN))
    a("s_add_u32 s%d, s%d, s%d" % (S_T0, S_T0, S_T0 + 1))
    a("s_lshl_b32 s%d, s%d, 6" % (S_T0 + 1, S_B[1]))
    a("s_add_u32 s%d, s%d, s%d" % (S_T0, S_T0, S_T0 + 1))
    a("s_add_u32 s%d, s%d, %d" % (S_T0 + 1, S_T0, 16 * 2048))
    a("v_lshlrev_b32 v8, 11, v%d" % V_L15)
    a("v_lshl_add_u32 v8, v%d, 3, v8" % V_G)
    PK, VF, ONE = F, F + 8, F + 16
    KVA, ZA = acc(0, 2), acc(0, 2) + 16
    top = F + 20
    for i in range(2):
        for dt in range(2):
            cc = acc(i, 2 + dt)
            round4(a, cc, TMP, TMP + 1)
            phi_ops(a, [cc + r for r in range(4)], [TMP + r for r in range(4)])
            d = PK + dt * 4 + i * 2
            a("v_cvt_pk_bf16_f32 v%d, v%d, v%d" % (d, cc, cc + 1))
            a("v_cvt_pk_bf16_f32 v%d, v%d, v%d" % (d + 1, cc + 2, cc + 3))
        for et in range(2):
            cc = acc(i, 4 + et)
            d = VF + et * 4 + i * 2
            a("v_cvt_pk_bf16_f32 v%d, v%d, v%d" % (d, cc, cc + 1))
            a("v_cvt_pk_bf16_f32 v%d, v%d, v%d" % (d + 1, cc + 2, cc + 3))
    for r in range(4):
        a("v_mov_b32 v%d, 0x3f803f80" % (ONE + r))
    a("s_nop 1")
    for et in range(2):
        for dt in range(2):
            d = KVA + (et * 2 + dt) * 4
            A = VF + et * 4
            B = PK + dt * 4
            a("v_mfma_f32_16x16x32_bf16 v[%d:%d], v[%d:%d], v[%d:%d], 0" % (d, d + 3, A, A + 3, B, B + 3))
    for dt in range(2):
        d = ZA + dt * 4
        B = PK + dt * 4
        a("v_mfma_f32_16x16x32_bf16 v[%d:%d], v[%d:%d], v[%d:%d], 0" % (d, d + 3, ONE, ONE + 3, B, B + 3))
    for i in range(2):
        for j in range(2):
            cc = acc(i, j)
            round4(a, cc, TMP, TMP + 1)
            phi_ops(a, [cc + r for r in range(4)], [TMP + r for r in range(4)])
            a("v_cvt_pk_bf16_f32 v%d, v%d, v%d" % (cc, cc, cc + 1))
            a("v_cvt_pk_bf16_f32 v%d, v%d, v%d" % (cc + 1, cc + 2, cc + 3))
            a("buffer_store_dwordx2 v[%d:%d], v8, s[16:19], s%d offen offset:%d" % (cc, cc + 1, S_T0 + i, j * 32))
    a("s_barrier")
    a("s_mul_i32 s%d, s%d, 5120" % (S_T0 + 2, S_WAVE))
    a("v_lshlrev_b32 v9, 4, v0")
    a("v_add_u32 v9, s%d, v9" % (S_T0 + 2))
    for t in range(4):
        a("ds_write_b128 v9, v[%d:%d] offset:%d" % (KVA + 4 * t, KVA + 4 * t + 3, t * 1024))
    a("v_mov_b32 v%d, v%d" % (ZA + 1, ZA + 4))
    a("ds_write_b64 v9, v[%d:%d] offset:4096" % (ZA, ZA + 1))
    a("s_waitcnt lgkmcnt(0)")
    a("s_barrier")
    wave_affine(a, S_T0 + 2, [64, 2 * 5120, 2048], S_T0 + 3)
    a("v_lshlrev_b32 v9, 8, v%d" % V_G)
    a("v_and_b32 v10, 3, v0")
    a("v_lshl_add_u32 v9, v10, 4, v9")
    a("v_bfe_u32 v10, v0, 2, 2")
    a("v_lshl_add_u32 v9, v10, 2, v9")
    a("v_add_u32 v9, s%d, v9" % (S_T0 + 2))
    for k in range(4):
        for q, wv in enumerate((0, 1, 4, 5)):
            a("ds_read_b32 v%d, v9 offset:%d" % (KVA + 4 * q + k, wv * 5120 + (k >> 1) * 1024 + (k & 1) * 128))
    wave_affine(a, S_T0 + 3, [0, 2 * 5120, 0], S_T0 + 4, base=4096)
    a("v_lshlrev_b32 v10, 4, v0")
    a("v_add_u32 v10, s%d, v10" % (S_T0 + 3))
    for k, wv in enumerate((0, 1, 4, 5)):
        a("ds_read_b64 v[%d:%d], v10 offset:%d" % (ZA + 2 * k, ZA + 2 * k + 1, wv * 5120))
    a("s_lshl_b32 s%d, s%d, 1" % (S_T0, S_TN))
    a("s_add_u32 s%d, s%d, s%d" % (S_T0, S_T0, S_B[1]))
    a("s_lshl_b32 s%d, s%d, 12" % (S_T0 + 1, S_T0))
    wave_affine(a, S_T0 + 4, [1024, 0, 2048], S_T0 + 5)
    a("s_add_u32 s%d, s%d, s%d" % (S_T0 + 1, S_T0 + 1, S_T0 + 4))
    a("s_lshl_b32 s%d, s%d, 7" % (S_T0 + 2, S_T0))
    a("s_add_u32 s%d, s%d, 131072" % (S_T0 + 2, S_T0 + 2))
    a("v_lshlrev_b32 v8, 2, v0")
    a("v_lshlrev_b32 v9, 2, v%d" % V_L15)
    a("s_waitcnt lgkmcnt(0)")
    for r in range(4):
        a("v_add_f32 v%d, v%d, v%d" % (KVA + r, KVA + r, KVA + 4 + r))
        a("v_add_f32 v%d, v%d, v%d" % (KVA + 8 + r, KVA + 8 + r, KVA + 12 + r))
    for r in range(4):
        a("v_add_f32 v%d, v%d, v%d" % (KVA + r, KVA + r, KVA + 8 + r))
    for r in range(4):
        a("buffer_atomic_add_f32 v%d, v8, s[20:23], s%d offen offset:%d" % (KVA + r, S_T0 + 1, r * 256))
    skip = a.newlabel("noz")
    a("s_or_b32 s%d, s%d, s%d" % (S_T0 + 3, S_B[0], S_B[2]))
    a("s_cmp_lg_u32 s%d, 0" % (S_T0 + 3))
    a("s_cbranch_scc1 %s" % skip)
    for r in range(2):
        a("v_add_f32 v%d, v%d, v%d" % (ZA + r, ZA + r, ZA + 2 + r))
        a("v_add_f32 v%d, v%d, v%d" % (ZA + 4 + r, ZA + 4 + r, ZA + 6 + r))
    for r in range(2):
        a("v_add_f32 v%d, v%d, v%d" % (ZA + r, ZA + r, ZA + 4 + r))
    a("s_mov_b64 exec, 0xffff")
    for dt in range(2):
        a("buffer_atomic_add_f32 v%d, v9, s[20:23], s%d offen offset:%d" % (ZA + dt, S_T0 + 2, dt * 64))
    a("s_mov_b64 exec, -1")
    a.label(skip)
    return top


def xreduce(a, v, t):
    a("v_mov_b32 v%d, v%d" % (t, v))
    a("s_nop 1")
    a("v_permlane16_swap_b32 v%d, v%d" % (v, t))
    a("s_nop 1")
    a("v_add_f32 v%d, v%d, v%d" % (v, v, t))
    a("v_mov_b32 v%d, v%d" % (t, v))
    a("s_nop 1")
    a("v_permlane32_swap_b32 v%d, v%d" % (v, t))
    a("s_nop 1")
    a("v_add_f32 v%d, v%d, v%d" % (v, v, t))


def pro_gemm2(a, c):
    V_L15, V_G = c['V_L15'], c['V_G']
    B = ACC0
    srd_from_ptr(a, 44, 4, S * D * 2, WS_PQ)
    srd_from_ptr(a, 52, 4, 135168, WS_KV)
    VK, VZ, VD, VT = B, B + 1, B + 2, B + 3
    VW = [B + 4, B + 5, B + 6, B + 7]
    VR = [B + 8, B + 9]
    a("v_lshrrev_b32 v%d, 3, v0" % VT)
    a("v_and_b32 v%d, 7, v0" % VD)
    a("v_xor_b32 v%d, v%d, v%d" % (VD, VD, VT))
    a("v_lshlrev_b32 v%d, 4, v%d" % (VD, VD))
    a("v_lshl_add_u32 v%d, v%d, 11, v%d" % (VD, VT, VD))
    a("s_lshl_b32 s58, s%d, 17" % S_TM)
    a("s_lshl_b32 s59, s%d, 9" % S_WAVE)
    a("s_add_u32 s58, s58, s59")
    a("s_lshl_b32 s57, s%d, 15" % S_WAVE)
    a("v_lshlrev_b32 v%d, 4, v0" % VK)
    a("v_lshlrev_b32 v%d, 5, v%d" % (VZ, V_G))
    a("s_lshl_b32 s56, s%d, 15" % S_WAVE)
    a("s_lshl_b32 s65, s%d, 10" % S_WAVE)
    a("s_add_u32 s65, s65, 131072")
    LD = B + 12
    for u in range(4):
        for pc in range(8):
            a("s_add_u32 s59, s58, %d" % (pc * 16384 + u * 128))
            a("s_add_u32 m0, s57, %d" % (u * 8192 + pc * 1024))
            a("s_nop 0")
            a("buffer_load_dwordx4 v%d, s[44:47], s59 offen lds" % VD)
        for hh in (2 * u, 2 * u + 1):
            b = LD + hh * 24
            a("s_add_u32 s66, s56, %d" % (hh * 4096))
            for k in range(4):
                a("buffer_load_dwordx4 v[%d:%d], v%d, s[52:55], s66 offen offset:%d" % (b + 4 * k, b + 4 * k + 3, VK, k * 1024))
            a("buffer_load_dwordx4 v[%d:%d], v%d, s[52:55], s65 offen offset:%d" % (b + 16, b + 19, VZ, hh * 128))
            a("buffer_load_dwordx4 v[%d:%d], v%d, s[52:55], s65 offen offset:%d" % (b + 20, b + 23, VZ, hh * 128 + 16))
    a("v_and_b32 v%d, 7, v0" % VT)
    a("v_xor_b32 v%d, v%d, v%d" % (VR[0], VT, V_G))
    a("v_lshlrev_b32 v%d, 4, v%d" % (VR[0], VR[0]))
    a("v_lshl_add_u32 v%d, v%d, 7, v%d" % (VR[0], V_L15, VR[0]))
    a("v_add_u32 v%d, s57, v%d" % (VR[0], VR[0]))
    a("v_xor_b32 v%d, 64, v%d" % (VR[1], VR[0]))
    a("v_lshrrev_b32 v%d, 1, v%d" % (VW[0], V_G))
    a("v_xor_b32 v%d, v%d, v%d" % (VW[0], VW[0], VT))
    a("v_lshlrev_b32 v%d, 4, v%d" % (VW[0], VW[0]))
    a("v_lshl_add_u32 v%d, v%d, 7, v%d" % (VW[0], V_L15, VW[0]))
    a("v_and_b32 v%d, 1, v%d" % (VW[1], V_G))
    a("v_lshl_add_u32 v%d, v%d, 3, v%d" % (VW[0], VW[1], VW[0]))
    a("v_add_u32 v%d, s57, v%d" % (VW[0], VW[0]))
    for k in range(1, 4):
        a("v_xor_b32 v%d, %d, v%d" % (VW[k], 32 * k, VW[0]))
    for hh in range(8):
        b = LD + hh * 24
        a("s_waitcnt vmcnt(%d)" % min(63, 20 * (3 - (hh >> 1)) + 6 * (1 - (hh & 1))))
        aq = (hh & 1) * 16
        for i in range(4):
            a("ds_read_b128 a[%d:%d], v%d offset:%d" % (aq + 4 * i, aq + 4 * i + 3, VR[hh & 1], (hh >> 1) * 8192 + i * 2048))
        for j in range(12):
            a("v_cvt_pk_bf16_f32 v%d, v%d, v%d" % (b + j, b + 2 * j, b + 2 * j + 1))
        a("s_waitcnt lgkmcnt(0)")
        RS = 232
        for i0 in (0, 2):
            for i in (i0, i0 + 1):
                for t in range(3):
                    d = RS + 12 * (i - i0) + 4 * t
                    a("v_mfma_f32_16x16x32_bf16 v[%d:%d], v[%d:%d], a[%d:%d], 0" % (d, d + 3, b + 4 * t, b + 4 * t + 3, aq + 4 * i, aq + 4 * i + 3))
            a("s_nop 7")
            for i in (i0, i0 + 1):
                d = RS + 12 * (i - i0)
                a("v_cvt_pk_bf16_f32 v%d, v%d, v%d" % (d + 8, d + 8, d + 8))
            for i in (i0, i0 + 1):
                d = RS + 12 * (i - i0)
                a("v_lshlrev_b32 v%d, 16, v%d" % (d + 8, d + 8))
            for i in (i0, i0 + 1):
                d = RS + 12 * (i - i0)
                a("v_add_f32 v%d, %s, v%d" % (d + 8, f32hex(1e-6), d + 8))
            for i in (i0, i0 + 1):
                d = RS + 12 * (i - i0)
                a("v_rcp_f32 v%d, v%d" % (d + 8, d + 8))
            a("s_nop 0")
            for i in (i0, i0 + 1):
                d = RS + 12 * (i - i0)
                for r in range(8):
                    a("v_mul_f32 v%d, v%d, v%d" % (d + r, d + r, d + 8))
                for r in range(4):
                    a("v_cvt_pk_bf16_f32 v%d, v%d, v%d" % (b + 12 + 4 * (i & 1) + r, d + 2 * r, d + 2 * r + 1))
                for et in range(2):
                    o = b + 12 + 4 * (i & 1) + 2 * et
                    a("ds_write_b64 v%d, v[%d:%d] offset:%d" % (VW[(hh & 1) * 2 + et], o, o + 1, (hh >> 1) * 8192 + i * 2048))
            if i0 == 0:
                a("s_waitcnt lgkmcnt(0)")
    return 256


def early_resid(c):
    V_L15, V_G, mt, nt, F = c['V_L15'], c['V_G'], c['mt'], c['nt'], c['free']
    T = 50
    g = ["s_lshl_b32 s%d, s%d, 6" % (T, S_TM),
         "s_lshl_b32 s%d, s%d, 5" % (T + 1, S_B[0]),
         "s_add_u32 s%d, s%d, s%d" % (T, T, T + 1),
         "s_lshl_b32 s%d, s%d, 11" % (T, T),
         "s_lshl_b32 s%d, s%d, 8" % (T + 1, S_TN),
         "s_add_u32 s%d, s%d, s%d" % (T, T, T + 1),
         "s_lshl_b32 s%d, s%d, 5" % (T + 1, S_B[1]),
         "s_add_u32 s%d, s%d, s%d" % (T, T, T + 1),
         "s_add_u32 s%d, s%d, %d" % (T + 1, T, 16 * 2048),
         "v_lshlrev_b32 v%d, 11, v%d" % (F, V_L15),
         "v_lshl_add_u32 v%d, v%d, 3, v%d" % (F, V_G, F)]
    for i in range(mt):
        for j in range(nt):
            d = F + 2 + (i * nt + j) * 2
            g.append("buffer_load_dwordx2 v[%d:%d], v%d, s[20:23], s%d offen offset:%d" % (d, d + 1, F, T + i, j * 64))
    return [g]


def epi_resid_stats(a, c):
    return epi_resid(a, c, True)


def epi_resid(a, c, stats=False):
    acc, V_L15, V_G, mt, nt = c['acc'], c['V_L15'], c['V_G'], c['mt'], c['nt']
    F = c['free']
    Rr = F + 2
    S_T0 = 50
    for i in range(mt):
        for j in range(nt):
            round4(a, acc(i, j), 4, 5)
    a("s_waitcnt vmcnt(0)")
    for i in range(mt):
        for j in range(nt):
            d = Rr + (i * nt + j) * 2
            cc = acc(i, j)
            a("v_lshlrev_b32 v4, 16, v%d" % d)
            a("v_and_b32 v5, 0xffff0000, v%d" % d)
            a("v_add_f32 v%d, v%d, v4" % (cc, cc))
            a("v_add_f32 v%d, v%d, v5" % (cc + 1, cc + 1))
            a("v_lshlrev_b32 v4, 16, v%d" % (d + 1))
            a("v_and_b32 v5, 0xffff0000, v%d" % (d + 1))
            a("v_add_f32 v%d, v%d, v4" % (cc + 2, cc + 2))
            a("v_add_f32 v%d, v%d, v5" % (cc + 3, cc + 3))
            a("v_cvt_pk_bf16_f32 v%d, v%d, v%d" % (d, cc, cc + 1))
            a("v_cvt_pk_bf16_f32 v%d, v%d, v%d" % (d + 1, cc + 2, cc + 3))
            a("buffer_store_dwordx2 v[%d:%d], v%d, s[16:19], s%d offen offset:%d" % (d, d + 1, F, S_T0 + i, j * 64))
    if stats:
        a("s_lshl_b32 s%d, s%d, 6" % (S_T0 + 2, S_TM))
        a("s_lshl_b32 s%d, s%d, 5" % (S_T0 + 3, S_B[0]))
        a("s_add_u32 s%d, s%d, s%d" % (S_T0 + 2, S_T0 + 2, S_T0 + 3))
        a("s_lshl_b32 s%d, s%d, 6" % (S_T0 + 2, S_T0 + 2))
        a("s_lshl_b32 s%d, s%d, 3" % (S_T0 + 3, S_TN))
        a("s_add_u32 s%d, s%d, s%d" % (S_T0 + 2, S_T0 + 2, S_T0 + 3))
        a("v_lshlrev_b32 v9, 6, v%d" % V_L15)
        for i in range(mt):
            regs = [acc(i, j) + r for j in range(nt) for r in range(4)]
            m, q = 10 + 2 * i, 11 + 2 * i
            a("v_add_f32 v%d, v%d, v%d" % (m, regs[0], regs[1]))
            for r in regs[2:]:
                a("v_add_f32 v%d, v%d, v%d" % (m, m, r))
            xreduce(a, m, 4)
            a("v_mul_f32 v%d, %s, v%d" % (m, f32hex(1.0 / 64), m))
            a("v_sub_f32 v4, v%d, v%d" % (regs[0], m))
            a("v_mul_f32 v%d, v4, v4" % q)
            for r in regs[1:]:
                a("v_sub_f32 v4, v%d, v%d" % (r, m))
                a("v_fmac_f32 v%d, v4, v4" % q)
            xreduce(a, q, 4)
        a("s_barrier")
        a("v_lshlrev_b32 v14, 4, v0")
        a("s_lshl_b32 s%d, s%d, 10" % (S_T0 + 3, S_B[0]))
        a("v_add_u32 v14, s%d, v14" % (S_T0 + 3))
        sk = a.newlabel("st1")
        a("s_cmp_lg_u32 s%d, 1" % S_B[1])
        a("s_cbranch_scc1 %s" % sk)
        a("ds_write_b128 v14, v[10:13]")
        a("s_waitcnt lgkmcnt(0)")
        a.label(sk)
        a("s_barrier")
        sk = a.newlabel("st0")
        a("s_cmp_lg_u32 s%d, 0" % S_B[1])
        a("s_cbranch_scc1 %s" % sk)
        a("ds_read_b128 v[16:19], v14")
        a("s_waitcnt lgkmcnt(0)")
        for i in range(mt):
            m, q, m2, q2 = 10 + 2 * i, 11 + 2 * i, 16 + 2 * i, 17 + 2 * i
            a("v_sub_f32 v4, v%d, v%d" % (m, m2))
            a("v_add_f32 v%d, v%d, v%d" % (m, m, m2))
            a("v_mul_f32 v%d, 0.5, v%d" % (m, m))
            a("v_add_f32 v%d, v%d, v%d" % (q, q, q2))
            a("v_mul_f32 v4, v4, v4")
            a("v_fmac_f32 v%d, %s, v4" % (q, f32hex(32.0)))
        a("s_mov_b64 exec, 0xffff")
        for i in range(mt):
            a("buffer_store_dwordx2 v[%d:%d], v9, s[24:27], s%d offen offset:%d" % (10 + 2 * i, 11 + 2 * i, S_T0 + 2, i * 1024))
        a("s_mov_b64 exec, -1")
        a.label(sk)
    return F + 2 + mt * nt * 2


def early_gemm4(c):
    V_L15, V_G, mt, nt, F = c['V_L15'], c['V_G'], c['mt'], c['nt'], c['free']
    T = 50
    g = ["s_lshl_b32 s%d, s%d, 7" % (T, S_TM),
         "s_lshl_b32 s%d, s%d, 6" % (T + 1, S_B[0]),
         "s_add_u32 s%d, s%d, s%d" % (T, T, T + 1),
         "s_lshl_b32 s%d, s%d, 11" % (T, T),
         "s_lshl_b32 s%d, s%d, 8" % (T + 1, S_TN),
         "s_add_u32 s%d, s%d, s%d" % (T, T, T + 1),
         "s_lshl_b32 s%d, s%d, 7" % (T + 1, S_B[2]),
         "s_add_u32 s%d, s%d, s%d" % (T, T, T + 1),
         "s_lshl_b32 s%d, s%d, 5" % (T + 1, S_B[1]),
         "s_add_u32 s%d, s%d, s%d" % (T, T, T + 1)]
    for i in range(1, 4):
        g.append("s_add_u32 s%d, s%d, %d" % (T + i, T, i * 16 * 2048))
    g += ["v_lshlrev_b32 v%d, 11, v%d" % (F, V_L15),
          "v_lshl_add_u32 v%d, v%d, 3, v%d" % (F, V_G, F)]
    for i in range(mt):
        for j in range(nt):
            d = F + 2 + (i * nt + j) * 2
            g.append("buffer_load_dwordx2 v[%d:%d], v%d, s[20:23], s%d offen offset:%d" % (d, d + 1, F, T + i, j * 64))
    return [g]


def epi_gemm4(a, c):
    acc, V_L15, V_G, mt, nt = c['acc'], c['V_L15'], c['V_G'], c['mt'], c['nt']
    F = c['free']
    Rr = F + 2
    PB = F + 2 + mt * nt * 2
    T = 50
    a("s_lshl_b32 s54, s%d, 3" % S_TM)
    a("s_add_u32 s54, s54, s%d" % S_TN)
    a("s_and_b32 s55, s54, 1")
    a("s_lshl_b32 s55, s55, 4")
    a("s_lshr_b32 s56, s54, 1")
    a("s_lshl_b32 s56, s56, 2")
    a("s_lshl_b32 s57, 1, s55")
    a("s_lshl_b32 s58, 0x100, s55")
    a("s_lshl_b32 s59, s54, 16")
    a("s_lshl_b32 s%d, s%d, 13" % (S_T0, S_WAVE))
    a("s_add_u32 s59, s59, s%d" % S_T0)
    a("v_lshlrev_b32 v4, 4, v0")
    a("v_mov_b32 v5, 0")
    nw0 = a.newlabel("nw0")
    a("s_barrier")
    a("s_cmp_lg_u32 s%d, 0" % S_WAVE)
    a("s_cbranch_scc1 %s" % nw0)
    a("v_mov_b32 v6, s57")
    a("s_mov_b64 exec, 1")
    a("buffer_atomic_add v6, v5, s[24:27], s56 offen sc0 sc1")
    a("s_waitcnt vmcnt(0)")
    a("ds_write_b32 v5, v6")
    a("s_waitcnt lgkmcnt(0)")
    a("s_mov_b64 exec, -1")
    a.label(nw0)
    a("s_barrier")
    a("ds_read_b32 v6, v5")
    a("s_waitcnt lgkmcnt(0)")
    a("v_readfirstlane_b32 s%d, v6" % S_T0)
    a("s_lshr_b32 s%d, s%d, s55" % (S_T0, S_T0))
    a("s_and_b32 s%d, s%d, 0xff" % (S_T0, S_T0))
    second = a.newlabel("second")
    done = a.newlabel("done")
    a("s_cmp_lg_u32 s%d, 0" % S_T0)
    a("s_cbranch_scc1 %s" % second)
    for i in range(mt):
        for j in range(nt):
            cc = acc(i, j)
            k = i * nt + j
            if k == 4:
                a("s_add_u32 s59, s59, 4096")
            a("buffer_store_dwordx4 v[%d:%d], v4, s[92:95], s59 offen offset:%d sc1" % (cc, cc + 3, (k & 3) * 1024))
    a("s_waitcnt vmcnt(0)")
    a("s_barrier")
    a("s_cmp_lg_u32 s%d, 0" % S_WAVE)
    a("s_cbranch_scc1 %s" % done)
    a("v_mov_b32 v6, s58")
    a("s_mov_b64 exec, 1")
    a("buffer_atomic_add v6, v5, s[24:27], s56 offen sc1")
    a("s_mov_b64 exec, -1")
    a("s_branch %s" % done)
    a.label(second)
    nw1 = a.newlabel("nw1")
    a("s_cmp_lg_u32 s%d, 0" % S_WAVE)
    a("s_cbranch_scc1 %s" % nw1)
    poll = a.newlabel("poll")
    a.label(poll)
    a("buffer_load_dword v6, v5, s[24:27], s56 offen sc1")
    a("s_waitcnt vmcnt(0)")
    a("v_readfirstlane_b32 s%d, v6" % S_T0)
    a("s_and_b32 s%d, s%d, s58" % (S_T0, S_T0))
    a("s_cmp_lg_u32 s%d, 0" % S_T0)
    a("s_cbranch_scc1 %s" % nw1)
    a("s_sleep 2")
    a("s_branch %s" % poll)
    a.label(nw1)
    a("s_barrier")
    for k in range(mt * nt):
        if k == 4:
            a("s_add_u32 s59, s59, 4096")
        a("buffer_load_dwordx4 v[%d:%d], v4, s[92:95], s59 offen offset:%d sc1" % (PB + 4 * k, PB + 4 * k + 3, (k & 3) * 1024))
    for i in range(mt):
        for j in range(nt):
            k = i * nt + j
            cc = acc(i, j)
            d = Rr + k * 2
            a("s_waitcnt vmcnt(%d)" % (mt * nt - 1 - k + k))
            for r in range(4):
                a("v_add_f32 v%d, v%d, v%d" % (cc + r, cc + r, PB + 4 * k + r))
            round4(a, cc, 6, 7)
            a("v_lshlrev_b32 v6, 16, v%d" % d)
            a("v_and_b32 v7, 0xffff0000, v%d" % d)
            a("v_add_f32 v%d, v%d, v6" % (cc, cc))
            a("v_add_f32 v%d, v%d, v7" % (cc + 1, cc + 1))
            a("v_lshlrev_b32 v6, 16, v%d" % (d + 1))
            a("v_and_b32 v7, 0xffff0000, v%d" % (d + 1))
            a("v_add_f32 v%d, v%d, v6" % (cc + 2, cc + 2))
            a("v_add_f32 v%d, v%d, v7" % (cc + 3, cc + 3))
            a("v_cvt_pk_bf16_f32 v%d, v%d, v%d" % (d, cc, cc + 1))
            a("v_cvt_pk_bf16_f32 v%d, v%d, v%d" % (d + 1, cc + 2, cc + 3))
            a("buffer_store_dwordx2 v[%d:%d], v%d, s[16:19], s%d offen offset:%d" % (d, d + 1, F, T + i, j * 64))
    a.label(done)
    return PB + 4 * mt * nt


V_ST = 19
V_PAR = 20


def pre_gemm3(a, c):
    V_L15, V_G, t = c['V_L15'], c['V_G'], c['V_T']
    srd_from_ptr(a, 20, 4, S * 128, WS_ST)
    a("s_lshl_b32 s%d, s%d, 7" % (S_T0, S_TM))
    a("s_lshl_b32 s%d, s%d, 6" % (S_T0 + 1, S_B[0]))
    a("s_add_u32 s%d, s%d, s%d" % (S_T0, S_T0, S_T0 + 1))
    a("s_lshl_b32 s%d, s%d, 7" % (S_T0, S_T0))
    a("v_lshlrev_b32 v%d, 7, v%d" % (t, V_L15))
    a("v_lshl_add_u32 v%d, v%d, 5, v%d" % (t, V_G, t))
    a("s_add_u32 s%d, s%d, 4096" % (S_T0 + 1, S_T0))
    for i in range(4):
        so = S_T0 + (i >> 1)
        a("buffer_load_dwordx4 v[%d:%d], v%d, s[20:23], s%d offen offset:%d" % (ACC0 + 8 * i, ACC0 + 8 * i + 3, t, so, (i & 1) * 2048))
        a("buffer_load_dwordx4 v[%d:%d], v%d, s[20:23], s%d offen offset:%d" % (ACC0 + 8 * i + 4, ACC0 + 8 * i + 7, t, so, (i & 1) * 2048 + 16))
    return 8


def pro_gemm3(a, c):
    a("s_waitcnt vmcnt(%d)" % c['nissued'])
    T = ACC0 + 40
    for i in range(4):
        b = ACC0 + 8 * i
        m, q = T, T + 1
        a("v_add_f32 v%d, v%d, v%d" % (m, b, b + 2))
        a("v_add_f32 v%d, v%d, v%d" % (m, m, b + 4))
        a("v_add_f32 v%d, v%d, v%d" % (m, m, b + 6))
        xreduce(a, m, T + 2)
        a("v_mul_f32 v%d, %s, v%d" % (m, f32hex(1.0 / 16), m))
        a("v_add_f32 v%d, v%d, v%d" % (q, b + 1, b + 3))
        a("v_add_f32 v%d, v%d, v%d" % (q, q, b + 5))
        a("v_add_f32 v%d, v%d, v%d" % (q, q, b + 7))
        a("v_mov_b32 v%d, 0" % (T + 3))
        for k in range(4):
            a("v_sub_f32 v%d, v%d, v%d" % (T + 2, b + 2 * k, m))
            a("v_fmac_f32 v%d, v%d, v%d" % (T + 3, T + 2, T + 2))
        a("v_fmac_f32 v%d, %s, v%d" % (q, f32hex(64.0), T + 3))
        xreduce(a, q, T + 2)
        a("v_mul_f32 v%d, %s, v%d" % (q, f32hex(1.0 / D), q))
        a("v_cvt_pk_bf16_f32 v%d, v%d, v%d" % (T + 2, m, q))
        a("v_lshlrev_b32 v%d, 16, v%d" % (m, T + 2))
        a("v_and_b32 v%d, 0xffff0000, v%d" % (q, T + 2))
        a("v_add_f32 v%d, %s, v%d" % (q, f32hex(1e-5), q))
        a("v_cvt_pk_bf16_f32 v%d, v%d, v%d" % (T + 2, q, q))
        a("v_lshlrev_b32 v%d, 16, v%d" % (q, T + 2))
        a("v_sqrt_f32 v%d, v%d" % (q, q))
        a("s_nop 0")
        a("v_cvt_pk_bf16_f32 v%d, v%d, v%d" % (T + 2, q, q))
        a("v_lshlrev_b32 v%d, 16, v%d" % (q, T + 2))
        a("v_rcp_f32 v%d, v%d" % (V_PAR + 2 * i, q))
        a("s_nop 0")
        a("v_mul_f32 v%d, v%d, v%d" % (V_PAR + 2 * i + 1, m, V_PAR + 2 * i))
        a("v_sub_f32 v%d, 0, v%d" % (V_PAR + 2 * i + 1, V_PAR + 2 * i + 1))


def last_gemm3(c):
    R, V_G, VX, af = c['R'], c['V_G'], c['V_XO'], c['afree']
    ocol = R['ocol']
    g = ["s_add_u32 s88, s4, 0x%x" % WS_CS, "s_addc_u32 s89, s5, 0", "s_mov_b32 s90, %d" % (2 * DF * 4), "s_mov_b32 s91, 0x00020000",
         "s_mul_i32 s%d, s%d, 896" % (S_T0, S_TN),
         "s_lshl_b32 s%d, s%d, 6" % (S_T0 + 1, S_B[1]),
         "s_add_u32 s%d, s%d, s%d" % (S_T0, S_T0, S_T0 + 1),
         "s_and_b32 s%d, s%d, 1" % (S_T0 + 1, S_TN),
         "s_cmp_lg_u32 s%d, 0" % (S_T0 + 1),
         "s_cselect_b32 s%d, 0, 768" % (S_T0 + 2),
         "s_cselect_b32 s%d, 128, 0" % (S_T0 + 1),
         "s_add_u32 s%d, s%d, s%d" % (S_T0 + 2, S_T0 + 2, S_T0),
         "s_add_u32 s%d, s%d, s%d" % (S_T0 + 1, S_T0 + 1, S_T0),
         "s_add_u32 s%d, s%d, %d" % (S_T0 + 3, S_T0 + 1, DF * 4),
         "s_add_u32 s%d, s%d, %d" % (S_T0 + 4, S_T0 + 2, DF * 4),
         "v_lshlrev_b32 v%d, 4, v%d" % (VX[0], V_G)]
    np_ = len(ocol)
    g += ["s_add_u32 s20, s4, 0x%x" % WS_ST, "s_addc_u32 s21, s5, 0", "s_mov_b32 s22, %d" % (S * 64), "s_mov_b32 s23, 0x00020000",
          "s_lshl_b32 s%d, s%d, 7" % (S_T0 + 5, S_TM),
          "s_lshl_b32 s%d, s%d, 6" % (S_T0 + 6, S_B[0]),
          "s_add_u32 s%d, s%d, s%d" % (S_T0 + 5, S_T0 + 5, S_T0 + 6),
          "s_lshl_b32 s%d, s%d, 6" % (S_T0 + 5, S_T0 + 5),
          "v_lshl_add_u32 v%d, v%d, 6, v%d" % (VX[1], c['V_L15'], VX[0])]
    for i in range(4):
        d = af + 2 * np_ * 4 + 4 * i
        g.append("buffer_load_dwordx4 a[%d:%d], v%d, s[20:23], s%d offen offset:%d" % (d, d + 3, VX[1], S_T0 + 5, i * 1024))
    for m in range(2):
        for j, (typ, off) in enumerate(ocol):
            so = (S_T0 + 1 if typ == 'A' else S_T0 + 2) + 2 * m
            d = af + (m * np_ + j) * 4
            g.append("buffer_load_dwordx4 a[%d:%d], v%d, s[88:91], s%d offen offset:%d" % (d, d + 3, VX[0], so, off * 2))
    return [g]


def epi_gemm3(a, c):
    acc, V_L15, V_G, R = c['acc'], c['V_L15'], c['V_G'], c['R']
    npair = c['nt'] // 2
    ocol = R['ocol']
    ldo = DF * 2
    a("s_lshl_b32 s%d, s%d, 7" % (S_T0, S_TM))
    a("s_lshl_b32 s%d, s%d, 6" % (S_T0 + 1, S_B[0]))
    a("s_add_u32 s%d, s%d, s%d" % (S_T0, S_T0, S_T0 + 1))
    a("s_mul_i32 s%d, s%d, %d" % (S_T0, S_T0, ldo))
    a("s_mul_i32 s%d, s%d, 448" % (S_T0 + 1, S_TN))
    a("s_add_u32 s%d, s%d, s%d" % (S_T0, S_T0, S_T0 + 1))
    a("s_lshl_b32 s%d, s%d, 5" % (S_T0 + 1, S_B[1]))
    a("s_add_u32 s%d, s%d, s%d" % (S_T0, S_T0, S_T0 + 1))
    for i in range(1, 4):
        a("s_add_u32 s%d, s%d, %d" % (S_T0 + i, S_T0, i * 16 * ldo))
    a("s_mov_b32 s%d, %d" % (S_T0 + 4, ldo))
    VA = 3
    a("v_mul_lo_u32 v%d, v%d, s%d" % (VA, V_L15, S_T0 + 4))
    a("v_lshl_add_u32 v%d, v%d, 3, v%d" % (VA, V_G, VA))
    a("s_and_b32 s%d, s%d, 1" % (S_T0 + 5, S_TN))
    a("s_cmp_lg_u32 s%d, 0" % (S_T0 + 5))
    a("s_cselect_b32 s%d, 0, 384" % (S_T0 + 6))
    a("s_cselect_b32 s%d, 64, 0" % (S_T0 + 5))
    c1 = -2.0 * LOG2E * 0.7978845608028654
    c2 = c1 * 0.044715
    a("s_mov_b32 s%d, %s" % (S_T0 + 8, f32hex(c2)))
    a("s_mov_b32 s%d, %s" % (S_T0 + 9, f32hex(c2)))
    a("v_mov_b32 v4, %s" % f32hex(c1))
    a("v_mov_b32 v5, %s" % f32hex(c1))
    T0 = 6
    af = c['afree']
    a("s_waitcnt vmcnt(0)")
    for i0 in (0, 2):
        ii = (i0, i0 + 1)
        raw = {i: 6 + 4 * (i - i0) for i in ii}
        mm = {i: 14 + 3 * (i - i0) for i in ii}
        for i in ii:
            for r in range(4):
                a("v_accvgpr_read_b32 v%d, a%d" % (raw[i] + r, af + 2 * npair * 4 + 4 * i + r))

        def par(fn):
            for i in ii:
                fn(raw[i], mm[i], mm[i] + 1, mm[i] + 2, V_PAR + 2 * i)

        def xred2(sel):
            par(lambda b, m, q, t, p: a("v_mov_b32 v%d, v%d" % (t, sel(m, q))))
            a("s_nop 0")
            par(lambda b, m, q, t, p: a("v_permlane16_swap_b32 v%d, v%d" % (sel(m, q), t)))
            a("s_nop 0")
            par(lambda b, m, q, t, p: a("v_add_f32 v%d, v%d, v%d" % (sel(m, q), sel(m, q), t)))
            par(lambda b, m, q, t, p: a("v_mov_b32 v%d, v%d" % (t, sel(m, q))))
            a("s_nop 1")
            par(lambda b, m, q, t, p: a("v_permlane32_swap_b32 v%d, v%d" % (sel(m, q), t)))
            a("s_nop 0")
            par(lambda b, m, q, t, p: a("v_add_f32 v%d, v%d, v%d" % (sel(m, q), sel(m, q), t)))
        par(lambda b, m, q, t, p: a("v_add_f32 v%d, v%d, v%d" % (m, b, b + 2)))
        par(lambda b, m, q, t, p: a("v_add_f32 v%d, v%d, v%d" % (q, b + 1, b + 3)))
        a("s_nop 0")
        xred2(lambda m, q: m)
        par(lambda b, m, q, t, p: a("v_mul_f32 v%d, %s, v%d" % (m, f32hex(1.0 / 8), m)))
        par(lambda b, m, q, t, p: a("v_sub_f32 v%d, v%d, v%d" % (b, b, m)))
        par(lambda b, m, q, t, p: a("v_sub_f32 v%d, v%d, v%d" % (b + 2, b + 2, m)))
        par(lambda b, m, q, t, p: a("v_mul_f32 v%d, v%d, v%d" % (b, b, b)))
        par(lambda b, m, q, t, p: a("v_fmac_f32 v%d, v%d, v%d" % (b, b + 2, b + 2)))
        par(lambda b, m, q, t, p: a("v_fmac_f32 v%d, %s, v%d" % (q, f32hex(128.0), b)))
        a("s_nop 0")
        xred2(lambda m, q: q)
        par(lambda b, m, q, t, p: a("v_mul_f32 v%d, %s, v%d" % (q, f32hex(1.0 / D), q)))
        par(lambda b, m, q, t, p: a("v_cvt_pk_bf16_f32 v%d, v%d, v%d" % (t, m, q)))
        par(lambda b, m, q, t, p: a("v_lshlrev_b32 v%d, 16, v%d" % (m, t)))
        par(lambda b, m, q, t, p: a("v_and_b32 v%d, 0xffff0000, v%d" % (q, t)))
        par(lambda b, m, q, t, p: a("v_add_f32 v%d, %s, v%d" % (q, f32hex(1e-5), q)))
        par(lambda b, m, q, t, p: a("v_cvt_pk_bf16_f32 v%d, v%d, v%d" % (t, q, q)))
        par(lambda b, m, q, t, p: a("v_lshlrev_b32 v%d, 16, v%d" % (q, t)))
        par(lambda b, m, q, t, p: a("v_sqrt_f32 v%d, v%d" % (q, q)))
        a("s_nop 0")
        par(lambda b, m, q, t, p: a("v_cvt_pk_bf16_f32 v%d, v%d, v%d" % (t, q, q)))
        par(lambda b, m, q, t, p: a("v_lshlrev_b32 v%d, 16, v%d" % (q, t)))
        par(lambda b, m, q, t, p: a("v_rcp_f32 v%d, v%d" % (p, q)))
        a("s_nop 0")
        par(lambda b, m, q, t, p: a("v_mul_f32 v%d, v%d, v%d" % (p + 1, m, p)))
        par(lambda b, m, q, t, p: a("v_sub_f32 v%d, 0, v%d" % (p + 1, p + 1)))
    a("v_add_u32 v10, s%d, v%d" % (S_T0 + 6, VA))
    a("v_add_u32 v%d, s%d, v%d" % (VA, S_T0 + 5, VA))
    for j in range(npair):
        for m in range(2):
            for r in range(4):
                a("v_accvgpr_read_b32 v%d, a%d" % (12 + r, af + (m * npair + j) * 4 + r))
            for i in range(4):
                cc = acc(i, m * npair + j)
                pr = V_PAR + 2 * i
                for h in range(2):
                    a("v_pk_mul_f32 v[%d:%d], v[%d:%d], v[%d:%d] op_sel:[0,1] op_sel_hi:[1,1]" % (16, 17, 12 + 2 * h, 13 + 2 * h, pr, pr + 1))
                    a("v_pk_fma_f32 v[%d:%d], v[%d:%d], v[%d:%d], v[16:17] op_sel:[0,0,0] op_sel_hi:[1,0,1]" % (cc + 2 * h, cc + 2 * h + 1, cc + 2 * h, cc + 2 * h + 1, pr, pr + 1))
    for i in range(4):
        for j in range(npair):
            g = acc(i, j)
            u = acc(i, npair + j)
            for h in range(2):
                gg = g + 2 * h
                tt = T0 + 2 * h
                a("v_pk_mul_f32 v[%d:%d], v[%d:%d], v[%d:%d]" % (tt, tt + 1, gg, gg + 1, gg, gg + 1))
            for h in range(2):
                tt = T0 + 2 * h
                a("v_pk_fma_f32 v[%d:%d], v[%d:%d], s[%d:%d], v[4:5]" % (tt, tt + 1, tt, tt + 1, S_T0 + 8, S_T0 + 9))
            for h in range(2):
                gg = g + 2 * h
                tt = T0 + 2 * h
                a("v_pk_mul_f32 v[%d:%d], v[%d:%d], v[%d:%d]" % (tt, tt + 1, tt, tt + 1, gg, gg + 1))
            for r in range(4):
                a("v_exp_f32 v%d, v%d" % (T0 + r, T0 + r))
            for h in range(2):
                gg = g + 2 * h
                uu = u + 2 * h
                a("v_pk_mul_f32 v[%d:%d], v[%d:%d], v[%d:%d]" % (gg, gg + 1, gg, gg + 1, uu, uu + 1))
            for r in range(4):
                a("v_add_f32 v%d, 1.0, v%d" % (T0 + r, T0 + r))
            for r in range(4):
                a("v_rcp_f32 v%d, v%d" % (T0 + r, T0 + r))
            a("s_nop 0")
            for h in range(2):
                gg = g + 2 * h
                tt = T0 + 2 * h
                a("v_pk_mul_f32 v[%d:%d], v[%d:%d], v[%d:%d]" % (gg, gg + 1, gg, gg + 1, tt, tt + 1))
            a("v_cvt_pk_bf16_f32 v%d, v%d, v%d" % (g, g, g + 1))
            a("v_cvt_pk_bf16_f32 v%d, v%d, v%d" % (g + 1, g + 2, g + 3))
            a("buffer_store_dwordx2 v[%d:%d], v%d, s[16:19], s%d offen offset:%d" % (g, g + 1, VA if ocol[j][0] == 'A' else 10, S_T0 + i, ocol[j][1]) + (" sc0 sc1" if "wt1" in EXP else " nt" if "wt2" in EXP else " sc1" if "wt3" in EXP else ""))
    return 0


def build():
    a = Asm()
    descs = []
    launches = []

    if "pf" in EXP:
        descs.append(prefetch_kernel(a, "pf_kernel"))
        launches.append(("pf_kernel", 1024, 256, 0))
    descs.append(ln_kernel(a, "ln1_kernel", ('arg', 'x'), WS_XN, True))
    launches.append(("ln1_kernel", S // 4, 256, 0))

    ldw = 3 * D * 2

    def srds1(a):
        srd_from_ptr(a, 16, 4, S * D * 2, WS_PQ)
        srd_from_ptr(a, 20, 4, 135168, WS_KV)
    R1 = dict(nxp=2, xp_coef=[2, 4, 8], mt=2,
              waddr=[('A', 0), ('A', 32)], t_coefA=[0, 2, 0],
              ntiles=[(0, 0, True), (1, 0, True), (0, 1024, False), (1, 1024, False), (0, 2048, False), (1, 2048, False)],
              w_slot=[('A', i * 2048, i * 1024, 0) for i in range(3)], ko_par=0,
              wg_coefA=[8 * ldw, 16 * ldw, 32 * ldw], wl_coefA=[3 * 1024, 6 * 1024, 12 * 1024],
              row_coef=[32, 0, 64], wr_coef=[0, 0, 0])
    P1 = dict(name="gemm1_kernel", rtidx=0, NW=8, BM=128, kbx=2, kbw=2, NSX=4, NSW=4, WB=24576, kostrideA=3072,
              K=D, ldx=D * 2, ldw=ldw, x_ws=WS_XN,
              w=['wqkv'], helper=[('wg', D * DF * 2), ('wu', D * DF * 2)], epi_bars=2, mblk_bits=1, srds=srds1, tn_bytes=128, epilogue=epi_gemm1, roles=[R1])
    descs.append(gemm_kernel(a, P1))
    launches.append(("gemm1_kernel", 256, 576, 4 * 16384 + 4 * 24576))


    def srds2(a):
        srd_from_ptr(a, 16, 4, S * D * 2, WS_H)
        srd_from_ptr(a, 20, 62, S * D * 2)
        srd_from_ptr(a, 24, 4, S * 64, WS_ST)
    ldw = D * 2
    R2 = dict(nxp=2, xp_coef=[2, 4, 0], mt=2,
              waddr=[('A', 0), ('A', 64)], t_coefA=[0, 1, 0],
              ntiles=[(0, 0, True), (1, 0, True), (0, 1024, True), (1, 1024, True)],
              w_slot=[('A', (i >> 1) * 8 * ldw + (i & 1) * 128, i * 1024, i >> 1) for i in range(4)], ko_par=None,
              wg_coefA=[16 * ldw, 32 * ldw, 0], wl_coefA=[4 * 1024, 8 * 1024, 0],
              row_coef=[32, 0, 0], wr_coef=[0, 0, 0])
    NS2 = 6
    P2 = dict(name="gemm2_kernel", rtidx=1, NW=4, BM=64, kbx=2, kbw=2, NSX=NS2, NSW=NS2, WB=16384, kostrideA=2048,
              K=D, ldx=D * 2, ldw=ldw, x_ws=WS_O,
              w=['wo'], argptrs=[(62, 'x')], mblk_bits=2, srds=srds2, tn_bytes=256, epilogue=epi_resid_stats, early=early_resid, roles=[R2])
    R2f = dict(R2)
    R2f.update(nxp=0, w_slot=[('A', i * 128, i * 1024, 0) for i in range(2)], ko_par=0,
               wg_coefA=[8 * ldw, 16 * ldw, 0], wl_coefA=[2 * 1024, 4 * 1024, 0])
    P2f = dict(P2)
    P2f.update(x_static=True, NSX=16, kbw=1, NSW=4, WB=8192, pro=pro_gemm2, roles=[R2f])
    descs.append(gemm_kernel(a, P2f))
    launches.append(("gemm2_kernel", 256, 256, 163840))


    def srds3(a):
        srd_from_ptr(a, 16, 4, S * DF * 2, WS_HH)
    ldw = DF * 2
    KB = 1024
    R3a = dict(nxp=2, xp_coef=[2, 4, 8], mt=4,
               waddr=[('A', 0), ('A', 64)], t_coefA=[0, 1, 0],
               ntiles=[(a_, o_ + m_ * 14 * KB, True) for m_ in range(2) for (a_, o_) in ((0, 0), (1, 0), (0, KB), (1, KB))],
               w_slot=[('A', i * 128, i * KB, 0) for i in range(3)], ko_par=0,
               wg_coefA=[8 * ldw, 0, 0], wl_coefA=[3 * KB, 14 * KB, 0],
               row_coef=[64, 0, 0], wr_coef=[0, 0, 0],
               ocol=[('A', 0), ('A', 64), ('A', 128), ('A', 192)])
    R3b = dict(nxp=2, xp_coef=[2, 4, 8], mt=4,
               waddr=[('A', 0), ('A', 64), ('B', 0)], t_coefA=[0, 1, 0], t_coefB=[0, 1, 0],
               ntiles=[(a_, o_ + m_ * 14 * KB, True) for m_ in range(2) for (a_, o_) in ((0, 2 * KB), (1, 2 * KB), (2, 12 * KB))],
               w_slot=[('A', 16 * ldw + i * 128, 6 * KB + i * KB, 0) for i in range(3)] + [('B', 0, 12 * KB)], ko_par=0,
               wg_coefA=[8 * ldw, 0, 0], wl_coefA=[3 * KB, 14 * KB, 0],
               wg_coefB=[16 * ldw, 0, 0], wl_coefB=[KB, 14 * KB, 0],
               row_coef=[64, 0, 0], wr_coef=[0, 0, 0],
               ocol=[('A', 256), ('A', 320), ('B', 0)])
    P3 = dict(name="gemm3_kernel", rtidx=2, NW=8, BM=128, kbx=2, kbw=1, NSX=3, NSW=4, WB=28 * KB, kostrideA=3 * KB, k16strideB=KB,
              par_offA=(0, 64), par_offB=(384, 0),
              K=D, ldx=D * 2, ldw=ldw, x_ws=WS_H,
              w=['wg', 'wu'], pf=[('wd', D * DF * 2)], pf_step=16, last_extras=last_gemm3, wsel_bit=1, mblk_bits=1, srds=srds3, tn_bytes=448, epilogue=epi_gemm3,
              roles=[R3a, R3b])
    descs.append(gemm_kernel(a, P3))
    launches.append(("gemm3_kernel", 256, 512, 3 * 16384 + 4 * 28 * KB))

    def srds4(a):
        srd_from_ptr(a, 16, 62, S * D * 2)
        srd_from_ptr(a, 20, 4, S * D * 2, WS_H)
    P4 = dict(P2)
    P4.update(name="gemm4_kernel", rtidx=3, K=DF, ldx=DF * 2, x_ws=WS_HH, w=['wd'], pf=[], helper=[], argptrs=[(62, 'out')],
              srds=srds4, epilogue=epi_resid)
    descs.append(gemm_kernel(a, P4))
    launches.append(("gemm4_kernel", 256, 256, NS2 * (8192 + 16384)))

    hdr = ["; pre-LN linear attention block + GEGLU FFN, hand-written gfx950 kernels (generated by gen/gen.py)"]
    for (k, g, b, l) in launches:
        hdr.append("; @launch kernel=%s grid=(%d,1,1) block=(%d,1,1) lds=%d" % (k, g, b, l))
    hdr.append('.amdgcn_target "amdgcn-amd-amdhsa--gfx950"')
    hdr.append(".text")
    txt = "\n".join(hdr) + "\n" + "\n".join(a.lines) + "\n" + '.section .rodata,"a"\n' + "".join(descs)
    return txt


if __name__ == "__main__":
    out = sys.argv[1] if len(sys.argv) > 1 else OUT
    open(out, "w").write(build())
    print("wrote", out)
```

```python
import sys, os
EXP = os.environ.get("EXP", "").split(",")

OUT = "sequential_preLN__linear_attn_block__glu_gated_geglu__prompt.s"

S, D, DF = 2048, 1024, 3584
MB = 1 << 20
WS_XN = 0
WS_PQ = 4 * MB
WS_KV = 8 * MB
WS_Z = WS_KV + 131072
WS_CS = WS_KV + 0x30000
WS_ST = WS_KV + 0x40000
WS_O = 9 * MB
WS_H = 13 * MB
WS_HN = 17 * MB
WS_HH = 21 * MB
WS_SLAB = 40 * MB
KA = dict(x=0, wqkv=8, wo=16, bx=24, wg=32, wu=40, wd=48, out=56, dbg=64, ws=72)

LOG2E = 1.4426950408889634


def f32hex(x):
    import struct
    return "0x%08x" % struct.unpack("<I", struct.pack("<f", x))[0]


class Asm:
    def __init__(self):
        self.lines = []
        self.uid = 0

    def __call__(self, s):
        if "offset:" in s:
            off = int(s.split("offset:")[1].split()[0])
            assert off < (4096 if s.startswith("buffer_") else 65536), s
        self.lines.append("    " + s)

    def label(self, s):
        self.lines.append(s + ":")

    def raw(self, s):
        self.lines.append(s)

    def newlabel(self, p):
        self.uid += 1
        return "L_%s_%d" % (p, self.uid)


def kernel_header(a, name):
    a.raw(".globl %s" % name)
    a.raw(".p2align 8")
    a.raw(".type %s,@function" % name)
    a.label(name)


def kernel_desc(name, nvgpr, accum, nsgpr=102):
    return """.p2align 6
.amdhsa_kernel %s
  .amdhsa_next_free_vgpr %d
  .amdhsa_next_free_sgpr %d
  .amdhsa_accum_offset %d
  .amdhsa_group_segment_fixed_size 0
  .amdhsa_kernarg_size 80
  .amdhsa_user_sgpr_count 2
  .amdhsa_user_sgpr_kernarg_segment_ptr 1
  .amdhsa_system_sgpr_workgroup_id_x 1
.end_amdhsa_kernel
""" % (name, nvgpr, nsgpr, accum)


def srd_from_ptr(a, d, p, nbytes, off=0):
    if off:
        a("s_add_u32 s%d, s%d, 0x%x" % (d, p, off))
        a("s_addc_u32 s%d, s%d, 0" % (d + 1, p + 1))
    else:
        a("s_mov_b32 s%d, s%d" % (d, p))
        a("s_mov_b32 s%d, s%d" % (d + 1, p + 1))
    a("s_mov_b32 s%d, 0x%x" % (d + 2, nbytes))
    a("s_mov_b32 s%d, 0x00020000" % (d + 3))


def rt_begin(a):
    if "rt" in EXP:
        a("s_memrealtime s[64:65]")


def rt_end(a, idx):
    if "rt" not in EXP:
        return
    a("s_waitcnt vmcnt(0)")
    a("s_memrealtime s[70:71]")
    a("s_waitcnt lgkmcnt(0)")
    srd_from_ptr(a, 76, 4, 65536, 64 * MB + idx * 65536)
    a("v_mov_b32 v4, s64")
    a("v_mov_b32 v5, s64")
    a("v_mov_b32 v6, s70")
    a("v_mov_b32 v7, s70")
    a("s_lshl_b32 s80, s2, 4")
    a("v_mov_b32 v8, s80")
    a("s_mov_b64 exec, 1")
    a("buffer_store_dwordx4 v[4:7], v8, s[76:79], 0 offen")

def ln_kernel(a, name, src, dst, zero_kv):
    kernel_header(a, name)
    end = a.newlabel("end")
    cs = a.newlabel("cs")
    a("s_cmp_ge_u32 s2, %d" % (S // 4))
    a("s_cbranch_scc1 %s" % end)
    rt_begin(a)
    a("s_load_dwordx2 s[4:5], s[0:1], %d" % KA['ws'])
    if src[0] == 'arg':
        a("s_load_dwordx2 s[6:7], s[0:1], %d" % KA[src[1]])
    a("v_lshrrev_b32 v1, 6, v0")
    a("v_and_b32 v2, 63, v0")
    a("s_lshl_b32 s3, s2, 2")
    a("v_add_u32 v1, s3, v1")
    a("v_lshlrev_b32 v1, 11, v1")
    a("v_lshl_add_u32 v1, v2, 4, v1")
    a("s_waitcnt lgkmcnt(0)")
    if src[0] == 'arg':
        srd_from_ptr(a, 8, 6, S * D * 2)
    else:
        srd_from_ptr(a, 8, 4, S * D * 2, src[1])
    srd_from_ptr(a, 12, 4, S * D * 2, dst)
    a("buffer_load_dwordx4 v[4:7], v1, s[8:11], 0 offen")
    a("buffer_load_dwordx4 v[8:11], v1, s[8:11], 0 offen offset:1024")
    npf = 0
    if zero_kv:
        a("s_load_dwordx4 s[40:43], s[0:1], %d" % KA['wqkv'])
        a("v_lshlrev_b32 v3, 6, v0")
        a("s_lshl_b32 s3, s2, 14")
        a("v_add_u32 v3, s3, v3")
        a("s_waitcnt lgkmcnt(0)")
        srd_from_ptr(a, 52, 40, D * 3 * D * 2)
        srd_from_ptr(a, 56, 42, D * D * 2)
        a("buffer_load_dword v40, v3, s[52:55], 0 offen")
        a("v_subrev_u32 v3, 0x%x, v3" % (D * 3 * D * 2))
        a("buffer_load_dword v41, v3, s[56:59], 0 offen")
        npf = 2
        if "nocodepf" not in EXP:
            sk = a.newlabel("ncp")
            a("s_cmp_ge_u32 s2, 16")
            a("s_cbranch_scc1 %s" % sk)
            a("s_getpc_b64 s[60:61]")
            a("v_lshlrev_b32 v42, 6, v0")
            for j in range(4):
                a("global_load_dword v43, v42, s[60:61]")
                a("v_add_u32 v42, 0x3400, v42")
            a("s_waitcnt vmcnt(0)")
            a.label(sk)
    if zero_kv:
        skip = a.newlabel("nz")
        a("s_cmp_ge_u32 s2, 55")
        a("s_cbranch_scc1 %s" % skip)
        srd_from_ptr(a, 16, 4, 0x37000, WS_KV)
        a("s_lshl_b32 s3, s2, 12")
        a("v_lshlrev_b32 v3, 4, v0")
        a("v_add_u32 v3, s3, v3")
        a("v_mov_b32 v12, 0")
        a("v_mov_b32 v13, 0")
        a("v_mov_b32 v14, 0")
        a("v_mov_b32 v15, 0")
        a("buffer_store_dwordx4 v[12:15], v3, s[16:19], 0 offen")
        a.label(skip)
    a("s_waitcnt vmcnt(%d)" % (npf + (1 if zero_kv else 0)) if False else "s_waitcnt vmcnt(%d)" % npf)
    for i in range(8):
        a("v_lshlrev_b32 v%d, 16, v%d" % (16 + 2 * i, 4 + i))
        a("v_and_b32 v%d, 0xffff0000, v%d" % (17 + 2 * i, 4 + i))

    def reduce(v, t):
        a("s_nop 1")
        a("v_add_f32_dpp %s, %s, %s quad_perm:[1,0,3,2] row_mask:0xf bank_mask:0xf" % (t, v, v))
        a("s_nop 1")
        a("v_add_f32_dpp %s, %s, %s quad_perm:[2,3,0,1] row_mask:0xf bank_mask:0xf" % (v, t, t))
        a("s_nop 1")
        a("v_add_f32_dpp %s, %s, %s row_half_mirror row_mask:0xf bank_mask:0xf" % (t, v, v))
        a("s_nop 1")
        a("v_add_f32_dpp %s, %s, %s row_mirror row_mask:0xf bank_mask:0xf" % (v, t, t))
        a("s_nop 1")
        a("v_readlane_b32 s20, %s, 0" % v)
        a("v_readlane_b32 s21, %s, 16" % v)
        a("v_readlane_b32 s22, %s, 32" % v)
        a("v_readlane_b32 s23, %s, 48" % v)
        a("s_nop 1")
        a("v_mov_b32 %s, s20" % v)
        a("v_add_f32 %s, s21, %s" % (v, v))
        a("v_add_f32 %s, s22, %s" % (v, v))
        a("v_add_f32 %s, s23, %s" % (v, v))

    a("v_add_f32 v32, v16, v17")
    for i in range(2, 16):
        a("v_add_f32 v32, v32, v%d" % (16 + i))
    reduce("v32", "v33")
    a("v_mul_f32 v32, %s, v32" % f32hex(1.0 / D))
    a("v_sub_f32 v34, v16, v32")
    a("v_mul_f32 v35, v34, v34")
    for i in range(1, 16):
        a("v_sub_f32 v34, v%d, v32" % (16 + i))
        a("v_fmac_f32 v35, v34, v34")
    reduce("v35", "v33")
    a("v_mul_f32 v35, %s, v35" % f32hex(1.0 / D))
    a("v_cvt_pk_bf16_f32 v36, v32, v35")
    a("v_lshlrev_b32 v32, 16, v36")
    a("v_and_b32 v35, 0xffff0000, v36")
    a("v_add_f32 v35, %s, v35" % f32hex(1e-5))
    a("v_cvt_pk_bf16_f32 v36, v35, v35")
    a("v_lshlrev_b32 v35, 16, v36")
    a("v_sqrt_f32 v35, v35")
    a("s_nop 0")
    a("v_cvt_pk_bf16_f32 v36, v35, v35")
    a("v_lshlrev_b32 v35, 16, v36")
    a("v_rcp_f32 v35, v35")
    for i in range(16):
        a("v_sub_f32 v%d, v%d, v32" % (16 + i, 16 + i))
    for i in range(8):
        a("v_cvt_pk_bf16_f32 v%d, v%d, v%d" % (4 + i, 16 + 2 * i, 17 + 2 * i))
    for i in range(8):
        a("v_lshlrev_b32 v%d, 16, v%d" % (16 + 2 * i, 4 + i))
        a("v_and_b32 v%d, 0xffff0000, v%d" % (17 + 2 * i, 4 + i))
    for i in range(16):
        a("v_mul_f32 v%d, v%d, v35" % (16 + i, 16 + i))
    for i in range(8):
        a("v_cvt_pk_bf16_f32 v%d, v%d, v%d" % (4 + i, 16 + 2 * i, 17 + 2 * i))
    a("buffer_store_dwordx4 v[4:7], v1, s[12:15], 0 offen")
    a("buffer_store_dwordx4 v[8:11], v1, s[12:15], 0 offen offset:1024")
    rt_end(a, 4)
    a.label(end)
    a("s_endpgm")
    return kernel_desc(name, 44, 44)


def prefetch_kernel(a, name):
    kernel_header(a, name)
    end = a.newlabel("end")
    a("s_cmp_ge_u32 s2, 1024")
    a("s_cbranch_scc1 %s" % end)
    for i, k in enumerate(['wqkv', 'wo', 'wg', 'wu', 'wd']):
        a("s_load_dwordx2 s[%d:%d], s[0:1], %d" % (40 + 2 * i, 41 + 2 * i, KA[k]))
    a("v_lshlrev_b32 v1, 4, v0")
    a("s_lshl_b32 s3, s2, 12")
    a("v_add_u32 v1, s3, v1")
    a("s_waitcnt lgkmcnt(0)")
    sizes = [D * 3 * D * 2, D * D * 2, D * DF * 2, D * DF * 2, DF * D * 2]
    r = 4
    for i, sz in enumerate(sizes):
        srd_from_ptr(a, 8 + 4 * i, 40 + 2 * i, sz)
        for j in range((sz + (4 << 20) - 1) // (4 << 20)):
            a("s_mov_b32 s4, %d" % (j * (4 << 20)))
            a("buffer_load_dwordx4 v[%d:%d], v1, s[%d:%d], s4 offen" % (r, r + 3, 8 + 4 * i, 11 + 4 * i))
            r += 4
    a("s_waitcnt vmcnt(0)")
    a.label(end)
    a("s_endpgm")
    return kernel_desc(name, 64, 64)

def colsum_code(a, cs, end, NB0):
    a("s_endpgm")
    a.label(cs)
    a("s_cmp_ge_u32 s2, %d" % (NB0 + 448))
    a("s_cbranch_scc1 %s" % end)
    a("s_load_dwordx2 s[4:5], s[0:1], %d" % KA['ws'])
    a("s_load_dwordx4 s[40:43], s[0:1], %d" % KA['wg'])
    a("s_sub_u32 s3, s2, %d" % (NB0))
    a("s_and_b32 s47, s3, 3")
    a("s_lshr_b32 s3, s3, 2")
    a("s_cmp_ge_u32 s3, 56")
    a("s_cselect_b32 s44, 56, 0")
    a("s_sub_u32 s45, s3, s44")
    a("v_and_b32 v1, 7, v0")
    a("v_lshrrev_b32 v2, 3, v0")
    a("s_mov_b32 s46, %d" % (DF * 2))
    a("v_mul_lo_u32 v2, v2, s46")
    a("v_lshl_add_u32 v2, v1, 4, v2")
    a("s_lshl_b32 s46, s45, 7")
    a("v_add_u32 v2, s46, v2")
    a("s_mul_i32 s46, s47, %d" % (256 * DF * 2))
    a("v_add_u32 v2, s46, v2")
    a("s_waitcnt lgkmcnt(0)")
    a("s_cmp_ge_u32 s3, 56")
    a("s_cselect_b32 s40, s42, s40")
    a("s_cselect_b32 s41, s43, s41")
    srd_from_ptr(a, 8, 40, D * DF * 2)
    srd_from_ptr(a, 12, 4, 2 * DF * 4, WS_CS)
    for j in range(8):
        a("s_mov_b32 s46, %d" % (j * 32 * DF * 2))
        a("buffer_load_dwordx4 v[%d:%d], v2, s[8:11], s46 offen" % (16 + 4 * j, 19 + 4 * j))
    for j in range(8):
        a("s_waitcnt vmcnt(%d)" % (7 - j))
        for q in range(4):
            r = 16 + 4 * j + q
            if j == 0:
                a("v_lshlrev_b32 v%d, 16, v%d" % (4 + 2 * q, r))
                a("v_and_b32 v%d, 0xffff0000, v%d" % (5 + 2 * q, r))
            else:
                a("v_lshlrev_b32 v12, 16, v%d" % r)
                a("v_and_b32 v13, 0xffff0000, v%d" % r)
                a("v_add_f32 v%d, v%d, v12" % (4 + 2 * q, 4 + 2 * q))
                a("v_add_f32 v%d, v%d, v13" % (5 + 2 * q, 5 + 2 * q))
    a("v_lshlrev_b32 v3, 5, v0")
    a("ds_write_b128 v3, v[4:7]")
    a("ds_write_b128 v3, v[8:11] offset:16")
    a("s_waitcnt lgkmcnt(0)")
    a("s_barrier")
    a("v_and_b32 v1, 63, v0")
    a("v_lshrrev_b32 v2, 6, v0")
    a("v_lshlrev_b32 v3, 2, v1")
    a("v_lshl_add_u32 v3, v2, 11, v3")
    for j in range(8):
        a("ds_read_b32 v%d, v3 offset:%d" % (4 + j, j * 256))
    a("s_waitcnt lgkmcnt(0)")
    for j in range(1, 8):
        a("v_add_f32 v4, v4, v%d" % (4 + j))
    a("v_lshlrev_b32 v3, 2, v0")
    a("ds_write_b32 v3, v4 offset:8192")
    a("s_waitcnt lgkmcnt(0)")
    a("s_barrier")
    a("v_lshlrev_b32 v3, 2, v1")
    for j in range(4):
        a("ds_read_b32 v%d, v3 offset:%d" % (4 + j, 8192 + j * 256))
    a("s_waitcnt lgkmcnt(0)")
    for j in range(1, 4):
        a("v_add_f32 v4, v4, v%d" % (4 + j))
    a("s_lshl_b32 s46, s3, 8")
    a("v_cmp_gt_u32 vcc, 64, v0")
    a("s_and_saveexec_b64 s[48:49], vcc")
    a("s_cbranch_execz %s" % end)
    a("buffer_atomic_add_f32 v4, v3, s[12:15], s46 offen")


def apply_kernel(a, name):
    kernel_header(a, name)
    end = a.newlabel("end")
    cs = a.newlabel("cs")
    a("s_cmp_ge_u32 s2, 256")
    a("s_cbranch_scc1 %s" % cs)
    rt_begin(a)
    a("s_load_dwordx2 s[4:5], s[0:1], %d" % KA['ws'])
    a("v_lshrrev_b32 v1, 6, v0")
    a("v_and_b32 v0, 63, v0")
    a("s_nop 0")
    a("v_readfirstlane_b32 s28, v1")
    a("v_and_b32 v2, 15, v0")
    a("v_lshrrev_b32 v3, 4, v0")
    a("s_and_b32 s29, s2, 7")
    a("s_lshr_b32 s30, s2, 3")
    a("s_lshl_b32 s29, s29, 2")
    a("s_add_u32 s29, s29, s28")
    a("s_waitcnt lgkmcnt(0)")
    srd_from_ptr(a, 8, 4, S * D * 2, WS_PQ)
    srd_from_ptr(a, 12, 4, 135168, WS_KV)
    srd_from_ptr(a, 16, 4, S * D * 2, WS_O)
    a("v_lshlrev_b32 v4, 7, v2")
    a("v_lshl_add_u32 v4, v3, 5, v4")
    a("s_lshl_b32 s31, s29, 12")
    a("buffer_load_dwordx4 v[8:11], v4, s[12:15], s31 offen")
    a("buffer_load_dwordx4 v[12:15], v4, s[12:15], s31 offen offset:16")
    a("buffer_load_dwordx4 v[16:19], v4, s[12:15], s31 offen offset:2048")
    a("buffer_load_dwordx4 v[20:23], v4, s[12:15], s31 offen offset:2064")
    a("v_lshlrev_b32 v5, 5, v3")
    a("s_lshl_b32 s32, s29, 7")
    a("s_add_u32 s32, s32, 131072")
    a("buffer_load_dwordx4 v[24:27], v5, s[12:15], s32 offen")
    a("buffer_load_dwordx4 v[28:31], v5, s[12:15], s32 offen offset:16")
    a("v_lshlrev_b32 v6, 11, v2")
    a("v_lshl_add_u32 v6, v3, 4, v6")
    a("s_lshl_b32 s33, s30, 17")
    a("s_lshl_b32 s34, s29, 6")
    a("s_add_u32 s33, s33, s34")
    for i in range(4):
        a("s_add_u32 s34, s33, %d" % (i * 32768))
        a("buffer_load_dwordx4 v[%d:%d], v6, s[8:11], s34 offen" % (32 + 4 * i, 35 + 4 * i))
    a("s_waitcnt vmcnt(4)")
    for j in range(4):
        a("v_cvt_pk_bf16_f32 v%d, v%d, v%d" % (48 + j, 8 + 2 * j, 9 + 2 * j))
        a("v_cvt_pk_bf16_f32 v%d, v%d, v%d" % (52 + j, 16 + 2 * j, 17 + 2 * j))
        a("v_cvt_pk_bf16_f32 v%d, v%d, v%d" % (56 + j, 24 + 2 * j, 25 + 2 * j))
    a("s_waitcnt vmcnt(0)")
    a("s_nop 1")
    for i in range(4):
        a("v_mfma_f32_16x16x32_bf16 v[%d:%d], v[48:51], v[%d:%d], 0" % (64 + 12 * i, 67 + 12 * i, 32 + 4 * i, 35 + 4 * i))
        a("v_mfma_f32_16x16x32_bf16 v[%d:%d], v[52:55], v[%d:%d], 0" % (68 + 12 * i, 71 + 12 * i, 32 + 4 * i, 35 + 4 * i))
        a("v_mfma_f32_16x16x32_bf16 v[%d:%d], v[56:59], v[%d:%d], 0" % (72 + 12 * i, 75 + 12 * i, 32 + 4 * i, 35 + 4 * i))
    a("v_lshlrev_b32 v7, 11, v2")
    a("v_lshl_add_u32 v7, v3, 3, v7")
    a("s_nop 7")
    a("s_nop 1")
    for i in range(4):
        b = 64 + 12 * i
        a("v_cvt_pk_bf16_f32 v%d, v%d, v%d" % (b + 8, b + 8, b + 8))
        a("v_lshlrev_b32 v%d, 16, v%d" % (b + 8, b + 8))
        a("v_add_f32 v%d, %s, v%d" % (b + 8, f32hex(1e-6), b + 8))
        a("v_rcp_f32 v%d, v%d" % (b + 8, b + 8))
        a("s_nop 0")
        for r in range(8):
            a("v_mul_f32 v%d, v%d, v%d" % (b + r, b + r, b + 8))
        for r in range(4):
            a("v_cvt_pk_bf16_f32 v%d, v%d, v%d" % (b + r, b + 2 * r, b + 2 * r + 1))
        a("s_add_u32 s34, s33, %d" % (i * 32768))
        a("buffer_store_dwordx2 v[%d:%d], v7, s[16:19], s34 offen" % (b, b + 1))
        a("buffer_store_dwordx2 v[%d:%d], v7, s[16:19], s34 offen offset:32" % (b + 2, b + 3))
    rt_end(a, 5)
    colsum_code(a, cs, end, 256)
    a.label(end)
    a("s_endpgm")
    return kernel_desc(name, 144, 144)


S_WAVE, S_TM, S_TN, S_CNT = 28, 29, 30, 31
S_KX, S_KW, S_RD, S_WR, S_MX, S_MW = 32, 33, 34, 35, 36, 37
S_B = [38, 39, 40]
S_T0 = 42
ACC0 = 28


def wave_affine(a, sd, coefs, tmp, base=0):
    a("s_mov_b32 s%d, %d" % (sd, base))
    for b, c in enumerate(coefs):
        if c:
            a("s_mul_i32 s%d, s%d, %d" % (tmp, S_B[b], c))
            a("s_add_u32 s%d, s%d, s%d" % (sd, sd, tmp))


def gemm_kernel(a, P):
    name = P['name']
    kernel_header(a, name)
    end = a.newlabel("end")
    a("s_cmp_ge_u32 s2, 256")
    a("s_cbranch_scc1 %s" % end)
    if "stamp" in EXP:
        a("s_memtime s[64:65]")
        a("s_load_dwordx2 s[72:73], s[0:1], %d" % KA['dbg'])
    if "rt" in EXP:
        a("s_memrealtime s[64:65]")
    a("s_load_dwordx2 s[4:5], s[0:1], %d" % KA['ws'])
    a("s_load_dwordx2 s[6:7], s[0:1], %d" % KA[P['w'][0]])
    if len(P['w']) > 1:
        a("s_load_dwordx2 s[60:61], s[0:1], %d" % KA[P['w'][1]])
    for (sd, key) in P.get('argptrs', []):
        a("s_load_dwordx2 s[%d:%d], s[0:1], %d" % (sd, sd + 1, KA[key]))
    for i, (key, nb) in enumerate(P.get('pf', []) + P.get('helper', [])):
        a("s_load_dwordx2 s[%d:%d], s[0:1], %d" % (82 + 2 * i, 83 + 2 * i, KA[key]))
    a("v_lshrrev_b32 v1, 6, v0")
    a("v_and_b32 v0, 63, v0")
    a("s_nop 0")
    a("v_readfirstlane_b32 s%d, v1" % S_WAVE)
    a("v_and_b32 v1, 15, v0")
    a("v_lshrrev_b32 v2, 4, v0")
    mblk_bits = P['mblk_bits']
    if P.get('splitk'):
        a("s_and_b32 s%d, s2, 7" % S_T0)
        a("s_lshr_b32 s%d, s2, 3" % (S_T0 + 1))
        a("s_and_b32 s99, s%d, 1" % (S_T0 + 1))
        a("s_lshr_b32 s%d, s%d, 1" % (S_T0 + 1, S_T0 + 1))
        a("s_and_b32 s%d, s%d, 3" % (S_TM, S_T0))
        a("s_lshl_b32 s%d, s%d, 2" % (S_TM, S_TM))
        a("s_and_b32 s%d, s%d, 3" % (S_T0 + 2, S_T0 + 1))
        a("s_add_u32 s%d, s%d, s%d" % (S_TM, S_TM, S_T0 + 2))
        a("s_lshr_b32 s%d, s%d, 2" % (S_TN, S_T0))
        a("s_lshl_b32 s%d, s%d, 2" % (S_TN, S_TN))
        a("s_lshr_b32 s%d, s%d, 2" % (S_T0 + 2, S_T0 + 1))
        a("s_add_u32 s%d, s%d, s%d" % (S_TN, S_TN, S_T0 + 2))
    else:
        a("s_and_b32 s%d, s2, 7" % S_T0)
        a("s_lshr_b32 s%d, s2, 3" % (S_T0 + 1))
        a("s_and_b32 s%d, s%d, %d" % (S_TM, S_T0, (1 << mblk_bits) - 1))
        a("s_lshl_b32 s%d, s%d, 3" % (S_TM, S_TM))
        a("s_and_b32 s%d, s%d, 7" % (S_T0 + 2, S_T0 + 1))
        a("s_add_u32 s%d, s%d, s%d" % (S_TM, S_TM, S_T0 + 2))
        a("s_lshr_b32 s%d, s%d, %d" % (S_TN, S_T0, mblk_bits))
        a("s_lshl_b32 s%d, s%d, 2" % (S_TN, S_TN))
        a("s_lshr_b32 s%d, s%d, 3" % (S_T0 + 2, S_T0 + 1))
        a("s_add_u32 s%d, s%d, s%d" % (S_TN, S_TN, S_T0 + 2))
    a("s_and_b32 s%d, s%d, 1" % (S_B[0], S_WAVE))
    a("s_bfe_u32 s%d, s%d, 0x10001" % (S_B[1], S_WAVE))
    a("s_lshr_b32 s%d, s%d, 2" % (S_B[2], S_WAVE))
    roles = P['roles']
    maxv = 0
    hl = None
    if P.get('helper'):
        hl = a.newlabel("helper")
        a("s_cmp_ge_u32 s%d, %d" % (S_WAVE, P['NW']))
        a("s_cbranch_scc1 %s" % hl)
    if len(roles) == 2:
        r1 = a.newlabel("role1")
        a("s_cmp_ge_u32 s%d, 4" % S_WAVE)
        a("s_cbranch_scc1 %s" % r1)
        nv0 = gemm_body(a, P, roles[0], end)
        a("s_branch %s" % end)
        a.label(r1)
        nv1 = gemm_body(a, P, roles[1], end)
        arch = max(nv0[0], nv1[0]); acc_n = max(nv0[1], nv1[1])
    else:
        arch, acc_n = gemm_body(a, P, roles[0], end)
    if hl:
        a("s_branch %s" % end)
        a.label(hl)
        a("s_waitcnt lgkmcnt(0)")
        a("v_lshlrev_b32 v3, 6, v0")
        loads = []
        for i, (key, nb) in enumerate(P['helper']):
            per = (nb + 256 * 4096 - 1) // (256 * 4096)
            srd_from_ptr(a, 8 + 4 * i, 82 + 2 * i, nb)
            a("s_mul_i32 s%d, s2, %d" % (40 + i, per * 4096))
            for j in range(per):
                loads.append(["buffer_load_dword v4, v3, s[%d:%d], s%d offen" % (8 + 4 * i, 11 + 4 * i, 40 + i),
                              "s_add_u32 s%d, s%d, 4096" % (40 + i, 40 + i)])
        nbar = P['_nbar']
        per_bar = (len(loads) + nbar - 3) // (nbar - 2)
        k = 0
        for b in range(nbar):
            a("s_barrier")
            for _ in range(per_bar):
                if k < len(loads):
                    for x in loads[k]:
                        a(x)
                    k += 1
        assert k == len(loads)
    a.label(end)
    a("s_endpgm")
    arch = (arch + 3) // 4 * 4
    lim = 512 if P['NW'] == 4 else 256
    if hl:
        lim = 256 if P['NW'] == 4 else 168
    assert arch + acc_n <= lim, (name, arch, acc_n)
    return kernel_desc(name, arch + acc_n, arch)


S_RDX, S_WRX, S_RDW, S_WRW = 34, 35, 41, 96


def gemm_body(a, P, R, end):
    BM, K = P['BM'], P['K']
    kbx, kbw, NSX, NSW = P['kbx'], P['kbw'], P['NSX'], P['NSW']
    ldx, ldw = P['ldx'], P['ldw']
    nsteps = K // 32
    TX, TW = nsteps // kbx, nsteps // kbw
    XB = BM * kbx * 64
    WB = P['WB']
    WBASE = NSX * XB
    assert WBASE + NSW * WB <= 163840
    nxp = R['nxp']
    wsl = R['w_slot']
    nwp = len(wsl)
    mt = R['mt']
    ntl = R['ntiles']
    nt = len(ntl)
    wad = R['waddr']
    nwa = len(wad)
    V_L15, V_G = 1, 2
    v = 3
    V_XO = list(range(v, v + nxp)); v += nxp
    V_WO = list(range(v, v + nwp)); v += nwp
    nxa = kbx
    V_XAB = list(range(v, v + nxa)); v += nxa
    V_WAB = list(range(v, v + nwa)); v += nwa
    V_XA = list(range(v, v + nxa)); v += nxa
    V_WA = list(range(v, v + nwa)); v += nwa
    V_T = v; v += 4
    V_PF = V_T + 1 if 'pro' not in P else V_T
    assert v <= ACC0 - 1, v
    nacc = mt * nt * 4

    def acc(i, j):
        return ACC0 + (j * mt + i) * 4
    FS = (mt + nt) * 4

    def xf(s, i):
        return s * FS + i * 4

    def wf(s, j):
        return s * FS + mt * 4 + j * 4

    t0, t1, t2, t3 = V_T, V_T + 1, V_T + 2, V_T + 3
    rpp = 8 if kbx == 2 else 16
    if kbx == 2:
        a("v_lshrrev_b32 v%d, 3, v0" % t0)
        a("v_and_b32 v%d, 7, v0" % t1)
        a("v_xor_b32 v%d, v%d, v%d" % (t1, t1, t0))
    else:
        a("v_lshrrev_b32 v%d, 2, v0" % t0)
        a("v_bfe_u32 v%d, v0, 4, 1" % t2)
        a("v_bfe_u32 v%d, v0, 5, 1" % t3)
        a("v_xor_b32 v%d, v%d, v%d" % (t2, t2, t3))
        a("v_lshl_or_b32 v%d, v%d, 1, v%d" % (t2, t2, t3))
        a("v_and_b32 v%d, 3, v0" % t1)
        a("v_xor_b32 v%d, v%d, v%d" % (t1, t1, t2))
    wave_affine(a, S_T0, [c * rpp for c in R['xp_coef']], S_T0 + 1)
    a("s_mul_i32 s%d, s%d, %d" % (S_T0 + 1, S_TM, BM))
    a("s_add_u32 s%d, s%d, s%d" % (S_T0, S_T0, S_T0 + 1))
    a("v_add_u32 v%d, s%d, v%d" % (t0, S_T0, t0))
    a("s_mov_b32 s%d, %d" % (S_T0 + 1, ldx))
    a("v_mul_lo_u32 v%d, v%d, s%d" % (t0, t0, S_T0 + 1))
    a("v_lshl_add_u32 v%d, v%d, 4, v%d" % (V_XO[0], t1, t0))
    for i in range(1, nxp):
        a("v_add_u32 v%d, 0x%x, v%d" % (V_XO[i], i * rpp * ldx, V_XO[0]))
    wave_affine(a, S_MX, [c * 1024 for c in R['xp_coef']], S_T0)
    a("s_mul_i32 s%d, s%d, %d" % (S_T0 + 2, S_TN, P['tn_bytes']))
    a("s_mov_b32 s%d, %d" % (S_T0 + 3, ldw))
    for typ in ('A', 'B'):
        sl = [i for i in range(nwp) if wsl[i][0] == typ]
        if not sl:
            continue
        if typ == 'A':
            a("v_lshrrev_b32 v%d, 3, v0" % t0)
            a("v_bfe_u32 v%d, v0, 4, 1" % t2)
            a("v_lshlrev_b32 v%d, 1, v%d" % (t2, t2))
            a("v_and_b32 v%d, 7, v0" % t1)
            a("v_xor_b32 v%d, v%d, v%d" % (t1, t1, t2))
        else:
            a("v_lshrrev_b32 v%d, 2, v0" % t0)
            a("v_lshrrev_b32 v%d, 5, v0" % t2)
            a("v_lshlrev_b32 v%d, 1, v%d" % (t2, t2))
            a("v_and_b32 v%d, 3, v0" % t1)
            a("v_xor_b32 v%d, v%d, v%d" % (t1, t1, t2))
        a("v_mul_lo_u32 v%d, v%d, s%d" % (t0, t0, S_T0 + 3))
        wave_affine(a, S_T0, R['wg_coef' + typ], S_T0 + 1)
        a("s_add_u32 s%d, s%d, s%d" % (S_T0, S_T0, S_T0 + 2))
        if 'par_off' + typ in P:
            c0, c1 = P['par_off' + typ]
            a("s_and_b32 s%d, s%d, 1" % (S_T0 + 1, S_TN))
            a("s_cmp_lg_u32 s%d, 0" % (S_T0 + 1))
            a("s_cselect_b32 s%d, %d, %d" % (S_T0 + 1, c1, c0))
            a("s_add_u32 s%d, s%d, s%d" % (S_T0, S_T0, S_T0 + 1))
        a("v_add_u32 v%d, s%d, v%d" % (t0, S_T0, t0))
        if typ == 'A':
            kp = R['ko_par']
            for i in sl:
                par_c, par_bit = wsl[i][3], kp
                if par_bit is None:
                    a("v_xor_b32 v%d, %d, v%d" % (t2, par_c * 4, t1))
                else:
                    a("s_lshl_b32 s%d, s%d, 2" % (S_T0 + 1, S_B[par_bit]))
                    a("s_xor_b32 s%d, s%d, %d" % (S_T0 + 1, S_T0 + 1, par_c * 4))
                    a("v_xor_b32 v%d, s%d, v%d" % (t2, S_T0 + 1, t1))
                a("v_lshl_add_u32 v%d, v%d, 4, v%d" % (t2, t2, t0))
                a("v_add_u32 v%d, 0x%x, v%d" % (V_WO[i], wsl[i][1], t2))
        else:
            a("v_lshl_add_u32 v%d, v%d, 4, v%d" % (t0, t1, t0))
            for i in sl:
                a("v_add_u32 v%d, 0x%x, v%d" % (V_WO[i], wsl[i][1], t0))
    S_MWA, S_MWB = S_MW, 97
    wave_affine(a, S_MWA, R['wl_coefA'], S_T0, base=WBASE)
    if any(w[0] == 'B' for w in wsl):
        wave_affine(a, S_MWB, R['wl_coefB'], S_T0, base=WBASE)
    a("s_waitcnt lgkmcnt(0)")
    srd_from_ptr(a, 8, 4, S * ldx, P['x_ws'])
    if len(P['w']) > 1:
        a("s_cmp_lg_u32 s%d, 0" % S_B[P['wsel_bit']])
        a("s_cselect_b32 s6, s60, s6")
        a("s_cselect_b32 s7, s61, s7")
    srd_from_ptr(a, 12, 6, K * ldw * P.get('splitk', 1))

    def dma_x():
        g = []
        for i in range(nxp):
            g.append(["s_add_u32 s%d, s%d, s%d" % (S_T0, S_WRX, S_MX),
                      "s_add_u32 m0, s%d, %d" % (S_T0, i * 1024),
                      "s_nop 0",
                      "buffer_load_dwordx4 v%d, s[8:11], s%d offen lds" % (V_XO[i], S_KX)])
        g.append(["s_add_u32 s%d, s%d, %d" % (S_KX, S_KX, kbx * 64)])
        return g

    def dma_w():
        g = []
        for i in range(nwp):
            g.append(["s_add_u32 s%d, s%d, s%d" % (S_T0, S_WRW, S_MWA if wsl[i][0] == 'A' else S_MWB),
                      "s_add_u32 m0, s%d, %d" % (S_T0, wsl[i][2]),
                      "s_nop 0",
                      "buffer_load_dwordx4 v%d, s[12:15], s%d offen lds" % (V_WO[i], S_KW)])
        g.append(["s_add_u32 s%d, s%d, %d" % (S_KW, S_KW, kbw * 32 * ldw)])
        return g

    issued = []

    def sim_issue(op, tile):
        for _ in range(nxp if op == 'X' else nwp):
            issued.append((op, tile))

    def sim_wait(s):
        need = {('X', s // kbx), ('W', s // kbw)}
        last = max(i for i, e in enumerate(issued) if e in need)
        return len(issued) - 1 - last

    npre = 0
    if 'pre' in P and 'nostat' not in EXP:
        npre = P['pre'](a, dict(R=R, V_L15=V_L15, V_G=V_G, V_T=V_T))
        issued.extend([('P', 0)] * npre)
    if P.get('splitk'):
        a("s_mul_i32 s%d, s99, %d" % (S_KX, K * 2))
        a("s_mul_i32 s%d, s99, %d" % (S_KW, K * ldw))
    else:
        a("s_mov_b32 s%d, 0" % S_KX)
        a("s_mov_b32 s%d, 0" % S_KW)
    a("s_mov_b32 s%d, 0" % S_WRX)
    a("s_mov_b32 s%d, 0" % S_WRW)
    order = sorted([(t * kbx, 0, 'X', t) for t in range(NSX - 1)] + [(t * kbw, 1, 'W', t) for t in range(NSW - 1)])
    for (_, _, op, t) in order:
        for g in (dma_x() if op == 'X' else dma_w()):
            for x in g:
                a(x)
        sim_issue(op, t)
        if op == 'X':
            a("s_add_u32 s%d, s%d, %d" % (S_WRX, S_WRX, XB))
        else:
            a("s_add_u32 s%d, s%d, %d" % (S_WRW, S_WRW, WB))
    P['srds'](a)
    if kbx == 2:
        a("v_and_b32 v%d, 7, v0" % t0)
        a("v_xor_b32 v%d, v%d, v%d" % (t0, t0, V_G))
        a("v_lshlrev_b32 v%d, 4, v%d" % (t0, t0))
        a("v_lshl_add_u32 v%d, v%d, 7, v%d" % (t0, V_L15, t0))
        wave_affine(a, S_T0, [c * 128 for c in R['row_coef']], S_T0 + 1)
        a("v_add_u32 v%d, s%d, v%d" % (V_XAB[0], S_T0, t0))
        a("v_xor_b32 v%d, 64, v%d" % (V_XAB[1], V_XAB[0]))
        xmstride = 2048
    else:
        a("v_bfe_u32 v%d, v0, 2, 1" % t2)
        a("v_bfe_u32 v%d, v0, 3, 1" % t3)
        a("v_xor_b32 v%d, v%d, v%d" % (t2, t2, t3))
        a("v_lshl_or_b32 v%d, v%d, 1, v%d" % (t2, t2, t3))
        a("v_xor_b32 v%d, v%d, v%d" % (t0, t2, V_G))
        a("v_lshlrev_b32 v%d, 4, v%d" % (t0, t0))
        a("v_lshl_add_u32 v%d, v%d, 6, v%d" % (t0, V_L15, t0))
        wave_affine(a, S_T0, [c * 64 for c in R['row_coef']], S_T0 + 1)
        a("v_add_u32 v%d, s%d, v%d" % (V_XAB[0], S_T0, t0))
        xmstride = 1024
    done = {}
    for wi, (typ, xc) in enumerate(wad):
        if typ in done:
            a("v_xor_b32 v%d, %d, v%d" % (V_WAB[wi], xc, V_WAB[done[typ]]))
            continue
        done[typ] = wi
        assert xc == 0
        if typ == 'A':
            a("s_mov_b32 s%d, %d" % (S_T0, P['kostrideA']))
            a("v_mul_lo_u32 v%d, v%d, s%d" % (t0, V_G, S_T0))
            a("v_lshrrev_b32 v%d, 2, v%d" % (t2, V_L15))
            a("v_lshl_add_u32 v%d, v%d, 7, v%d" % (t0, t2, t0))
            a("v_bfe_u32 v%d, v0, 3, 2" % t1)
            wave_affine(a, S_T0, R['t_coefA'], S_T0 + 1)
            a("v_xor_b32 v%d, s%d, v%d" % (t1, S_T0, t1))
            a("v_lshl_add_u32 v%d, v%d, 5, v%d" % (t0, t1, t0))
        else:
            a("v_lshrrev_b32 v%d, 1, v%d" % (t0, V_G))
            a("s_mov_b32 s%d, %d" % (S_T0, P['k16strideB']))
            a("v_mul_lo_u32 v%d, v%d, s%d" % (t0, t0, S_T0))
            a("v_and_b32 v%d, 1, v%d" % (t1, V_G))
            a("v_lshrrev_b32 v%d, 2, v%d" % (t2, V_L15))
            a("v_lshl_add_u32 v%d, v%d, 3, v%d" % (t2, t1, t2))
            a("v_lshl_add_u32 v%d, v%d, 6, v%d" % (t0, t2, t0))
            wave_affine(a, S_T0, R['t_coefB'], S_T0 + 1)
            a("v_xor_b32 v%d, s%d, v%d" % (t1, S_T0, t1))
            a("v_lshl_add_u32 v%d, v%d, 5, v%d" % (t0, t1, t0))
        a("v_bfe_u32 v%d, v0, 1, 1" % t2)
        a("v_lshl_add_u32 v%d, v%d, 4, v%d" % (t0, t2, t0))
        a("v_and_b32 v%d, 1, v0" % t2)
        a("v_lshl_add_u32 v%d, v%d, 3, v%d" % (t0, t2, t0))
        wave_affine(a, S_T0, R['wr_coef'], S_T0 + 1, base=WBASE)
        a("v_add_u32 v%d, s%d, v%d" % (V_WAB[wi], S_T0, t0))

    def reads(fs, s):
        r = []
        ksx = s % kbx
        ksw = s % kbw
        for i in range(mt):
            r.append(["ds_read_b128 a[%d:%d], v%d offset:%d" % (xf(fs, i), xf(fs, i) + 3, V_XA[ksx], i * xmstride)])
        for j, (asel, loff, sw) in enumerate(ntl):
            typ = wad[asel][0]
            for hf in range(2):
                if typ == 'A':
                    off = loff + hf * 512 + ksw * 4 * P['kostrideA']
                else:
                    off = loff + hf * 256 + ksw * 2 * P['k16strideB']
                r.append(["ds_read_b64_tr_b16 a[%d:%d], v%d offset:%d" % (wf(fs, j) + 2 * hf, wf(fs, j) + 2 * hf + 1, V_WA[asel], off)])
        return r

    def mfmas(fs, first):
        m = []
        for j, (asel, loff, sw) in enumerate(ntl):
            for i in range(mt):
                A, B = (wf(fs, j), xf(fs, i)) if sw else (xf(fs, i), wf(fs, j))
                c = acc(i, j)
                cin = "0" if first else "v[%d:%d]" % (c, c + 3)
                m.append("v_mfma_f32_16x16x32_bf16 v[%d:%d], a[%d:%d], a[%d:%d], %s" % (c, c + 3, A, A + 3, B, B + 3, cin))
        return m

    def upd_x():
        return ["v_add_u32 v%d, s%d, v%d" % (V_XA[x], S_RDX, V_XAB[x]) for x in range(nxa)]

    def upd_w():
        return ["v_add_u32 v%d, s%d, v%d" % (V_WA[x], S_RDW, V_WAB[x]) for x in range(nwa)]

    if 'pro' in P and 'nostat' not in EXP:
        P['pro'](a, dict(R=R, V_L15=V_L15, V_G=V_G, V_T=V_T, nissued=len(issued) - npre))
    a("s_mov_b32 s%d, 0" % S_RDX)
    a("s_mov_b32 s%d, 0" % S_RDW)
    for x in upd_x() + upd_w():
        a(x)
    a("s_waitcnt vmcnt(%d)" % sim_wait(0))
    a("s_barrier")
    for r in reads(0, 0):
        for x in r:
            a(x)
    for g in dma_x() + dma_w():
        for x in g:
            a(x)
    sim_issue('X', NSX - 1)
    sim_issue('W', NSW - 1)
    a("s_waitcnt lgkmcnt(0)")

    def gen_step(n):
        o = []
        fs = n & 1
        last = (n + 1 == nsteps)
        s1 = n + 1
        evx = (not last) and (s1 % kbx == 0)
        evw = (not last) and (s1 % kbw == 0)
        extras = []
        dmas = []
        if evx or evw:
            if evx:
                o += ["s_mov_b32 s%d, s%d" % (S_WRX, S_RDX),
                      "s_add_u32 s%d, s%d, %d" % (S_RDX, S_RDX, XB),
                      "s_cmp_eq_u32 s%d, %d" % (S_RDX, NSX * XB),
                      "s_cselect_b32 s%d, 0, s%d" % (S_RDX, S_RDX)] + upd_x()
            if evw:
                o += ["s_mov_b32 s%d, s%d" % (S_WRW, S_RDW),
                      "s_add_u32 s%d, s%d, %d" % (S_RDW, S_RDW, WB),
                      "s_cmp_eq_u32 s%d, %d" % (S_RDW, NSW * WB),
                      "s_cselect_b32 s%d, 0, s%d" % (S_RDW, S_RDW)] + upd_w()
            o.append("s_waitcnt vmcnt(%d)" % sim_wait(s1))
            o.append("s_barrier")
            if evw and s1 // kbw - 1 + NSW < TW:
                dmas += dma_w()
                sim_issue('W', s1 // kbw - 1 + NSW)
            if evx and s1 // kbx - 1 + NSX < TX:
                dmas += dma_x()
                sim_issue('X', s1 // kbx - 1 + NSX)
        if not last and "noread" not in EXP:
            extras += reads(fs ^ 1, s1)
        if "nodma" not in EXP:
            extras += dmas
        if n == P.get('pf_step', nsteps - 4) and P.get('pf'):
            g = []
            for i, (key, nb) in enumerate(P['pf']):
                per = (nb + 256 * P['NW'] * 4096 - 1) // (256 * P['NW'] * 4096)
                g += ["s_mov_b32 s88, s%d" % (82 + 2 * i), "s_mov_b32 s89, s%d" % (83 + 2 * i),
                      "s_mov_b32 s90, 0x%x" % nb, "s_mov_b32 s91, 0x00020000",
                      "s_mul_i32 s98, s2, %d" % P['NW'],
                      "s_add_u32 s98, s98, s%d" % S_WAVE,
                      "s_mul_i32 s98, s98, %d" % (per * 4096),
                      "v_lshlrev_b32 v%d, 6, v0" % V_T]
                for j in range(per):
                    g += ["buffer_load_dword v%d, v%d, s[88:91], s%d offen" % (V_PF, V_T, 98),
                          "s_add_u32 s98, s98, 4096"]
                    issued.append(('P', 0))
            extras.append(g)
        if n == nsteps - 3 and 'early' in P:
            ee = P['early'](dict(R=R, V_L15=V_L15, V_G=V_G, mt=mt, nt=nt, free=ACC0 + nacc))
            extras += ee
            issued.extend([('P', 0)] * sum(1 for g in ee for x in g if x.startswith("buffer_")))
        if last and 'last_extras' in P:
            extras += P['last_extras'](dict(R=R, V_L15=V_L15, V_G=V_G, V_XO=V_XO, afree=xf(fs ^ 1, 0)))
        mm = mfmas(fs, n == 0)
        if "nomfma" in EXP:
            mm = ["s_nop 0"] * 2
        nm = len(mm)
        ne = len(extras)
        span = max(1, int(nm * P.get('span', 0.85)))
        pos = [min(nm - 1, (k * span) // max(ne, 1)) for k in range(ne)]
        k = 0
        for idx, m in enumerate(mm):
            o.append(m)
            while k < ne and pos[k] == idx:
                o += extras[k]
                k += 1
        if not last:
            o.append("s_waitcnt lgkmcnt(0)")
        return o

    if "stamp" in EXP:
        a("s_memtime s[66:67]")
        a("s_memrealtime s[92:93]")
        a("s_waitcnt lgkmcnt(0)")
    if "rt" in EXP:
        a("s_memrealtime s[66:67]")
        a("s_waitcnt lgkmcnt(0)")
    codes = [gen_step(n) for n in range(nsteps)]
    P['_nbar'] = 1 + sum(c.count("s_barrier") for c in codes) + P.get('epi_bars', 0)
    bodies = [codes[n] + codes[n + 1] for n in range(0, nsteps, 2)]
    i = 0
    while i < len(bodies):
        j = i
        while j + 1 < len(bodies) and bodies[j + 1] == bodies[i]:
            j += 1
        cnt = j - i + 1
        if cnt >= 3:
            a("s_mov_b32 s%d, %d" % (S_CNT, cnt))
            loop = a.newlabel("loop")
            a.label(loop)
            for x in bodies[i]:
                a(x)
            a("s_sub_u32 s%d, s%d, 1" % (S_CNT, S_CNT))
            a("s_cmp_lg_u32 s%d, 0" % S_CNT)
            a("s_cbranch_scc1 %s" % loop)
        else:
            for b in bodies[i:j + 1]:
                for x in b:
                    a(x)
        i = j + 1
    if "stamp" in EXP:
        a("s_memtime s[68:69]")
        a("s_memrealtime s[94:95]")
        a("s_waitcnt lgkmcnt(0)")
    if "rt" in EXP:
        a("s_memrealtime s[68:69]")
        a("s_waitcnt lgkmcnt(0)")
    a("s_nop 7")
    ctx = dict(acc=acc, mt=mt, nt=nt, V_L15=V_L15, V_G=V_G, BM=BM, nacc=nacc, R=R, free=ACC0 + nacc, afree=xf(nsteps & 1, 0))
    top = P['epilogue'](a, ctx)
    if "rt" in EXP:
        a("s_waitcnt vmcnt(0)")
        a("s_memrealtime s[70:71]")
        a("s_waitcnt lgkmcnt(0)")
        a("s_cmp_lg_u32 s%d, 0" % S_WAVE)
        a("s_cbranch_scc1 %s" % end)
        srd_from_ptr(a, 76, 4, 65536, 64 * MB + P['rtidx'] * 65536)
        a("v_mov_b32 v4, s64")
        a("v_mov_b32 v5, s66")
        a("v_mov_b32 v6, s68")
        a("v_mov_b32 v7, s70")
        a("s_lshl_b32 s80, s2, 4")
        a("v_mov_b32 v8, s80")
        a("s_mov_b64 exec, 1")
        a("buffer_store_dwordx4 v[4:7], v8, s[76:79], 0 offen")
    if "stamp" in EXP:
        a("s_waitcnt vmcnt(0)")
        a("s_memtime s[70:71]")
        a("s_waitcnt lgkmcnt(0)")
        a("s_cmp_lg_u32 s%d, 0" % S_WAVE)
        a("s_cbranch_scc1 %s" % end)
        a("s_cmp_ge_u32 s2, 16")
        a("s_cbranch_scc1 %s" % end)
        a("s_sub_u32 s66, s66, s64")
        a("s_sub_u32 s68, s68, s64")
        a("s_sub_u32 s70, s70, s64")
        a("s_mov_b32 s76, s72")
        a("s_mov_b32 s77, s73")
        a("s_mov_b32 s78, 256")
        a("s_mov_b32 s79, 0x20000")
        a("s_sub_u32 s64, s94, s92")
        a("v_mov_b32 v4, s64")
        a("v_mov_b32 v5, s66")
        a("v_mov_b32 v6, s68")
        a("v_mov_b32 v7, s70")
        a("s_lshl_b32 s80, s2, 4")
        a("v_mov_b32 v8, s80")
        a("s_mov_b64 exec, 1")
        a("buffer_store_dwordx4 v[4:7], v8, s[76:79], 0 offen")
    return max(top or 0, ACC0 + nacc), 2 * FS


def phi_ops(a, regs, tmp):
    for r, t in zip(regs, tmp):
        a("v_min_f32 v%d, 0, v%d" % (t, r))
    for r, t in zip(regs, tmp):
        a("v_mul_f32 v%d, %s, v%d" % (t, f32hex(LOG2E), t))
    for r, t in zip(regs, tmp):
        a("v_exp_f32 v%d, v%d" % (t, t))
    for r, t in zip(regs, tmp):
        a("v_max_f32 v%d, 0, v%d" % (r, r))
    for r, t in zip(regs, tmp):
        a("v_add_f32 v%d, v%d, v%d" % (r, r, t))
    for r, t in zip(regs, tmp):
        a("v_add_f32 v%d, %s, v%d" % (r, f32hex(1e-6), r))


def round4(a, c, t0, t1):
    a("v_cvt_pk_bf16_f32 v%d, v%d, v%d" % (t0, c, c + 1))
    a("v_cvt_pk_bf16_f32 v%d, v%d, v%d" % (t1, c + 2, c + 3))
    a("v_lshlrev_b32 v%d, 16, v%d" % (c, t0))
    a("v_and_b32 v%d, 0xffff0000, v%d" % (c + 1, t0))
    a("v_lshlrev_b32 v%d, 16, v%d" % (c + 2, t1))
    a("v_and_b32 v%d, 0xffff0000, v%d" % (c + 3, t1))


def epi_gemm1(a, c):
    acc, V_L15, V_G, R = c['acc'], c['V_L15'], c['V_G'], c['R']
    F = c['free']
    TMP = 4
    wave_affine(a, S_T0, [r * 2048 for r in R['row_coef']], S_T0 + 1)
    a("s_lshl_b32 s%d, s%d, 18" % (S_T0 + 1, S_TM))
    a("s_add_u32 s%d, s%d, s%d" % (S_T0, S_T0, S_T0 + 1))
    a("s_lshl_b32 s%d, s%d, 7" % (S_T0 + 1, S_TN))
    a("s_add_u32 s%d, s%d, s%d" % (S_T0, S_T0, S_T0 + 1))
    a("s_lshl_b32 s%d, s%d, 6" % (S_T0 + 1, S_B[1]))
    a("s_add_u32 s%d, s%d, s%d" % (S_T0, S_T0, S_T0 + 1))
    a("s_add_u32 s%d, s%d, %d" % (S_T0 + 1, S_T0, 16 * 2048))
    a("v_lshlrev_b32 v8, 11, v%d" % V_L15)
    a("v_lshl_add_u32 v8, v%d, 3, v8" % V_G)
    PK, VF, ONE = F, F + 8, F + 16
    KVA, ZA = acc(0, 2), acc(0, 2) + 16
    top = F + 20
    for i in range(2):
        for dt in range(2):
            cc = acc(i, 2 + dt)
            round4(a, cc, TMP, TMP + 1)
            phi_ops(a, [cc + r for r in range(4)], [TMP + r for r in range(4)])
            d = PK + dt * 4 + i * 2
            a("v_cvt_pk_bf16_f32 v%d, v%d, v%d" % (d, cc, cc + 1))
            a("v_cvt_pk_bf16_f32 v%d, v%d, v%d" % (d + 1, cc + 2, cc + 3))
        for et in range(2):
            cc = acc(i, 4 + et)
            d = VF + et * 4 + i * 2
            a("v_cvt_pk_bf16_f32 v%d, v%d, v%d" % (d, cc, cc + 1))
            a("v_cvt_pk_bf16_f32 v%d, v%d, v%d" % (d + 1, cc + 2, cc + 3))
    for r in range(4):
        a("v_mov_b32 v%d, 0x3f803f80" % (ONE + r))
    a("s_nop 1")
    for et in range(2):
        for dt in range(2):
            d = KVA + (et * 2 + dt) * 4
            A = VF + et * 4
            B = PK + dt * 4
            a("v_mfma_f32_16x16x32_bf16 v[%d:%d], v[%d:%d], v[%d:%d], 0" % (d, d + 3, A, A + 3, B, B + 3))
    for dt in range(2):
        d = ZA + dt * 4
        B = PK + dt * 4
        a("v_mfma_f32_16x16x32_bf16 v[%d:%d], v[%d:%d], v[%d:%d], 0" % (d, d + 3, ONE, ONE + 3, B, B + 3))
    for i in range(2):
        for j in range(2):
            cc = acc(i, j)
            round4(a, cc, TMP, TMP + 1)
            phi_ops(a, [cc + r for r in range(4)], [TMP + r for r in range(4)])
            a("v_cvt_pk_bf16_f32 v%d, v%d, v%d" % (cc, cc, cc + 1))
            a("v_cvt_pk_bf16_f32 v%d, v%d, v%d" % (cc + 1, cc + 2, cc + 3))
            a("buffer_store_dwordx2 v[%d:%d], v8, s[16:19], s%d offen offset:%d" % (cc, cc + 1, S_T0 + i, j * 32))
    a("s_barrier")
    a("s_mul_i32 s%d, s%d, 5120" % (S_T0 + 2, S_WAVE))
    a("v_lshlrev_b32 v9, 4, v0")
    a("v_add_u32 v9, s%d, v9" % (S_T0 + 2))
    for t in range(4):
        a("ds_write_b128 v9, v[%d:%d] offset:%d" % (KVA + 4 * t, KVA + 4 * t + 3, t * 1024))
    a("v_mov_b32 v%d, v%d" % (ZA + 1, ZA + 4))
    a("ds_write_b64 v9, v[%d:%d] offset:4096" % (ZA, ZA + 1))
    a("s_waitcnt lgkmcnt(0)")
    a("s_barrier")
    wave_affine(a, S_T0 + 2, [1024, 2 * 5120, 2048], S_T0 + 3)
    a("v_lshlrev_b32 v9, 4, v0")
    a("v_add_u32 v9, s%d, v9" % (S_T0 + 2))
    for k, wv in enumerate((0, 1, 4, 5)):
        a("ds_read_b128 v[%d:%d], v9 offset:%d" % (KVA + 4 * k, KVA + 4 * k + 3, wv * 5120))
    wave_affine(a, S_T0 + 3, [0, 2 * 5120, 0], S_T0 + 4, base=4096)
    a("v_lshlrev_b32 v10, 4, v0")
    a("v_add_u32 v10, s%d, v10" % (S_T0 + 3))
    for k, wv in enumerate((0, 1, 4, 5)):
        a("ds_read_b64 v[%d:%d], v10 offset:%d" % (ZA + 2 * k, ZA + 2 * k + 1, wv * 5120))
    a("s_lshl_b32 s%d, s%d, 1" % (S_T0, S_TN))
    a("s_add_u32 s%d, s%d, s%d" % (S_T0, S_T0, S_B[1]))
    a("s_lshl_b32 s%d, s%d, 12" % (S_T0 + 1, S_T0))
    wave_affine(a, S_T0 + 4, [64, 0, 2048], S_T0 + 5)
    a("s_add_u32 s%d, s%d, s%d" % (S_T0 + 1, S_T0 + 1, S_T0 + 4))
    a("s_lshl_b32 s%d, s%d, 7" % (S_T0 + 2, S_T0))
    a("s_add_u32 s%d, s%d, 131072" % (S_T0 + 2, S_T0 + 2))
    a("v_lshlrev_b32 v8, 9, v%d" % V_G)
    a("v_lshl_add_u32 v8, v%d, 2, v8" % V_L15)
    a("v_lshlrev_b32 v9, 2, v%d" % V_L15)
    a("s_waitcnt lgkmcnt(0)")
    for r in range(4):
        a("v_add_f32 v%d, v%d, v%d" % (KVA + r, KVA + r, KVA + 4 + r))
        a("v_add_f32 v%d, v%d, v%d" % (KVA + 8 + r, KVA + 8 + r, KVA + 12 + r))
    for r in range(4):
        a("v_add_f32 v%d, v%d, v%d" % (KVA + r, KVA + r, KVA + 8 + r))
    for r in range(4):
        a("buffer_atomic_add_f32 v%d, v8, s[20:23], s%d offen offset:%d" % (KVA + r, S_T0 + 1, r * 128))
    skip = a.newlabel("noz")
    a("s_or_b32 s%d, s%d, s%d" % (S_T0 + 3, S_B[0], S_B[2]))
    a("s_cmp_lg_u32 s%d, 0" % (S_T0 + 3))
    a("s_cbranch_scc1 %s" % skip)
    for r in range(2):
        a("v_add_f32 v%d, v%d, v%d" % (ZA + r, ZA + r, ZA + 2 + r))
        a("v_add_f32 v%d, v%d, v%d" % (ZA + 4 + r, ZA + 4 + r, ZA + 6 + r))
    for r in range(2):
        a("v_add_f32 v%d, v%d, v%d" % (ZA + r, ZA + r, ZA + 4 + r))
    a("s_mov_b64 exec, 0xffff")
    for dt in range(2):
        a("buffer_atomic_add_f32 v%d, v9, s[20:23], s%d offen offset:%d" % (ZA + dt, S_T0 + 2, dt * 64))
    a("s_mov_b64 exec, -1")
    a.label(skip)
    return top


def xreduce(a, v, t):
    a("v_mov_b32 v%d, v%d" % (t, v))
    a("s_nop 1")
    a("v_permlane16_swap_b32 v%d, v%d" % (v, t))
    a("s_nop 1")
    a("v_add_f32 v%d, v%d, v%d" % (v, v, t))
    a("v_mov_b32 v%d, v%d" % (t, v))
    a("s_nop 1")
    a("v_permlane32_swap_b32 v%d, v%d" % (v, t))
    a("s_nop 1")
    a("v_add_f32 v%d, v%d, v%d" % (v, v, t))


def early_resid(c):
    V_L15, V_G, mt, nt, F = c['V_L15'], c['V_G'], c['mt'], c['nt'], c['free']
    T = 50
    g = ["s_lshl_b32 s%d, s%d, 6" % (T, S_TM),
         "s_lshl_b32 s%d, s%d, 5" % (T + 1, S_B[0]),
         "s_add_u32 s%d, s%d, s%d" % (T, T, T + 1),
         "s_lshl_b32 s%d, s%d, 11" % (T, T),
         "s_lshl_b32 s%d, s%d, 8" % (T + 1, S_TN),
         "s_add_u32 s%d, s%d, s%d" % (T, T, T + 1),
         "s_lshl_b32 s%d, s%d, 5" % (T + 1, S_B[1]),
         "s_add_u32 s%d, s%d, s%d" % (T, T, T + 1),
         "s_add_u32 s%d, s%d, %d" % (T + 1, T, 16 * 2048),
         "v_lshlrev_b32 v%d, 11, v%d" % (F, V_L15),
         "v_lshl_add_u32 v%d, v%d, 3, v%d" % (F, V_G, F)]
    for i in range(mt):
        for j in range(nt):
            d = F + 2 + (i * nt + j) * 2
            g.append("buffer_load_dwordx2 v[%d:%d], v%d, s[20:23], s%d offen offset:%d" % (d, d + 1, F, T + i, j * 64))
    return [g]


def epi_resid_stats(a, c):
    return epi_resid(a, c, True)


def epi_resid(a, c, stats=False):
    acc, V_L15, V_G, mt, nt = c['acc'], c['V_L15'], c['V_G'], c['mt'], c['nt']
    F = c['free']
    Rr = F + 2
    S_T0 = 50
    for i in range(mt):
        for j in range(nt):
            round4(a, acc(i, j), 4, 5)
    a("s_waitcnt vmcnt(0)")
    for i in range(mt):
        for j in range(nt):
            d = Rr + (i * nt + j) * 2
            cc = acc(i, j)
            a("v_lshlrev_b32 v4, 16, v%d" % d)
            a("v_and_b32 v5, 0xffff0000, v%d" % d)
            a("v_add_f32 v%d, v%d, v4" % (cc, cc))
            a("v_add_f32 v%d, v%d, v5" % (cc + 1, cc + 1))
            a("v_lshlrev_b32 v4, 16, v%d" % (d + 1))
            a("v_and_b32 v5, 0xffff0000, v%d" % (d + 1))
            a("v_add_f32 v%d, v%d, v4" % (cc + 2, cc + 2))
            a("v_add_f32 v%d, v%d, v5" % (cc + 3, cc + 3))
            a("v_cvt_pk_bf16_f32 v%d, v%d, v%d" % (d, cc, cc + 1))
            a("v_cvt_pk_bf16_f32 v%d, v%d, v%d" % (d + 1, cc + 2, cc + 3))
            a("buffer_store_dwordx2 v[%d:%d], v%d, s[16:19], s%d offen offset:%d" % (d, d + 1, F, S_T0 + i, j * 64))
    if stats:
        a("s_lshl_b32 s%d, s%d, 6" % (S_T0 + 2, S_TM))
        a("s_lshl_b32 s%d, s%d, 5" % (S_T0 + 3, S_B[0]))
        a("s_add_u32 s%d, s%d, s%d" % (S_T0 + 2, S_T0 + 2, S_T0 + 3))
        a("s_lshl_b32 s%d, s%d, 6" % (S_T0 + 2, S_T0 + 2))
        a("s_lshl_b32 s%d, s%d, 3" % (S_T0 + 3, S_TN))
        a("s_add_u32 s%d, s%d, s%d" % (S_T0 + 2, S_T0 + 2, S_T0 + 3))
        a("v_lshlrev_b32 v9, 6, v%d" % V_L15)
        for i in range(mt):
            regs = [acc(i, j) + r for j in range(nt) for r in range(4)]
            m, q = 10 + 2 * i, 11 + 2 * i
            a("v_add_f32 v%d, v%d, v%d" % (m, regs[0], regs[1]))
            for r in regs[2:]:
                a("v_add_f32 v%d, v%d, v%d" % (m, m, r))
            xreduce(a, m, 4)
            a("v_mul_f32 v%d, %s, v%d" % (m, f32hex(1.0 / 64), m))
            a("v_sub_f32 v4, v%d, v%d" % (regs[0], m))
            a("v_mul_f32 v%d, v4, v4" % q)
            for r in regs[1:]:
                a("v_sub_f32 v4, v%d, v%d" % (r, m))
                a("v_fmac_f32 v%d, v4, v4" % q)
            xreduce(a, q, 4)
        a("s_barrier")
        a("v_lshlrev_b32 v14, 4, v0")
        a("s_lshl_b32 s%d, s%d, 10" % (S_T0 + 3, S_B[0]))
        a("v_add_u32 v14, s%d, v14" % (S_T0 + 3))
        sk = a.newlabel("st1")
        a("s_cmp_lg_u32 s%d, 1" % S_B[1])
        a("s_cbranch_scc1 %s" % sk)
        a("ds_write_b128 v14, v[10:13]")
        a("s_waitcnt lgkmcnt(0)")
        a.label(sk)
        a("s_barrier")
        sk = a.newlabel("st0")
        a("s_cmp_lg_u32 s%d, 0" % S_B[1])
        a("s_cbranch_scc1 %s" % sk)
        a("ds_read_b128 v[16:19], v14")
        a("s_waitcnt lgkmcnt(0)")
        for i in range(mt):
            m, q, m2, q2 = 10 + 2 * i, 11 + 2 * i, 16 + 2 * i, 17 + 2 * i
            a("v_sub_f32 v4, v%d, v%d" % (m, m2))
            a("v_add_f32 v%d, v%d, v%d" % (m, m, m2))
            a("v_mul_f32 v%d, 0.5, v%d" % (m, m))
            a("v_add_f32 v%d, v%d, v%d" % (q, q, q2))
            a("v_mul_f32 v4, v4, v4")
            a("v_fmac_f32 v%d, %s, v4" % (q, f32hex(32.0)))
        a("s_mov_b64 exec, 0xffff")
        for i in range(mt):
            a("buffer_store_dwordx2 v[%d:%d], v9, s[24:27], s%d offen offset:%d" % (10 + 2 * i, 11 + 2 * i, S_T0 + 2, i * 1024))
        a("s_mov_b64 exec, -1")
        a.label(sk)
    return F + 2 + mt * nt * 2


def early_gemm4(c):
    V_L15, V_G, mt, nt, F = c['V_L15'], c['V_G'], c['mt'], c['nt'], c['free']
    T = 50
    g = ["s_lshl_b32 s%d, s%d, 7" % (T, S_TM),
         "s_lshl_b32 s%d, s%d, 6" % (T + 1, S_B[0]),
         "s_add_u32 s%d, s%d, s%d" % (T, T, T + 1),
         "s_lshl_b32 s%d, s%d, 11" % (T, T),
         "s_lshl_b32 s%d, s%d, 8" % (T + 1, S_TN),
         "s_add_u32 s%d, s%d, s%d" % (T, T, T + 1),
         "s_lshl_b32 s%d, s%d, 7" % (T + 1, S_B[2]),
         "s_add_u32 s%d, s%d, s%d" % (T, T, T + 1),
         "s_lshl_b32 s%d, s%d, 5" % (T + 1, S_B[1]),
         "s_add_u32 s%d, s%d, s%d" % (T, T, T + 1)]
    for i in range(1, 4):
        g.append("s_add_u32 s%d, s%d, %d" % (T + i, T, i * 16 * 2048))
    g += ["v_lshlrev_b32 v%d, 11, v%d" % (F, V_L15),
          "v_lshl_add_u32 v%d, v%d, 3, v%d" % (F, V_G, F)]
    for i in range(mt):
        for j in range(nt):
            d = F + 2 + (i * nt + j) * 2
            g.append("buffer_load_dwordx2 v[%d:%d], v%d, s[20:23], s%d offen offset:%d" % (d, d + 1, F, T + i, j * 64))
    return [g]


def epi_gemm4(a, c):
    acc, V_L15, V_G, mt, nt = c['acc'], c['V_L15'], c['V_G'], c['mt'], c['nt']
    F = c['free']
    Rr = F + 2
    PB = F + 2 + mt * nt * 2
    T = 50
    a("s_lshl_b32 s54, s%d, 3" % S_TM)
    a("s_add_u32 s54, s54, s%d" % S_TN)
    a("s_and_b32 s55, s54, 1")
    a("s_lshl_b32 s55, s55, 4")
    a("s_lshr_b32 s56, s54, 1")
    a("s_lshl_b32 s56, s56, 2")
    a("s_lshl_b32 s57, 1, s55")
    a("s_lshl_b32 s58, 0x100, s55")
    a("s_lshl_b32 s59, s54, 16")
    a("s_lshl_b32 s%d, s%d, 13" % (S_T0, S_WAVE))
    a("s_add_u32 s59, s59, s%d" % S_T0)
    a("v_lshlrev_b32 v4, 4, v0")
    a("v_mov_b32 v5, 0")
    nw0 = a.newlabel("nw0")
    a("s_barrier")
    a("s_cmp_lg_u32 s%d, 0" % S_WAVE)
    a("s_cbranch_scc1 %s" % nw0)
    a("v_mov_b32 v6, s57")
    a("s_mov_b64 exec, 1")
    a("buffer_atomic_add v6, v5, s[24:27], s56 offen sc0 sc1")
    a("s_waitcnt vmcnt(0)")
    a("ds_write_b32 v5, v6")
    a("s_waitcnt lgkmcnt(0)")
    a("s_mov_b64 exec, -1")
    a.label(nw0)
    a("s_barrier")
    a("ds_read_b32 v6, v5")
    a("s_waitcnt lgkmcnt(0)")
    a("v_readfirstlane_b32 s%d, v6" % S_T0)
    a("s_lshr_b32 s%d, s%d, s55" % (S_T0, S_T0))
    a("s_and_b32 s%d, s%d, 0xff" % (S_T0, S_T0))
    second = a.newlabel("second")
    done = a.newlabel("done")
    a("s_cmp_lg_u32 s%d, 0" % S_T0)
    a("s_cbranch_scc1 %s" % second)
    for i in range(mt):
        for j in range(nt):
            cc = acc(i, j)
            k = i * nt + j
            if k == 4:
                a("s_add_u32 s59, s59, 4096")
            a("buffer_store_dwordx4 v[%d:%d], v4, s[92:95], s59 offen offset:%d sc1" % (cc, cc + 3, (k & 3) * 1024))
    a("s_waitcnt vmcnt(0)")
    a("s_barrier")
    a("s_cmp_lg_u32 s%d, 0" % S_WAVE)
    a("s_cbranch_scc1 %s" % done)
    a("v_mov_b32 v6, s58")
    a("s_mov_b64 exec, 1")
    a("buffer_atomic_add v6, v5, s[24:27], s56 offen sc1")
    a("s_mov_b64 exec, -1")
    a("s_branch %s" % done)
    a.label(second)
    nw1 = a.newlabel("nw1")
    a("s_cmp_lg_u32 s%d, 0" % S_WAVE)
    a("s_cbranch_scc1 %s" % nw1)
    poll = a.newlabel("poll")
    a.label(poll)
    a("buffer_load_dword v6, v5, s[24:27], s56 offen sc1")
    a("s_waitcnt vmcnt(0)")
    a("v_readfirstlane_b32 s%d, v6" % S_T0)
    a("s_and_b32 s%d, s%d, s58" % (S_T0, S_T0))
    a("s_cmp_lg_u32 s%d, 0" % S_T0)
    a("s_cbranch_scc1 %s" % nw1)
    a("s_sleep 2")
    a("s_branch %s" % poll)
    a.label(nw1)
    a("s_barrier")
    for k in range(mt * nt):
        if k == 4:
            a("s_add_u32 s59, s59, 4096")
        a("buffer_load_dwordx4 v[%d:%d], v4, s[92:95], s59 offen offset:%d sc1" % (PB + 4 * k, PB + 4 * k + 3, (k & 3) * 1024))
    for i in range(mt):
        for j in range(nt):
            k = i * nt + j
            cc = acc(i, j)
            d = Rr + k * 2
            a("s_waitcnt vmcnt(%d)" % (mt * nt - 1 - k + k))
            for r in range(4):
                a("v_add_f32 v%d, v%d, v%d" % (cc + r, cc + r, PB + 4 * k + r))
            round4(a, cc, 6, 7)
            a("v_lshlrev_b32 v6, 16, v%d" % d)
            a("v_and_b32 v7, 0xffff0000, v%d" % d)
            a("v_add_f32 v%d, v%d, v6" % (cc, cc))
            a("v_add_f32 v%d, v%d, v7" % (cc + 1, cc + 1))
            a("v_lshlrev_b32 v6, 16, v%d" % (d + 1))
            a("v_and_b32 v7, 0xffff0000, v%d" % (d + 1))
            a("v_add_f32 v%d, v%d, v6" % (cc + 2, cc + 2))
            a("v_add_f32 v%d, v%d, v7" % (cc + 3, cc + 3))
            a("v_cvt_pk_bf16_f32 v%d, v%d, v%d" % (d, cc, cc + 1))
            a("v_cvt_pk_bf16_f32 v%d, v%d, v%d" % (d + 1, cc + 2, cc + 3))
            a("buffer_store_dwordx2 v[%d:%d], v%d, s[16:19], s%d offen offset:%d" % (d, d + 1, F, T + i, j * 64))
    a.label(done)
    return PB + 4 * mt * nt


V_ST = 19
V_PAR = 20


def pre_gemm3(a, c):
    V_L15, V_G, t = c['V_L15'], c['V_G'], c['V_T']
    srd_from_ptr(a, 20, 4, S * 128, WS_ST)
    a("s_lshl_b32 s%d, s%d, 7" % (S_T0, S_TM))
    a("s_lshl_b32 s%d, s%d, 6" % (S_T0 + 1, S_B[0]))
    a("s_add_u32 s%d, s%d, s%d" % (S_T0, S_T0, S_T0 + 1))
    a("s_lshl_b32 s%d, s%d, 7" % (S_T0, S_T0))
    a("v_lshlrev_b32 v%d, 7, v%d" % (t, V_L15))
    a("v_lshl_add_u32 v%d, v%d, 5, v%d" % (t, V_G, t))
    a("s_add_u32 s%d, s%d, 4096" % (S_T0 + 1, S_T0))
    for i in range(4):
        so = S_T0 + (i >> 1)
        a("buffer_load_dwordx4 v[%d:%d], v%d, s[20:23], s%d offen offset:%d" % (ACC0 + 8 * i, ACC0 + 8 * i + 3, t, so, (i & 1) * 2048))
        a("buffer_load_dwordx4 v[%d:%d], v%d, s[20:23], s%d offen offset:%d" % (ACC0 + 8 * i + 4, ACC0 + 8 * i + 7, t, so, (i & 1) * 2048 + 16))
    return 8


def pro_gemm3(a, c):
    a("s_waitcnt vmcnt(%d)" % c['nissued'])
    T = ACC0 + 40
    for i in range(4):
        b = ACC0 + 8 * i
        m, q = T, T + 1
        a("v_add_f32 v%d, v%d, v%d" % (m, b, b + 2))
        a("v_add_f32 v%d, v%d, v%d" % (m, m, b + 4))
        a("v_add_f32 v%d, v%d, v%d" % (m, m, b + 6))
        xreduce(a, m, T + 2)
        a("v_mul_f32 v%d, %s, v%d" % (m, f32hex(1.0 / 16), m))
        a("v_add_f32 v%d, v%d, v%d" % (q, b + 1, b + 3))
        a("v_add_f32 v%d, v%d, v%d" % (q, q, b + 5))
        a("v_add_f32 v%d, v%d, v%d" % (q, q, b + 7))
        a("v_mov_b32 v%d, 0" % (T + 3))
        for k in range(4):
            a("v_sub_f32 v%d, v%d, v%d" % (T + 2, b + 2 * k, m))
            a("v_fmac_f32 v%d, v%d, v%d" % (T + 3, T + 2, T + 2))
        a("v_fmac_f32 v%d, %s, v%d" % (q, f32hex(64.0), T + 3))
        xreduce(a, q, T + 2)
        a("v_mul_f32 v%d, %s, v%d" % (q, f32hex(1.0 / D), q))
        a("v_cvt_pk_bf16_f32 v%d, v%d, v%d" % (T + 2, m, q))
        a("v_lshlrev_b32 v%d, 16, v%d" % (m, T + 2))
        a("v_and_b32 v%d, 0xffff0000, v%d" % (q, T + 2))
        a("v_add_f32 v%d, %s, v%d" % (q, f32hex(1e-5), q))
        a("v_cvt_pk_bf16_f32 v%d, v%d, v%d" % (T + 2, q, q))
        a("v_lshlrev_b32 v%d, 16, v%d" % (q, T + 2))
        a("v_sqrt_f32 v%d, v%d" % (q, q))
        a("s_nop 0")
        a("v_cvt_pk_bf16_f32 v%d, v%d, v%d" % (T + 2, q, q))
        a("v_lshlrev_b32 v%d, 16, v%d" % (q, T + 2))
        a("v_rcp_f32 v%d, v%d" % (V_PAR + 2 * i, q))
        a("s_nop 0")
        a("v_mul_f32 v%d, v%d, v%d" % (V_PAR + 2 * i + 1, m, V_PAR + 2 * i))
        a("v_sub_f32 v%d, 0, v%d" % (V_PAR + 2 * i + 1, V_PAR + 2 * i + 1))


def last_gemm3(c):
    R, V_G, VX, af = c['R'], c['V_G'], c['V_XO'], c['afree']
    ocol = R['ocol']
    g = ["s_add_u32 s88, s4, 0x%x" % WS_CS, "s_addc_u32 s89, s5, 0", "s_mov_b32 s90, %d" % (2 * DF * 4), "s_mov_b32 s91, 0x00020000",
         "s_mul_i32 s%d, s%d, 896" % (S_T0, S_TN),
         "s_lshl_b32 s%d, s%d, 6" % (S_T0 + 1, S_B[1]),
         "s_add_u32 s%d, s%d, s%d" % (S_T0, S_T0, S_T0 + 1),
         "s_and_b32 s%d, s%d, 1" % (S_T0 + 1, S_TN),
         "s_cmp_lg_u32 s%d, 0" % (S_T0 + 1),
         "s_cselect_b32 s%d, 0, 768" % (S_T0 + 2),
         "s_cselect_b32 s%d, 128, 0" % (S_T0 + 1),
         "s_add_u32 s%d, s%d, s%d" % (S_T0 + 2, S_T0 + 2, S_T0),
         "s_add_u32 s%d, s%d, s%d" % (S_T0 + 1, S_T0 + 1, S_T0),
         "s_add_u32 s%d, s%d, %d" % (S_T0 + 3, S_T0 + 1, DF * 4),
         "s_add_u32 s%d, s%d, %d" % (S_T0 + 4, S_T0 + 2, DF * 4),
         "v_lshlrev_b32 v%d, 4, v%d" % (VX[0], V_G)]
    np_ = len(ocol)
    g += ["s_add_u32 s20, s4, 0x%x" % WS_ST, "s_addc_u32 s21, s5, 0", "s_mov_b32 s22, %d" % (S * 64), "s_mov_b32 s23, 0x00020000",
          "s_lshl_b32 s%d, s%d, 7" % (S_T0 + 5, S_TM),
          "s_lshl_b32 s%d, s%d, 6" % (S_T0 + 6, S_B[0]),
          "s_add_u32 s%d, s%d, s%d" % (S_T0 + 5, S_T0 + 5, S_T0 + 6),
          "s_lshl_b32 s%d, s%d, 6" % (S_T0 + 5, S_T0 + 5),
          "v_lshl_add_u32 v%d, v%d, 6, v%d" % (VX[1], c['V_L15'], VX[0])]
    for i in range(4):
        d = af + 2 * np_ * 4 + 4 * i
        g.append("buffer_load_dwordx4 a[%d:%d], v%d, s[20:23], s%d offen offset:%d" % (d, d + 3, VX[1], S_T0 + 5, i * 1024))
    for m in range(2):
        for j, (typ, off) in enumerate(ocol):
            so = (S_T0 + 1 if typ == 'A' else S_T0 + 2) + 2 * m
            d = af + (m * np_ + j) * 4
            g.append("buffer_load_dwordx4 a[%d:%d], v%d, s[88:91], s%d offen offset:%d" % (d, d + 3, VX[0], so, off * 2))
    return [g]


def epi_gemm3(a, c):
    acc, V_L15, V_G, R = c['acc'], c['V_L15'], c['V_G'], c['R']
    npair = c['nt'] // 2
    ocol = R['ocol']
    ldo = DF * 2
    a("s_lshl_b32 s%d, s%d, 7" % (S_T0, S_TM))
    a("s_lshl_b32 s%d, s%d, 6" % (S_T0 + 1, S_B[0]))
    a("s_add_u32 s%d, s%d, s%d" % (S_T0, S_T0, S_T0 + 1))
    a("s_mul_i32 s%d, s%d, %d" % (S_T0, S_T0, ldo))
    a("s_mul_i32 s%d, s%d, 448" % (S_T0 + 1, S_TN))
    a("s_add_u32 s%d, s%d, s%d" % (S_T0, S_T0, S_T0 + 1))
    a("s_lshl_b32 s%d, s%d, 5" % (S_T0 + 1, S_B[1]))
    a("s_add_u32 s%d, s%d, s%d" % (S_T0, S_T0, S_T0 + 1))
    for i in range(1, 4):
        a("s_add_u32 s%d, s%d, %d" % (S_T0 + i, S_T0, i * 16 * ldo))
    a("s_mov_b32 s%d, %d" % (S_T0 + 4, ldo))
    VA = 3
    a("v_mul_lo_u32 v%d, v%d, s%d" % (VA, V_L15, S_T0 + 4))
    a("v_lshl_add_u32 v%d, v%d, 3, v%d" % (VA, V_G, VA))
    a("s_and_b32 s%d, s%d, 1" % (S_T0 + 5, S_TN))
    a("s_cmp_lg_u32 s%d, 0" % (S_T0 + 5))
    a("s_cselect_b32 s%d, 0, 384" % (S_T0 + 6))
    a("s_cselect_b32 s%d, 64, 0" % (S_T0 + 5))
    c1 = -2.0 * LOG2E * 0.7978845608028654
    c2 = c1 * 0.044715
    a("s_mov_b32 s%d, %s" % (S_T0 + 8, f32hex(c2)))
    a("s_mov_b32 s%d, %s" % (S_T0 + 9, f32hex(c2)))
    a("v_mov_b32 v4, %s" % f32hex(c1))
    a("v_mov_b32 v5, %s" % f32hex(c1))
    T0 = 6
    af = c['afree']
    a("s_waitcnt vmcnt(0)")
    for i0 in (0, 2):
        ii = (i0, i0 + 1)
        raw = {i: 6 + 4 * (i - i0) for i in ii}
        mm = {i: 14 + 3 * (i - i0) for i in ii}
        for i in ii:
            for r in range(4):
                a("v_accvgpr_read_b32 v%d, a%d" % (raw[i] + r, af + 2 * npair * 4 + 4 * i + r))

        def par(fn):
            for i in ii:
                fn(raw[i], mm[i], mm[i] + 1, mm[i] + 2, V_PAR + 2 * i)

        def xred2(sel):
            par(lambda b, m, q, t, p: a("v_mov_b32 v%d, v%d" % (t, sel(m, q))))
            a("s_nop 0")
            par(lambda b, m, q, t, p: a("v_permlane16_swap_b32 v%d, v%d" % (sel(m, q), t)))
            a("s_nop 0")
            par(lambda b, m, q, t, p: a("v_add_f32 v%d, v%d, v%d" % (sel(m, q), sel(m, q), t)))
            par(lambda b, m, q, t, p: a("v_mov_b32 v%d, v%d" % (t, sel(m, q))))
            a("s_nop 1")
            par(lambda b, m, q, t, p: a("v_permlane32_swap_b32 v%d, v%d" % (sel(m, q), t)))
            a("s_nop 0")
            par(lambda b, m, q, t, p: a("v_add_f32 v%d, v%d, v%d" % (sel(m, q), sel(m, q), t)))
        par(lambda b, m, q, t, p: a("v_add_f32 v%d, v%d, v%d" % (m, b, b + 2)))
        par(lambda b, m, q, t, p: a("v_add_f32 v%d, v%d, v%d" % (q, b + 1, b + 3)))
        a("s_nop 0")
        xred2(lambda m, q: m)
        par(lambda b, m, q, t, p: a("v_mul_f32 v%d, %s, v%d" % (m, f32hex(1.0 / 8), m)))
        par(lambda b, m, q, t, p: a("v_sub_f32 v%d, v%d, v%d" % (b, b, m)))
        par(lambda b, m, q, t, p: a("v_sub_f32 v%d, v%d, v%d" % (b + 2, b + 2, m)))
        par(lambda b, m, q, t, p: a("v_mul_f32 v%d, v%d, v%d" % (b, b, b)))
        par(lambda b, m, q, t, p: a("v_fmac_f32 v%d, v%d, v%d" % (b, b + 2, b + 2)))
        par(lambda b, m, q, t, p: a("v_fmac_f32 v%d, %s, v%d" % (q, f32hex(128.0), b)))
        a("s_nop 0")
        xred2(lambda m, q: q)
        par(lambda b, m, q, t, p: a("v_mul_f32 v%d, %s, v%d" % (q, f32hex(1.0 / D), q)))
        par(lambda b, m, q, t, p: a("v_cvt_pk_bf16_f32 v%d, v%d, v%d" % (t, m, q)))
        par(lambda b, m, q, t, p: a("v_lshlrev_b32 v%d, 16, v%d" % (m, t)))
        par(lambda b, m, q, t, p: a("v_and_b32 v%d, 0xffff0000, v%d" % (q, t)))
        par(lambda b, m, q, t, p: a("v_add_f32 v%d, %s, v%d" % (q, f32hex(1e-5), q)))
        par(lambda b, m, q, t, p: a("v_cvt_pk_bf16_f32 v%d, v%d, v%d" % (t, q, q)))
        par(lambda b, m, q, t, p: a("v_lshlrev_b32 v%d, 16, v%d" % (q, t)))
        par(lambda b, m, q, t, p: a("v_sqrt_f32 v%d, v%d" % (q, q)))
        a("s_nop 0")
        par(lambda b, m, q, t, p: a("v_cvt_pk_bf16_f32 v%d, v%d, v%d" % (t, q, q)))
        par(lambda b, m, q, t, p: a("v_lshlrev_b32 v%d, 16, v%d" % (q, t)))
        par(lambda b, m, q, t, p: a("v_rcp_f32 v%d, v%d" % (p, q)))
        a("s_nop 0")
        par(lambda b, m, q, t, p: a("v_mul_f32 v%d, v%d, v%d" % (p + 1, m, p)))
        par(lambda b, m, q, t, p: a("v_sub_f32 v%d, 0, v%d" % (p + 1, p + 1)))
    a("v_add_u32 v10, s%d, v%d" % (S_T0 + 6, VA))
    a("v_add_u32 v%d, s%d, v%d" % (VA, S_T0 + 5, VA))
    for j in range(npair):
        for m in range(2):
            for r in range(4):
                a("v_accvgpr_read_b32 v%d, a%d" % (12 + r, af + (m * npair + j) * 4 + r))
            for i in range(4):
                cc = acc(i, m * npair + j)
                pr = V_PAR + 2 * i
                for h in range(2):
                    a("v_pk_mul_f32 v[%d:%d], v[%d:%d], v[%d:%d] op_sel:[0,1] op_sel_hi:[1,1]" % (16, 17, 12 + 2 * h, 13 + 2 * h, pr, pr + 1))
                    a("v_pk_fma_f32 v[%d:%d], v[%d:%d], v[%d:%d], v[16:17] op_sel:[0,0,0] op_sel_hi:[1,0,1]" % (cc + 2 * h, cc + 2 * h + 1, cc + 2 * h, cc + 2 * h + 1, pr, pr + 1))
    for i in range(4):
        for j in range(npair):
            g = acc(i, j)
            u = acc(i, npair + j)
            for h in range(2):
                gg = g + 2 * h
                tt = T0 + 2 * h
                a("v_pk_mul_f32 v[%d:%d], v[%d:%d], v[%d:%d]" % (tt, tt + 1, gg, gg + 1, gg, gg + 1))
            for h in range(2):
                tt = T0 + 2 * h
                a("v_pk_fma_f32 v[%d:%d], v[%d:%d], s[%d:%d], v[4:5]" % (tt, tt + 1, tt, tt + 1, S_T0 + 8, S_T0 + 9))
            for h in range(2):
                gg = g + 2 * h
                tt = T0 + 2 * h
                a("v_pk_mul_f32 v[%d:%d], v[%d:%d], v[%d:%d]" % (tt, tt + 1, tt, tt + 1, gg, gg + 1))
            for r in range(4):
                a("v_exp_f32 v%d, v%d" % (T0 + r, T0 + r))
            for h in range(2):
                gg = g + 2 * h
                uu = u + 2 * h
                a("v_pk_mul_f32 v[%d:%d], v[%d:%d], v[%d:%d]" % (gg, gg + 1, gg, gg + 1, uu, uu + 1))
            for r in range(4):
                a("v_add_f32 v%d, 1.0, v%d" % (T0 + r, T0 + r))
            for r in range(4):
                a("v_rcp_f32 v%d, v%d" % (T0 + r, T0 + r))
            a("s_nop 0")
            for h in range(2):
                gg = g + 2 * h
                tt = T0 + 2 * h
                a("v_pk_mul_f32 v[%d:%d], v[%d:%d], v[%d:%d]" % (gg, gg + 1, gg, gg + 1, tt, tt + 1))
            a("v_cvt_pk_bf16_f32 v%d, v%d, v%d" % (g, g, g + 1))
            a("v_cvt_pk_bf16_f32 v%d, v%d, v%d" % (g + 1, g + 2, g + 3))
            a("buffer_store_dwordx2 v[%d:%d], v%d, s[16:19], s%d offen offset:%d" % (g, g + 1, VA if ocol[j][0] == 'A' else 10, S_T0 + i, ocol[j][1]) + (" sc0 sc1" if "wt1" in EXP else " nt" if "wt2" in EXP else " sc1" if "wt3" in EXP else ""))
    return 0


def build():
    a = Asm()
    descs = []
    launches = []

    if "pf" in EXP:
        descs.append(prefetch_kernel(a, "pf_kernel"))
        launches.append(("pf_kernel", 1024, 256, 0))
    descs.append(ln_kernel(a, "ln1_kernel", ('arg', 'x'), WS_XN, True))
    launches.append(("ln1_kernel", S // 4, 256, 0))

    ldw = 3 * D * 2

    def srds1(a):
        srd_from_ptr(a, 16, 4, S * D * 2, WS_PQ)
        srd_from_ptr(a, 20, 4, 135168, WS_KV)
    R1 = dict(nxp=2, xp_coef=[2, 4, 8], mt=2,
              waddr=[('A', 0), ('A', 32)], t_coefA=[0, 2, 0],
              ntiles=[(0, 0, True), (1, 0, True), (0, 1024, False), (1, 1024, False), (0, 2048, False), (1, 2048, False)],
              w_slot=[('A', i * 2048, i * 1024, 0) for i in range(3)], ko_par=0,
              wg_coefA=[8 * ldw, 16 * ldw, 32 * ldw], wl_coefA=[3 * 1024, 6 * 1024, 12 * 1024],
              row_coef=[32, 0, 64], wr_coef=[0, 0, 0])
    P1 = dict(name="gemm1_kernel", rtidx=0, NW=8, BM=128, kbx=2, kbw=2, NSX=4, NSW=4, WB=24576, kostrideA=3072,
              K=D, ldx=D * 2, ldw=ldw, x_ws=WS_XN,
              w=['wqkv'], helper=[('wg', D * DF * 2), ('wu', D * DF * 2)], epi_bars=2, mblk_bits=1, srds=srds1, tn_bytes=128, epilogue=epi_gemm1, roles=[R1])
    descs.append(gemm_kernel(a, P1))
    launches.append(("gemm1_kernel", 256, 576, 4 * 16384 + 4 * 24576))

    descs.append(apply_kernel(a, "apply_kernel"))
    launches.append(("apply_kernel", 256 + 448, 256, 9216))

    def srds2(a):
        srd_from_ptr(a, 16, 4, S * D * 2, WS_H)
        srd_from_ptr(a, 20, 62, S * D * 2)
        srd_from_ptr(a, 24, 4, S * 64, WS_ST)
    ldw = D * 2
    R2 = dict(nxp=2, xp_coef=[2, 4, 0], mt=2,
              waddr=[('A', 0), ('A', 64)], t_coefA=[0, 1, 0],
              ntiles=[(0, 0, True), (1, 0, True), (0, 1024, True), (1, 1024, True)],
              w_slot=[('A', (i >> 1) * 8 * ldw + (i & 1) * 128, i * 1024, i >> 1) for i in range(4)], ko_par=None,
              wg_coefA=[16 * ldw, 32 * ldw, 0], wl_coefA=[4 * 1024, 8 * 1024, 0],
              row_coef=[32, 0, 0], wr_coef=[0, 0, 0])
    NS2 = 6
    P2 = dict(name="gemm2_kernel", rtidx=1, NW=4, BM=64, kbx=2, kbw=2, NSX=NS2, NSW=NS2, WB=16384, kostrideA=2048,
              K=D, ldx=D * 2, ldw=ldw, x_ws=WS_O,
              w=['wo'], argptrs=[(62, 'x')], mblk_bits=2, srds=srds2, tn_bytes=256, epilogue=epi_resid_stats, early=early_resid, roles=[R2])
    descs.append(gemm_kernel(a, P2))
    launches.append(("gemm2_kernel", 256, 256, NS2 * (8192 + 16384)))


    def srds3(a):
        srd_from_ptr(a, 16, 4, S * DF * 2, WS_HH)
    ldw = DF * 2
    KB = 1024
    R3a = dict(nxp=2, xp_coef=[2, 4, 8], mt=4,
               waddr=[('A', 0), ('A', 64)], t_coefA=[0, 1, 0],
               ntiles=[(a_, o_ + m_ * 14 * KB, True) for m_ in range(2) for (a_, o_) in ((0, 0), (1, 0), (0, KB), (1, KB))],
               w_slot=[('A', i * 128, i * KB, 0) for i in range(3)], ko_par=0,
               wg_coefA=[8 * ldw, 0, 0], wl_coefA=[3 * KB, 14 * KB, 0],
               row_coef=[64, 0, 0], wr_coef=[0, 0, 0],
               ocol=[('A', 0), ('A', 64), ('A', 128), ('A', 192)])
    R3b = dict(nxp=2, xp_coef=[2, 4, 8], mt=4,
               waddr=[('A', 0), ('A', 64), ('B', 0)], t_coefA=[0, 1, 0], t_coefB=[0, 1, 0],
               ntiles=[(a_, o_ + m_ * 14 * KB, True) for m_ in range(2) for (a_, o_) in ((0, 2 * KB), (1, 2 * KB), (2, 12 * KB))],
               w_slot=[('A', 16 * ldw + i * 128, 6 * KB + i * KB, 0) for i in range(3)] + [('B', 0, 12 * KB)], ko_par=0,
               wg_coefA=[8 * ldw, 0, 0], wl_coefA=[3 * KB, 14 * KB, 0],
               wg_coefB=[16 * ldw, 0, 0], wl_coefB=[KB, 14 * KB, 0],
               row_coef=[64, 0, 0], wr_coef=[0, 0, 0],
               ocol=[('A', 256), ('A', 320), ('B', 0)])
    P3 = dict(name="gemm3_kernel", rtidx=2, NW=8, BM=128, kbx=2, kbw=1, NSX=3, NSW=4, WB=28 * KB, kostrideA=3 * KB, k16strideB=KB,
              par_offA=(0, 64), par_offB=(384, 0),
              K=D, ldx=D * 2, ldw=ldw, x_ws=WS_H,
              w=['wg', 'wu'], pf=[('wd', D * DF * 2)], pf_step=16, last_extras=last_gemm3, wsel_bit=1, mblk_bits=1, srds=srds3, tn_bytes=448, epilogue=epi_gemm3,
              roles=[R3a, R3b])
    descs.append(gemm_kernel(a, P3))
    launches.append(("gemm3_kernel", 256, 512, 3 * 16384 + 4 * 28 * KB))

    def srds4(a):
        srd_from_ptr(a, 16, 62, S * D * 2)
        srd_from_ptr(a, 20, 4, S * D * 2, WS_H)
    P4 = dict(P2)
    P4.update(name="gemm4_kernel", rtidx=3, K=DF, ldx=DF * 2, x_ws=WS_HH, w=['wd'], pf=[], helper=[], argptrs=[(62, 'out')],
              srds=srds4, epilogue=epi_resid)
    descs.append(gemm_kernel(a, P4))
    launches.append(("gemm4_kernel", 256, 256, NS2 * (8192 + 16384)))

    hdr = ["; pre-LN linear attention block + GEGLU FFN, hand-written gfx950 kernels (generated by gen/gen.py)"]
    for (k, g, b, l) in launches:
        hdr.append("; @launch kernel=%s grid=(%d,1,1) block=(%d,1,1) lds=%d" % (k, g, b, l))
    hdr.append('.amdgcn_target "amdgcn-amd-amdhsa--gfx950"')
    hdr.append(".text")
    txt = "\n".join(hdr) + "\n" + "\n".join(a.lines) + "\n" + '.section .rodata,"a"\n' + "".join(descs)
    return txt


if __name__ == "__main__":
    out = sys.argv[1] if len(sys.argv) > 1 else OUT
    open(out, "w").write(build())
    print("wrote", out)
```

```python
import sys, os
EXP = os.environ.get("EXP", "").split(",")

OUT = "sequential_preLN__linear_attn_block__glu_gated_geglu__prompt.s"

S, D, DF = 2048, 1024, 3584
MB = 1 << 20
WS_XN = 0
WS_PQ = 4 * MB
WS_KV = 8 * MB
WS_Z = WS_KV + 131072
WS_CS = WS_KV + 0x30000
WS_ST = WS_KV + 0x40000
WS_O = 9 * MB
WS_H = 13 * MB
WS_HN = 17 * MB
WS_HH = 21 * MB
WS_SLAB = 40 * MB
KA = dict(x=0, wqkv=8, wo=16, bx=24, wg=32, wu=40, wd=48, out=56, dbg=64, ws=72)

LOG2E = 1.4426950408889634


def f32hex(x):
    import struct
    return "0x%08x" % struct.unpack("<I", struct.pack("<f", x))[0]


class Asm:
    def __init__(self):
        self.lines = []
        self.uid = 0

    def __call__(self, s):
        if "offset:" in s:
            off = int(s.split("offset:")[1].split()[0])
            assert off < (4096 if s.startswith("buffer_") else 65536), s
        self.lines.append("    " + s)

    def label(self, s):
        self.lines.append(s + ":")

    def raw(self, s):
        self.lines.append(s)

    def newlabel(self, p):
        self.uid += 1
        return "L_%s_%d" % (p, self.uid)


def kernel_header(a, name):
    a.raw(".globl %s" % name)
    a.raw(".p2align 8")
    a.raw(".type %s,@function" % name)
    a.label(name)


def kernel_desc(name, nvgpr, accum, nsgpr=102):
    return """.p2align 6
.amdhsa_kernel %s
  .amdhsa_next_free_vgpr %d
  .amdhsa_next_free_sgpr %d
  .amdhsa_accum_offset %d
  .amdhsa_group_segment_fixed_size 0
  .amdhsa_kernarg_size 80
  .amdhsa_user_sgpr_count 2
  .amdhsa_user_sgpr_kernarg_segment_ptr 1
  .amdhsa_system_sgpr_workgroup_id_x 1
.end_amdhsa_kernel
""" % (name, nvgpr, nsgpr, accum)


def srd_from_ptr(a, d, p, nbytes, off=0):
    if off:
        a("s_add_u32 s%d, s%d, 0x%x" % (d, p, off))
        a("s_addc_u32 s%d, s%d, 0" % (d + 1, p + 1))
    else:
        a("s_mov_b32 s%d, s%d" % (d, p))
        a("s_mov_b32 s%d, s%d" % (d + 1, p + 1))
    a("s_mov_b32 s%d, 0x%x" % (d + 2, nbytes))
    a("s_mov_b32 s%d, 0x00020000" % (d + 3))


def rt_begin(a):
    if "rt" in EXP:
        a("s_memrealtime s[64:65]")


def rt_end(a, idx):
    if "rt" not in EXP:
        return
    a("s_waitcnt vmcnt(0)")
    a("s_memrealtime s[70:71]")
    a("s_waitcnt lgkmcnt(0)")
    srd_from_ptr(a, 76, 4, 65536, 64 * MB + idx * 65536)
    a("v_mov_b32 v4, s64")
    a("v_mov_b32 v5, s64")
    a("v_mov_b32 v6, s70")
    a("v_mov_b32 v7, s70")
    a("s_lshl_b32 s80, s2, 4")
    a("v_mov_b32 v8, s80")
    a("s_mov_b64 exec, 1")
    a("buffer_store_dwordx4 v[4:7], v8, s[76:79], 0 offen")

def ln_kernel(a, name, src, dst, zero_kv):
    kernel_header(a, name)
    end = a.newlabel("end")
    cs = a.newlabel("cs")
    a("s_cmp_ge_u32 s2, %d" % (S // 4))
    a("s_cbranch_scc1 %s" % end)
    rt_begin(a)
    a("s_load_dwordx2 s[4:5], s[0:1], %d" % KA['ws'])
    if src[0] == 'arg':
        a("s_load_dwordx2 s[6:7], s[0:1], %d" % KA[src[1]])
    a("v_lshrrev_b32 v1, 6, v0")
    a("v_and_b32 v2, 63, v0")
    a("s_lshl_b32 s3, s2, 2")
    a("v_add_u32 v1, s3, v1")
    a("v_lshlrev_b32 v1, 11, v1")
    a("v_lshl_add_u32 v1, v2, 4, v1")
    a("s_waitcnt lgkmcnt(0)")
    if src[0] == 'arg':
        srd_from_ptr(a, 8, 6, S * D * 2)
    else:
        srd_from_ptr(a, 8, 4, S * D * 2, src[1])
    srd_from_ptr(a, 12, 4, S * D * 2, dst)
    a("buffer_load_dwordx4 v[4:7], v1, s[8:11], 0 offen")
    a("buffer_load_dwordx4 v[8:11], v1, s[8:11], 0 offen offset:1024")
    npf = 0
    if zero_kv:
        a("s_load_dwordx4 s[40:43], s[0:1], %d" % KA['wqkv'])
        a("v_lshlrev_b32 v3, 6, v0")
        a("s_lshl_b32 s3, s2, 14")
        a("v_add_u32 v3, s3, v3")
        a("s_waitcnt lgkmcnt(0)")
        srd_from_ptr(a, 52, 40, D * 3 * D * 2)
        srd_from_ptr(a, 56, 42, D * D * 2)
        a("buffer_load_dword v40, v3, s[52:55], 0 offen")
        a("v_subrev_u32 v3, 0x%x, v3" % (D * 3 * D * 2))
        a("buffer_load_dword v41, v3, s[56:59], 0 offen")
        npf = 2
        if "nocodepf" not in EXP:
            sk = a.newlabel("ncp")
            a("s_cmp_ge_u32 s2, 16")
            a("s_cbranch_scc1 %s" % sk)
            a("s_getpc_b64 s[60:61]")
            a("v_lshlrev_b32 v42, 6, v0")
            for j in range(4):
                a("global_load_dword v43, v42, s[60:61]")
                a("v_add_u32 v42, 0x3400, v42")
            a("s_waitcnt vmcnt(0)")
            a.label(sk)
    if zero_kv:
        skip = a.newlabel("nz")
        a("s_cmp_ge_u32 s2, 55")
        a("s_cbranch_scc1 %s" % skip)
        srd_from_ptr(a, 16, 4, 0x37000, WS_KV)
        a("s_lshl_b32 s3, s2, 12")
        a("v_lshlrev_b32 v3, 4, v0")
        a("v_add_u32 v3, s3, v3")
        a("v_mov_b32 v12, 0")
        a("v_mov_b32 v13, 0")
        a("v_mov_b32 v14, 0")
        a("v_mov_b32 v15, 0")
        a("buffer_store_dwordx4 v[12:15], v3, s[16:19], 0 offen")
        a.label(skip)
    a("s_waitcnt vmcnt(%d)" % (npf + (1 if zero_kv else 0)) if False else "s_waitcnt vmcnt(%d)" % npf)
    for i in range(8):
        a("v_lshlrev_b32 v%d, 16, v%d" % (16 + 2 * i, 4 + i))
        a("v_and_b32 v%d, 0xffff0000, v%d" % (17 + 2 * i, 4 + i))

    def reduce(v, t):
        a("s_nop 1")
        a("v_add_f32_dpp %s, %s, %s quad_perm:[1,0,3,2] row_mask:0xf bank_mask:0xf" % (t, v, v))
        a("s_nop 1")
        a("v_add_f32_dpp %s, %s, %s quad_perm:[2,3,0,1] row_mask:0xf bank_mask:0xf" % (v, t, t))
        a("s_nop 1")
        a("v_add_f32_dpp %s, %s, %s row_half_mirror row_mask:0xf bank_mask:0xf" % (t, v, v))
        a("s_nop 1")
        a("v_add_f32_dpp %s, %s, %s row_mirror row_mask:0xf bank_mask:0xf" % (v, t, t))
        a("s_nop 1")
        a("v_readlane_b32 s20, %s, 0" % v)
        a("v_readlane_b32 s21, %s, 16" % v)
        a("v_readlane_b32 s22, %s, 32" % v)
        a("v_readlane_b32 s23, %s, 48" % v)
        a("s_nop 1")
        a("v_mov_b32 %s, s20" % v)
        a("v_add_f32 %s, s21, %s" % (v, v))
        a("v_add_f32 %s, s22, %s" % (v, v))
        a("v_add_f32 %s, s23, %s" % (v, v))

    a("v_add_f32 v32, v16, v17")
    for i in range(2, 16):
        a("v_add_f32 v32, v32, v%d" % (16 + i))
    reduce("v32", "v33")
    a("v_mul_f32 v32, %s, v32" % f32hex(1.0 / D))
    a("v_sub_f32 v34, v16, v32")
    a("v_mul_f32 v35, v34, v34")
    for i in range(1, 16):
        a("v_sub_f32 v34, v%d, v32" % (16 + i))
        a("v_fmac_f32 v35, v34, v34")
    reduce("v35", "v33")
    a("v_mul_f32 v35, %s, v35" % f32hex(1.0 / D))
    a("v_cvt_pk_bf16_f32 v36, v32, v35")
    a("v_lshlrev_b32 v32, 16, v36")
    a("v_and_b32 v35, 0xffff0000, v36")
    a("v_add_f32 v35, %s, v35" % f32hex(1e-5))
    a("v_cvt_pk_bf16_f32 v36, v35, v35")
    a("v_lshlrev_b32 v35, 16, v36")
    a("v_sqrt_f32 v35, v35")
    a("s_nop 0")
    a("v_cvt_pk_bf16_f32 v36, v35, v35")
    a("v_lshlrev_b32 v35, 16, v36")
    a("v_rcp_f32 v35, v35")
    for i in range(16):
        a("v_sub_f32 v%d, v%d, v32" % (16 + i, 16 + i))
    for i in range(8):
        a("v_cvt_pk_bf16_f32 v%d, v%d, v%d" % (4 + i, 16 + 2 * i, 17 + 2 * i))
    for i in range(8):
        a("v_lshlrev_b32 v%d, 16, v%d" % (16 + 2 * i, 4 + i))
        a("v_and_b32 v%d, 0xffff0000, v%d" % (17 + 2 * i, 4 + i))
    for i in range(16):
        a("v_mul_f32 v%d, v%d, v35" % (16 + i, 16 + i))
    for i in range(8):
        a("v_cvt_pk_bf16_f32 v%d, v%d, v%d" % (4 + i, 16 + 2 * i, 17 + 2 * i))
    a("buffer_store_dwordx4 v[4:7], v1, s[12:15], 0 offen")
    a("buffer_store_dwordx4 v[8:11], v1, s[12:15], 0 offen offset:1024")
    rt_end(a, 4)
    a.label(end)
    a("s_endpgm")
    return kernel_desc(name, 44, 44)


def prefetch_kernel(a, name):
    kernel_header(a, name)
    end = a.newlabel("end")
    a("s_cmp_ge_u32 s2, 1024")
    a("s_cbranch_scc1 %s" % end)
    for i, k in enumerate(['wqkv', 'wo', 'wg', 'wu', 'wd']):
        a("s_load_dwordx2 s[%d:%d], s[0:1], %d" % (40 + 2 * i, 41 + 2 * i, KA[k]))
    a("v_lshlrev_b32 v1, 4, v0")
    a("s_lshl_b32 s3, s2, 12")
    a("v_add_u32 v1, s3, v1")
    a("s_waitcnt lgkmcnt(0)")
    sizes = [D * 3 * D * 2, D * D * 2, D * DF * 2, D * DF * 2, DF * D * 2]
    r = 4
    for i, sz in enumerate(sizes):
        srd_from_ptr(a, 8 + 4 * i, 40 + 2 * i, sz)
        for j in range((sz + (4 << 20) - 1) // (4 << 20)):
            a("s_mov_b32 s4, %d" % (j * (4 << 20)))
            a("buffer_load_dwordx4 v[%d:%d], v1, s[%d:%d], s4 offen" % (r, r + 3, 8 + 4 * i, 11 + 4 * i))
            r += 4
    a("s_waitcnt vmcnt(0)")
    a.label(end)
    a("s_endpgm")
    return kernel_desc(name, 64, 64)

def colsum_code(a, cs, end, NB0):
    a("s_endpgm")
    a.label(cs)
    a("s_cmp_ge_u32 s2, %d" % (NB0 + 448))
    a("s_cbranch_scc1 %s" % end)
    a("s_load_dwordx2 s[4:5], s[0:1], %d" % KA['ws'])
    a("s_load_dwordx4 s[40:43], s[0:1], %d" % KA['wg'])
    a("s_sub_u32 s3, s2, %d" % (NB0))
    a("s_and_b32 s47, s3, 3")
    a("s_lshr_b32 s3, s3, 2")
    a("s_cmp_ge_u32 s3, 56")
    a("s_cselect_b32 s44, 56, 0")
    a("s_sub_u32 s45, s3, s44")
    a("v_and_b32 v1, 7, v0")
    a("v_lshrrev_b32 v2, 3, v0")
    a("s_mov_b32 s46, %d" % (DF * 2))
    a("v_mul_lo_u32 v2, v2, s46")
    a("v_lshl_add_u32 v2, v1, 4, v2")
    a("s_lshl_b32 s46, s45, 7")
    a("v_add_u32 v2, s46, v2")
    a("s_mul_i32 s46, s47, %d" % (256 * DF * 2))
    a("v_add_u32 v2, s46, v2")
    a("s_waitcnt lgkmcnt(0)")
    a("s_cmp_ge_u32 s3, 56")
    a("s_cselect_b32 s40, s42, s40")
    a("s_cselect_b32 s41, s43, s41")
    srd_from_ptr(a, 8, 40, D * DF * 2)
    srd_from_ptr(a, 12, 4, 2 * DF * 4, WS_CS)
    for j in range(8):
        a("s_mov_b32 s46, %d" % (j * 32 * DF * 2))
        a("buffer_load_dwordx4 v[%d:%d], v2, s[8:11], s46 offen" % (16 + 4 * j, 19 + 4 * j))
    for j in range(8):
        a("s_waitcnt vmcnt(%d)" % (7 - j))
        for q in range(4):
            r = 16 + 4 * j + q
            if j == 0:
                a("v_lshlrev_b32 v%d, 16, v%d" % (4 + 2 * q, r))
                a("v_and_b32 v%d, 0xffff0000, v%d" % (5 + 2 * q, r))
            else:
                a("v_lshlrev_b32 v12, 16, v%d" % r)
                a("v_and_b32 v13, 0xffff0000, v%d" % r)
                a("v_add_f32 v%d, v%d, v12" % (4 + 2 * q, 4 + 2 * q))
                a("v_add_f32 v%d, v%d, v13" % (5 + 2 * q, 5 + 2 * q))
    a("v_lshlrev_b32 v3, 5, v0")
    a("ds_write_b128 v3, v[4:7]")
    a("ds_write_b128 v3, v[8:11] offset:16")
    a("s_waitcnt lgkmcnt(0)")
    a("s_barrier")
    a("v_and_b32 v1, 63, v0")
    a("v_lshrrev_b32 v2, 6, v0")
    a("v_lshlrev_b32 v3, 2, v1")
    a("v_lshl_add_u32 v3, v2, 11, v3")
    for j in range(8):
        a("ds_read_b32 v%d, v3 offset:%d" % (4 + j, j * 256))
    a("s_waitcnt lgkmcnt(0)")
    for j in range(1, 8):
        a("v_add_f32 v4, v4, v%d" % (4 + j))
    a("v_lshlrev_b32 v3, 2, v0")
    a("ds_write_b32 v3, v4 offset:8192")
    a("s_waitcnt lgkmcnt(0)")
    a("s_barrier")
    a("v_lshlrev_b32 v3, 2, v1")
    for j in range(4):
        a("ds_read_b32 v%d, v3 offset:%d" % (4 + j, 8192 + j * 256))
    a("s_waitcnt lgkmcnt(0)")
    for j in range(1, 4):
        a("v_add_f32 v4, v4, v%d" % (4 + j))
    a("s_lshl_b32 s46, s3, 8")
    a("v_cmp_gt_u32 vcc, 64, v0")
    a("s_and_saveexec_b64 s[48:49], vcc")
    a("s_cbranch_execz %s" % end)
    a("buffer_atomic_add_f32 v4, v3, s[12:15], s46 offen")


def apply_kernel(a, name):
    kernel_header(a, name)
    end = a.newlabel("end")
    cs = a.newlabel("cs")
    a("s_cmp_ge_u32 s2, 256")
    a("s_cbranch_scc1 %s" % cs)
    rt_begin(a)
    a("s_load_dwordx2 s[4:5], s[0:1], %d" % KA['ws'])
    a("v_lshrrev_b32 v1, 6, v0")
    a("v_and_b32 v0, 63, v0")
    a("s_nop 0")
    a("v_readfirstlane_b32 s28, v1")
    a("v_and_b32 v2, 15, v0")
    a("v_lshrrev_b32 v3, 4, v0")
    a("s_and_b32 s29, s2, 7")
    a("s_lshr_b32 s30, s2, 3")
    a("s_lshl_b32 s29, s29, 2")
    a("s_add_u32 s29, s29, s28")
    a("s_waitcnt lgkmcnt(0)")
    srd_from_ptr(a, 8, 4, S * D * 2, WS_PQ)
    srd_from_ptr(a, 12, 4, 135168, WS_KV)
    srd_from_ptr(a, 16, 4, S * D * 2, WS_O)
    a("v_lshlrev_b32 v4, 7, v2")
    a("v_lshl_add_u32 v4, v3, 5, v4")
    a("s_lshl_b32 s31, s29, 12")
    a("buffer_load_dwordx4 v[8:11], v4, s[12:15], s31 offen")
    a("buffer_load_dwordx4 v[12:15], v4, s[12:15], s31 offen offset:16")
    a("buffer_load_dwordx4 v[16:19], v4, s[12:15], s31 offen offset:2048")
    a("buffer_load_dwordx4 v[20:23], v4, s[12:15], s31 offen offset:2064")
    a("v_lshlrev_b32 v5, 5, v3")
    a("s_lshl_b32 s32, s29, 7")
    a("s_add_u32 s32, s32, 131072")
    a("buffer_load_dwordx4 v[24:27], v5, s[12:15], s32 offen")
    a("buffer_load_dwordx4 v[28:31], v5, s[12:15], s32 offen offset:16")
    a("v_lshlrev_b32 v6, 11, v2")
    a("v_lshl_add_u32 v6, v3, 4, v6")
    a("s_lshl_b32 s33, s30, 17")
    a("s_lshl_b32 s34, s29, 6")
    a("s_add_u32 s33, s33, s34")
    for i in range(4):
        a("s_add_u32 s34, s33, %d" % (i * 32768))
        a("buffer_load_dwordx4 v[%d:%d], v6, s[8:11], s34 offen" % (32 + 4 * i, 35 + 4 * i))
    a("s_waitcnt vmcnt(4)")
    for j in range(4):
        a("v_cvt_pk_bf16_f32 v%d, v%d, v%d" % (48 + j, 8 + 2 * j, 9 + 2 * j))
        a("v_cvt_pk_bf16_f32 v%d, v%d, v%d" % (52 + j, 16 + 2 * j, 17 + 2 * j))
        a("v_cvt_pk_bf16_f32 v%d, v%d, v%d" % (56 + j, 24 + 2 * j, 25 + 2 * j))
    a("s_waitcnt vmcnt(0)")
    a("s_nop 1")
    for i in range(4):
        a("v_mfma_f32_16x16x32_bf16 v[%d:%d], v[48:51], v[%d:%d], 0" % (64 + 12 * i, 67 + 12 * i, 32 + 4 * i, 35 + 4 * i))
        a("v_mfma_f32_16x16x32_bf16 v[%d:%d], v[52:55], v[%d:%d], 0" % (68 + 12 * i, 71 + 12 * i, 32 + 4 * i, 35 + 4 * i))
        a("v_mfma_f32_16x16x32_bf16 v[%d:%d], v[56:59], v[%d:%d], 0" % (72 + 12 * i, 75 + 12 * i, 32 + 4 * i, 35 + 4 * i))
    a("v_lshlrev_b32 v7, 11, v2")
    a("v_lshl_add_u32 v7, v3, 3, v7")
    a("s_nop 7")
    a("s_nop 1")
    for i in range(4):
        b = 64 + 12 * i
        a("v_cvt_pk_bf16_f32 v%d, v%d, v%d" % (b + 8, b + 8, b + 8))
        a("v_lshlrev_b32 v%d, 16, v%d" % (b + 8, b + 8))
        a("v_add_f32 v%d, %s, v%d" % (b + 8, f32hex(1e-6), b + 8))
        a("v_rcp_f32 v%d, v%d" % (b + 8, b + 8))
        a("s_nop 0")
        for r in range(8):
            a("v_mul_f32 v%d, v%d, v%d" % (b + r, b + r, b + 8))
        for r in range(4):
            a("v_cvt_pk_bf16_f32 v%d, v%d, v%d" % (b + r, b + 2 * r, b + 2 * r + 1))
        a("s_add_u32 s34, s33, %d" % (i * 32768))
        a("buffer_store_dwordx2 v[%d:%d], v7, s[16:19], s34 offen" % (b, b + 1))
        a("buffer_store_dwordx2 v[%d:%d], v7, s[16:19], s34 offen offset:32" % (b + 2, b + 3))
    rt_end(a, 5)
    colsum_code(a, cs, end, 256)
    a.label(end)
    a("s_endpgm")
    return kernel_desc(name, 144, 144)


S_WAVE, S_TM, S_TN, S_CNT = 28, 29, 30, 31
S_KX, S_KW, S_RD, S_WR, S_MX, S_MW = 32, 33, 34, 35, 36, 37
S_B = [38, 39, 40]
S_T0 = 42
ACC0 = 28


def wave_affine(a, sd, coefs, tmp, base=0):
    a("s_mov_b32 s%d, %d" % (sd, base))
    for b, c in enumerate(coefs):
        if c:
            a("s_mul_i32 s%d, s%d, %d" % (tmp, S_B[b], c))
            a("s_add_u32 s%d, s%d, s%d" % (sd, sd, tmp))


def helper_colsum(a, nbar):
    a("s_waitcnt lgkmcnt(0)")
    idle = a.newlabel("hidle")
    a("s_cmp_ge_u32 s2, 224")
    a("s_cbranch_scc1 %s" % idle)
    a("s_lshr_b32 s40, s2, 1")
    a("s_and_b32 s41, s2, 1")
    a("s_cmp_ge_u32 s40, 56")
    a("s_cselect_b32 s82, s84, s82")
    a("s_cselect_b32 s83, s85, s83")
    a("s_cselect_b32 s42, 56, 0")
    a("s_sub_u32 s42, s40, s42")
    srd_from_ptr(a, 8, 82, D * DF * 2)
    srd_from_ptr(a, 12, 4, 2 * DF * 4, WS_CS)
    a("v_and_b32 v3, 7, v0")
    a("v_lshrrev_b32 v4, 3, v0")
    a("s_mov_b32 s43, %d" % (DF * 2))
    a("v_mul_lo_u32 v4, v4, s43")
    a("v_lshl_add_u32 v4, v3, 4, v4")
    a("s_lshl_b32 s43, s42, 7")
    a("s_mul_i32 s44, s41, %d" % (512 * DF * 2))
    a("s_add_u32 s43, s43, s44")
    for r in range(8):
        a("v_mov_b32 v%d, 0" % (8 + r))
    NB = 8
    bar = 0

    def issue(b):
        for j in range(8):
            a("buffer_load_dwordx4 v[%d:%d], v4, s[8:11], s43 offen" % (16 + (b & 1) * 32 + 4 * j, 19 + (b & 1) * 32 + 4 * j))
            a("s_add_u32 s43, s43, %d" % (8 * DF * 2))

    def consume(b):
        for j in range(8):
            for q in range(4):
                r = 16 + (b & 1) * 32 + 4 * j + q
                a("v_lshlrev_b32 v5, 16, v%d" % r)
                a("v_and_b32 v6, 0xffff0000, v%d" % r)
                a("v_add_f32 v%d, v%d, v5" % (8 + 2 * q, 8 + 2 * q))
                a("v_add_f32 v%d, v%d, v6" % (9 + 2 * q, 9 + 2 * q))
    issue(0)
    for b in range(NB):
        a("s_barrier"); bar += 1
        if b + 1 < NB:
            issue(b + 1)
        a("s_barrier"); bar += 1
        a("s_waitcnt vmcnt(%d)" % (8 if b + 1 < NB else 0))
        consume(b)
    for r in range(8):
        v = 8 + r
        a("s_nop 1")
        a("v_add_f32_dpp v5, v%d, v%d row_ror:8 row_mask:0xf bank_mask:0xf" % (v, v))
        a("v_mov_b32 v%d, v5" % v)
        xreduce(a, v, 5)
    a("v_lshlrev_b32 v3, 5, v0")
    a("s_lshl_b32 s43, s40, 8")
    a("s_mov_b64 exec, 0xff")
    for r in range(8):
        a("buffer_atomic_add_f32 v%d, v3, s[12:15], s43 offen offset:%d" % (8 + r, 4 * r))
    a("s_mov_b64 exec, -1")
    assert bar <= nbar
    for _ in range(nbar - bar):
        a("s_barrier")
    a("s_endpgm")
    a.label(idle)
    for _ in range(nbar):
        a("s_barrier")


def gemm_kernel(a, P):
    name = P['name']
    kernel_header(a, name)
    end = a.newlabel("end")
    a("s_cmp_ge_u32 s2, 256")
    a("s_cbranch_scc1 %s" % end)
    if "stamp" in EXP:
        a("s_memtime s[64:65]")
        a("s_load_dwordx2 s[72:73], s[0:1], %d" % KA['dbg'])
    if "rt" in EXP:
        a("s_memrealtime s[64:65]")
    a("s_load_dwordx2 s[4:5], s[0:1], %d" % KA['ws'])
    a("s_load_dwordx2 s[6:7], s[0:1], %d" % KA[P['w'][0]])
    if len(P['w']) > 1:
        a("s_load_dwordx2 s[60:61], s[0:1], %d" % KA[P['w'][1]])
    for (sd, key) in P.get('argptrs', []):
        a("s_load_dwordx2 s[%d:%d], s[0:1], %d" % (sd, sd + 1, KA[key]))
    for i, (key, nb) in enumerate(P.get('pf', []) + P.get('helper', [])):
        a("s_load_dwordx2 s[%d:%d], s[0:1], %d" % (82 + 2 * i, 83 + 2 * i, KA[key]))
    a("v_lshrrev_b32 v1, 6, v0")
    a("v_and_b32 v0, 63, v0")
    a("s_nop 0")
    a("v_readfirstlane_b32 s%d, v1" % S_WAVE)
    a("v_and_b32 v1, 15, v0")
    a("v_lshrrev_b32 v2, 4, v0")
    mblk_bits = P['mblk_bits']
    if P.get('splitk'):
        a("s_and_b32 s%d, s2, 7" % S_T0)
        a("s_lshr_b32 s%d, s2, 3" % (S_T0 + 1))
        a("s_and_b32 s99, s%d, 1" % (S_T0 + 1))
        a("s_lshr_b32 s%d, s%d, 1" % (S_T0 + 1, S_T0 + 1))
        a("s_and_b32 s%d, s%d, 3" % (S_TM, S_T0))
        a("s_lshl_b32 s%d, s%d, 2" % (S_TM, S_TM))
        a("s_and_b32 s%d, s%d, 3" % (S_T0 + 2, S_T0 + 1))
        a("s_add_u32 s%d, s%d, s%d" % (S_TM, S_TM, S_T0 + 2))
        a("s_lshr_b32 s%d, s%d, 2" % (S_TN, S_T0))
        a("s_lshl_b32 s%d, s%d, 2" % (S_TN, S_TN))
        a("s_lshr_b32 s%d, s%d, 2" % (S_T0 + 2, S_T0 + 1))
        a("s_add_u32 s%d, s%d, s%d" % (S_TN, S_TN, S_T0 + 2))
    else:
        a("s_and_b32 s%d, s2, 7" % S_T0)
        a("s_lshr_b32 s%d, s2, 3" % (S_T0 + 1))
        a("s_and_b32 s%d, s%d, %d" % (S_TM, S_T0, (1 << mblk_bits) - 1))
        a("s_lshl_b32 s%d, s%d, 3" % (S_TM, S_TM))
        a("s_and_b32 s%d, s%d, 7" % (S_T0 + 2, S_T0 + 1))
        a("s_add_u32 s%d, s%d, s%d" % (S_TM, S_TM, S_T0 + 2))
        a("s_lshr_b32 s%d, s%d, %d" % (S_TN, S_T0, mblk_bits))
        a("s_lshl_b32 s%d, s%d, 2" % (S_TN, S_TN))
        a("s_lshr_b32 s%d, s%d, 3" % (S_T0 + 2, S_T0 + 1))
        a("s_add_u32 s%d, s%d, s%d" % (S_TN, S_TN, S_T0 + 2))
    a("s_and_b32 s%d, s%d, 1" % (S_B[0], S_WAVE))
    a("s_bfe_u32 s%d, s%d, 0x10001" % (S_B[1], S_WAVE))
    a("s_lshr_b32 s%d, s%d, 2" % (S_B[2], S_WAVE))
    roles = P['roles']
    maxv = 0
    hl = None
    if P.get('helper'):
        hl = a.newlabel("helper")
        a("s_cmp_ge_u32 s%d, %d" % (S_WAVE, P['NW']))
        a("s_cbranch_scc1 %s" % hl)
    if len(roles) == 2:
        r1 = a.newlabel("role1")
        a("s_cmp_ge_u32 s%d, 4" % S_WAVE)
        a("s_cbranch_scc1 %s" % r1)
        nv0 = gemm_body(a, P, roles[0], end)
        a("s_branch %s" % end)
        a.label(r1)
        nv1 = gemm_body(a, P, roles[1], end)
        arch = max(nv0[0], nv1[0]); acc_n = max(nv0[1], nv1[1])
    else:
        arch, acc_n = gemm_body(a, P, roles[0], end)
    if hl:
        a("s_branch %s" % end)
        a.label(hl)
        helper_colsum(a, P['_nbar'])
    a.label(end)
    a("s_endpgm")
    arch = (arch + 3) // 4 * 4
    lim = 512 if P['NW'] == 4 else 256
    if hl:
        lim = 256 if P['NW'] == 4 else 168
    assert arch + acc_n <= lim, (name, arch, acc_n)
    return kernel_desc(name, arch + acc_n, arch)


S_RDX, S_WRX, S_RDW, S_WRW = 34, 35, 41, 96


def gemm_body(a, P, R, end):
    BM, K = P['BM'], P['K']
    kbx, kbw, NSX, NSW = P['kbx'], P['kbw'], P['NSX'], P['NSW']
    ldx, ldw = P['ldx'], P['ldw']
    nsteps = K // 32
    TX, TW = nsteps // kbx, nsteps // kbw
    XB = BM * kbx * 64
    WB = P['WB']
    WBASE = NSX * XB
    assert WBASE + NSW * WB <= 163840
    nxp = R['nxp']
    wsl = R['w_slot']
    nwp = len(wsl)
    mt = R['mt']
    ntl = R['ntiles']
    nt = len(ntl)
    wad = R['waddr']
    nwa = len(wad)
    V_L15, V_G = 1, 2
    v = 3
    V_XO = list(range(v, v + nxp)); v += nxp
    V_WO = list(range(v, v + nwp)); v += nwp
    nxa = kbx
    V_XAB = list(range(v, v + nxa)); v += nxa
    V_WAB = list(range(v, v + nwa)); v += nwa
    V_XA = list(range(v, v + nxa)); v += nxa
    V_WA = list(range(v, v + nwa)); v += nwa
    V_T = v; v += 4
    V_PF = V_T + 1 if 'pro' not in P else V_T
    assert v <= ACC0 - 1, v
    nacc = mt * nt * 4

    def acc(i, j):
        return ACC0 + (j * mt + i) * 4
    FS = (mt + nt) * 4

    def xf(s, i):
        return s * FS + i * 4

    def wf(s, j):
        return s * FS + mt * 4 + j * 4

    t0, t1, t2, t3 = V_T, V_T + 1, V_T + 2, V_T + 3
    rpp = 8 if kbx == 2 else 16
    if kbx == 2:
        a("v_lshrrev_b32 v%d, 3, v0" % t0)
        a("v_and_b32 v%d, 7, v0" % t1)
        a("v_xor_b32 v%d, v%d, v%d" % (t1, t1, t0))
    else:
        a("v_lshrrev_b32 v%d, 2, v0" % t0)
        a("v_bfe_u32 v%d, v0, 4, 1" % t2)
        a("v_bfe_u32 v%d, v0, 5, 1" % t3)
        a("v_xor_b32 v%d, v%d, v%d" % (t2, t2, t3))
        a("v_lshl_or_b32 v%d, v%d, 1, v%d" % (t2, t2, t3))
        a("v_and_b32 v%d, 3, v0" % t1)
        a("v_xor_b32 v%d, v%d, v%d" % (t1, t1, t2))
    if nxp:
        wave_affine(a, S_T0, [c * rpp for c in R['xp_coef']], S_T0 + 1)
        a("s_mul_i32 s%d, s%d, %d" % (S_T0 + 1, S_TM, BM))
        a("s_add_u32 s%d, s%d, s%d" % (S_T0, S_T0, S_T0 + 1))
        a("v_add_u32 v%d, s%d, v%d" % (t0, S_T0, t0))
        a("s_mov_b32 s%d, %d" % (S_T0 + 1, ldx))
        a("v_mul_lo_u32 v%d, v%d, s%d" % (t0, t0, S_T0 + 1))
        a("v_lshl_add_u32 v%d, v%d, 4, v%d" % (V_XO[0], t1, t0))
        for i in range(1, nxp):
            a("v_add_u32 v%d, 0x%x, v%d" % (V_XO[i], i * rpp * ldx, V_XO[0]))
        wave_affine(a, S_MX, [c * 1024 for c in R['xp_coef']], S_T0)
    a("s_mul_i32 s%d, s%d, %d" % (S_T0 + 2, S_TN, P['tn_bytes']))
    a("s_mov_b32 s%d, %d" % (S_T0 + 3, ldw))
    for typ in ('A', 'B'):
        sl = [i for i in range(nwp) if wsl[i][0] == typ]
        if not sl:
            continue
        if typ == 'A':
            a("v_lshrrev_b32 v%d, 3, v0" % t0)
            a("v_bfe_u32 v%d, v0, 4, 1" % t2)
            a("v_lshlrev_b32 v%d, 1, v%d" % (t2, t2))
            a("v_and_b32 v%d, 7, v0" % t1)
            a("v_xor_b32 v%d, v%d, v%d" % (t1, t1, t2))
        else:
            a("v_lshrrev_b32 v%d, 2, v0" % t0)
            a("v_lshrrev_b32 v%d, 5, v0" % t2)
            a("v_lshlrev_b32 v%d, 1, v%d" % (t2, t2))
            a("v_and_b32 v%d, 3, v0" % t1)
            a("v_xor_b32 v%d, v%d, v%d" % (t1, t1, t2))
        a("v_mul_lo_u32 v%d, v%d, s%d" % (t0, t0, S_T0 + 3))
        wave_affine(a, S_T0, R['wg_coef' + typ], S_T0 + 1)
        a("s_add_u32 s%d, s%d, s%d" % (S_T0, S_T0, S_T0 + 2))
        if 'par_off' + typ in P:
            c0, c1 = P['par_off' + typ]
            a("s_and_b32 s%d, s%d, 1" % (S_T0 + 1, S_TN))
            a("s_cmp_lg_u32 s%d, 0" % (S_T0 + 1))
            a("s_cselect_b32 s%d, %d, %d" % (S_T0 + 1, c1, c0))
            a("s_add_u32 s%d, s%d, s%d" % (S_T0, S_T0, S_T0 + 1))
        a("v_add_u32 v%d, s%d, v%d" % (t0, S_T0, t0))
        if typ == 'A':
            kp = R['ko_par']
            for i in sl:
                par_c, par_bit = wsl[i][3], kp
                if par_bit is None:
                    a("v_xor_b32 v%d, %d, v%d" % (t2, par_c * 4, t1))
                else:
                    a("s_lshl_b32 s%d, s%d, 2" % (S_T0 + 1, S_B[par_bit]))
                    a("s_xor_b32 s%d, s%d, %d" % (S_T0 + 1, S_T0 + 1, par_c * 4))
                    a("v_xor_b32 v%d, s%d, v%d" % (t2, S_T0 + 1, t1))
                a("v_lshl_add_u32 v%d, v%d, 4, v%d" % (t2, t2, t0))
                a("v_add_u32 v%d, 0x%x, v%d" % (V_WO[i], wsl[i][1], t2))
        else:
            a("v_lshl_add_u32 v%d, v%d, 4, v%d" % (t0, t1, t0))
            for i in sl:
                a("v_add_u32 v%d, 0x%x, v%d" % (V_WO[i], wsl[i][1], t0))
    S_MWA, S_MWB = S_MW, 97
    wave_affine(a, S_MWA, R['wl_coefA'], S_T0, base=WBASE)
    if any(w[0] == 'B' for w in wsl):
        wave_affine(a, S_MWB, R['wl_coefB'], S_T0, base=WBASE)
    a("s_waitcnt lgkmcnt(0)")
    srd_from_ptr(a, 8, 4, S * ldx, P['x_ws'])
    if len(P['w']) > 1:
        a("s_cmp_lg_u32 s%d, 0" % S_B[P['wsel_bit']])
        a("s_cselect_b32 s6, s60, s6")
        a("s_cselect_b32 s7, s61, s7")
    srd_from_ptr(a, 12, 6, K * ldw * P.get('splitk', 1))

    def dma_x():
        g = []
        for i in range(nxp):
            g.append(["s_add_u32 s%d, s%d, s%d" % (S_T0, S_WRX, S_MX),
                      "s_add_u32 m0, s%d, %d" % (S_T0, i * 1024),
                      "s_nop 0",
                      "buffer_load_dwordx4 v%d, s[8:11], s%d offen lds" % (V_XO[i], S_KX)])
        g.append(["s_add_u32 s%d, s%d, %d" % (S_KX, S_KX, kbx * 64)])
        return g

    def dma_w():
        g = []
        for i in range(nwp):
            g.append(["s_add_u32 s%d, s%d, s%d" % (S_T0, S_WRW, S_MWA if wsl[i][0] == 'A' else S_MWB),
                      "s_add_u32 m0, s%d, %d" % (S_T0, wsl[i][2]),
                      "s_nop 0",
                      "buffer_load_dwordx4 v%d, s[12:15], s%d offen lds" % (V_WO[i], S_KW)])
        g.append(["s_add_u32 s%d, s%d, %d" % (S_KW, S_KW, kbw * 32 * ldw)])
        return g

    issued = []

    def sim_issue(op, tile):
        for _ in range(nxp if op == 'X' else nwp):
            issued.append((op, tile))

    xst = P.get('x_static', False)
    protop = 0

    def sim_wait(s):
        need = {('X', s // kbx), ('W', s // kbw)}
        last = max(i for i, e in enumerate(issued) if e in need)
        return len(issued) - 1 - last

    npre = 0
    if 'pre' in P and 'nostat' not in EXP:
        npre = P['pre'](a, dict(R=R, V_L15=V_L15, V_G=V_G, V_T=V_T))
        issued.extend([('P', 0)] * npre)
    if P.get('splitk'):
        a("s_mul_i32 s%d, s99, %d" % (S_KX, K * 2))
        a("s_mul_i32 s%d, s99, %d" % (S_KW, K * ldw))
    else:
        a("s_mov_b32 s%d, 0" % S_KX)
        a("s_mov_b32 s%d, 0" % S_KW)
    a("s_mov_b32 s%d, 0" % S_WRX)
    a("s_mov_b32 s%d, 0" % S_WRW)
    order = sorted([(t * kbx, 0, 'X', t) for t in range(0 if xst else NSX - 1)] + [(t * kbw, 1, 'W', t) for t in range(NSW - 1)])
    for (_, _, op, t) in order:
        for g in (dma_x() if op == 'X' else dma_w()):
            for x in g:
                a(x)
        sim_issue(op, t)
        if op == 'X':
            a("s_add_u32 s%d, s%d, %d" % (S_WRX, S_WRX, XB))
        else:
            a("s_add_u32 s%d, s%d, %d" % (S_WRW, S_WRW, WB))
    P['srds'](a)
    if kbx == 2:
        a("v_and_b32 v%d, 7, v0" % t0)
        a("v_xor_b32 v%d, v%d, v%d" % (t0, t0, V_G))
        a("v_lshlrev_b32 v%d, 4, v%d" % (t0, t0))
        a("v_lshl_add_u32 v%d, v%d, 7, v%d" % (t0, V_L15, t0))
        wave_affine(a, S_T0, [c * 128 for c in R['row_coef']], S_T0 + 1)
        a("v_add_u32 v%d, s%d, v%d" % (V_XAB[0], S_T0, t0))
        a("v_xor_b32 v%d, 64, v%d" % (V_XAB[1], V_XAB[0]))
        xmstride = 2048
    else:
        a("v_bfe_u32 v%d, v0, 2, 1" % t2)
        a("v_bfe_u32 v%d, v0, 3, 1" % t3)
        a("v_xor_b32 v%d, v%d, v%d" % (t2, t2, t3))
        a("v_lshl_or_b32 v%d, v%d, 1, v%d" % (t2, t2, t3))
        a("v_xor_b32 v%d, v%d, v%d" % (t0, t2, V_G))
        a("v_lshlrev_b32 v%d, 4, v%d" % (t0, t0))
        a("v_lshl_add_u32 v%d, v%d, 6, v%d" % (t0, V_L15, t0))
        wave_affine(a, S_T0, [c * 64 for c in R['row_coef']], S_T0 + 1)
        a("v_add_u32 v%d, s%d, v%d" % (V_XAB[0], S_T0, t0))
        xmstride = 1024
    done = {}
    for wi, (typ, xc) in enumerate(wad):
        if typ in done:
            a("v_xor_b32 v%d, %d, v%d" % (V_WAB[wi], xc, V_WAB[done[typ]]))
            continue
        done[typ] = wi
        assert xc == 0
        if typ == 'A':
            a("s_mov_b32 s%d, %d" % (S_T0, P['kostrideA']))
            a("v_mul_lo_u32 v%d, v%d, s%d" % (t0, V_G, S_T0))
            a("v_lshrrev_b32 v%d, 2, v%d" % (t2, V_L15))
            a("v_lshl_add_u32 v%d, v%d, 7, v%d" % (t0, t2, t0))
            a("v_bfe_u32 v%d, v0, 3, 2" % t1)
            wave_affine(a, S_T0, R['t_coefA'], S_T0 + 1)
            a("v_xor_b32 v%d, s%d, v%d" % (t1, S_T0, t1))
            a("v_lshl_add_u32 v%d, v%d, 5, v%d" % (t0, t1, t0))
        else:
            a("v_lshrrev_b32 v%d, 1, v%d" % (t0, V_G))
            a("s_mov_b32 s%d, %d" % (S_T0, P['k16strideB']))
            a("v_mul_lo_u32 v%d, v%d, s%d" % (t0, t0, S_T0))
            a("v_and_b32 v%d, 1, v%d" % (t1, V_G))
            a("v_lshrrev_b32 v%d, 2, v%d" % (t2, V_L15))
            a("v_lshl_add_u32 v%d, v%d, 3, v%d" % (t2, t1, t2))
            a("v_lshl_add_u32 v%d, v%d, 6, v%d" % (t0, t2, t0))
            wave_affine(a, S_T0, R['t_coefB'], S_T0 + 1)
            a("v_xor_b32 v%d, s%d, v%d" % (t1, S_T0, t1))
            a("v_lshl_add_u32 v%d, v%d, 5, v%d" % (t0, t1, t0))
        a("v_bfe_u32 v%d, v0, 1, 1" % t2)
        a("v_lshl_add_u32 v%d, v%d, 4, v%d" % (t0, t2, t0))
        a("v_and_b32 v%d, 1, v0" % t2)
        a("v_lshl_add_u32 v%d, v%d, 3, v%d" % (t0, t2, t0))
        wave_affine(a, S_T0, R['wr_coef'], S_T0 + 1, base=WBASE)
        a("v_add_u32 v%d, s%d, v%d" % (V_WAB[wi], S_T0, t0))

    def reads(fs, s):
        r = []
        ksx = s % kbx
        ksw = s % kbw
        for i in range(mt):
            r.append(["ds_read_b128 a[%d:%d], v%d offset:%d" % (xf(fs, i), xf(fs, i) + 3, V_XA[ksx], i * xmstride)])
        for j, (asel, loff, sw) in enumerate(ntl):
            typ = wad[asel][0]
            for hf in range(2):
                if typ == 'A':
                    off = loff + hf * 512 + ksw * 4 * P['kostrideA']
                else:
                    off = loff + hf * 256 + ksw * 2 * P['k16strideB']
                r.append(["ds_read_b64_tr_b16 a[%d:%d], v%d offset:%d" % (wf(fs, j) + 2 * hf, wf(fs, j) + 2 * hf + 1, V_WA[asel], off)])
        return r

    def mfmas(fs, first):
        m = []
        for j, (asel, loff, sw) in enumerate(ntl):
            for i in range(mt):
                A, B = (wf(fs, j), xf(fs, i)) if sw else (xf(fs, i), wf(fs, j))
                c = acc(i, j)
                cin = "0" if first else "v[%d:%d]" % (c, c + 3)
                m.append("v_mfma_f32_16x16x32_bf16 v[%d:%d], a[%d:%d], a[%d:%d], %s" % (c, c + 3, A, A + 3, B, B + 3, cin))
        return m

    def upd_x():
        return ["v_add_u32 v%d, s%d, v%d" % (V_XA[x], S_RDX, V_XAB[x]) for x in range(nxa)]

    def upd_w():
        return ["v_add_u32 v%d, s%d, v%d" % (V_WA[x], S_RDW, V_WAB[x]) for x in range(nwa)]

    if 'pro' in P and 'nostat' not in EXP:
        protop = P['pro'](a, dict(R=R, V_L15=V_L15, V_G=V_G, V_T=V_T, nissued=len(issued) - npre)) or 0
        issued.append(('P', 0))
    if "prio" in EXP and P['NW'] == 8:
        sk = a.newlabel("np")
        a("s_cmp_lt_u32 s%d, 4" % S_WAVE)
        a("s_cbranch_scc1 %s" % sk)
        a("s_setprio 1")
        a.label(sk)
    a("s_mov_b32 s%d, 0" % S_RDX)
    a("s_mov_b32 s%d, 0" % S_RDW)
    for x in upd_x() + upd_w():
        a(x)
    a("s_waitcnt vmcnt(%d) lgkmcnt(0)" % sim_wait(0))
    a("s_barrier")
    for r in reads(0, 0):
        for x in r:
            a(x)
    for g in ([] if xst else dma_x()) + dma_w():
        for x in g:
            a(x)
    if not xst:
        sim_issue('X', NSX - 1)
    sim_issue('W', NSW - 1)
    a("s_waitcnt lgkmcnt(0)")

    def gen_step(n):
        o = []
        fs = n & 1
        last = (n + 1 == nsteps)
        s1 = n + 1
        evx = (not last) and (s1 % kbx == 0)
        evw = (not last) and (s1 % kbw == 0)
        extras = []
        dmas = []
        if evx or evw:
            if evx:
                o += ["s_mov_b32 s%d, s%d" % (S_WRX, S_RDX),
                      "s_add_u32 s%d, s%d, %d" % (S_RDX, S_RDX, XB),
                      "s_cmp_eq_u32 s%d, %d" % (S_RDX, NSX * XB),
                      "s_cselect_b32 s%d, 0, s%d" % (S_RDX, S_RDX)] + upd_x()
            if evw:
                o += ["s_mov_b32 s%d, s%d" % (S_WRW, S_RDW),
                      "s_add_u32 s%d, s%d, %d" % (S_RDW, S_RDW, WB),
                      "s_cmp_eq_u32 s%d, %d" % (S_RDW, NSW * WB),
                      "s_cselect_b32 s%d, 0, s%d" % (S_RDW, S_RDW)] + upd_w()
            o.append("s_waitcnt vmcnt(%d)" % sim_wait(s1))
            o.append("s_barrier")
            if evw and s1 // kbw - 1 + NSW < TW:
                dmas += dma_w()
                sim_issue('W', s1 // kbw - 1 + NSW)
            if evx and s1 // kbx - 1 + NSX < TX and not xst:
                dmas += dma_x()
                sim_issue('X', s1 // kbx - 1 + NSX)
        if not last and "noread" not in EXP:
            extras += reads(fs ^ 1, s1)
        if "nodma" not in EXP:
            if P.get('dma_first') or "dmafirst" in EXP:
                extras = dmas + extras
            else:
                extras += dmas
        if n == P.get('pf_step', nsteps - 4) and P.get('pf'):
            g = []
            for i, (key, nb) in enumerate(P['pf']):
                per = (nb + 256 * P['NW'] * 4096 - 1) // (256 * P['NW'] * 4096)
                g += ["s_mov_b32 s88, s%d" % (82 + 2 * i), "s_mov_b32 s89, s%d" % (83 + 2 * i),
                      "s_mov_b32 s90, 0x%x" % nb, "s_mov_b32 s91, 0x00020000",
                      "s_mul_i32 s98, s2, %d" % P['NW'],
                      "s_add_u32 s98, s98, s%d" % S_WAVE,
                      "s_mul_i32 s98, s98, %d" % (per * 4096),
                      "v_lshlrev_b32 v%d, 6, v0" % V_T]
                for j in range(per):
                    g += ["buffer_load_dword v%d, v%d, s[88:91], s%d offen" % (V_PF, V_T, 98),
                          "s_add_u32 s98, s98, 4096"]
                    issued.append(('P', 0))
            extras.append(g)
        if n == nsteps - 3 and 'early' in P:
            ee = P['early'](dict(R=R, V_L15=V_L15, V_G=V_G, mt=mt, nt=nt, free=ACC0 + nacc))
            extras += ee
            issued.extend([('P', 0)] * sum(1 for g in ee for x in g if x.startswith("buffer_")))
        if last and 'last_extras' in P:
            extras += P['last_extras'](dict(R=R, V_L15=V_L15, V_G=V_G, V_XO=V_XO, afree=xf(fs ^ 1, 0)))
        mm = mfmas(fs, n == 0)
        if "nomfma" in EXP:
            mm = ["s_nop 0"] * 2
        nm = len(mm)
        ne = len(extras)
        span = max(1, int(nm * float(os.environ.get('SPAN', P.get('span', 0.85)))))
        pos = [min(nm - 1, (k * span) // max(ne, 1)) for k in range(ne)]
        k = 0
        for idx, m in enumerate(mm):
            o.append(m)
            while k < ne and pos[k] == idx:
                o += extras[k]
                k += 1
        if not last:
            o.append("s_waitcnt lgkmcnt(0)")
        return o

    if "stamp" in EXP:
        a("s_memtime s[66:67]")
        a("s_memrealtime s[92:93]")
        a("s_waitcnt lgkmcnt(0)")
    if "rt" in EXP:
        a("s_memrealtime s[66:67]")
        a("s_waitcnt lgkmcnt(0)")
    codes = [gen_step(n) for n in range(nsteps)]
    P['_nbar'] = 1 + sum(c.count("s_barrier") for c in codes) + P.get('epi_bars', 0)
    bodies = [codes[n] + codes[n + 1] for n in range(0, nsteps, 2)]
    i = 0
    while i < len(bodies):
        j = i
        while j + 1 < len(bodies) and bodies[j + 1] == bodies[i]:
            j += 1
        cnt = j - i + 1
        if cnt >= 3:
            a("s_mov_b32 s%d, %d" % (S_CNT, cnt))
            loop = a.newlabel("loop")
            a.label(loop)
            for x in bodies[i]:
                a(x)
            a("s_sub_u32 s%d, s%d, 1" % (S_CNT, S_CNT))
            a("s_cmp_lg_u32 s%d, 0" % S_CNT)
            a("s_cbranch_scc1 %s" % loop)
        else:
            for b in bodies[i:j + 1]:
                for x in b:
                    a(x)
        i = j + 1
    if "stamp" in EXP:
        a("s_memtime s[68:69]")
        a("s_memrealtime s[94:95]")
        a("s_waitcnt lgkmcnt(0)")
    if "rt" in EXP:
        a("s_memrealtime s[68:69]")
        a("s_waitcnt lgkmcnt(0)")
    a("s_nop 7")
    ctx = dict(acc=acc, mt=mt, nt=nt, V_L15=V_L15, V_G=V_G, BM=BM, nacc=nacc, R=R, free=ACC0 + nacc, afree=xf(nsteps & 1, 0))
    top = P['epilogue'](a, ctx)
    if "rt" in EXP:
        a("s_waitcnt vmcnt(0)")
        a("s_memrealtime s[70:71]")
        a("s_waitcnt lgkmcnt(0)")
        a("s_cmp_lg_u32 s%d, 0" % S_WAVE)
        a("s_cbranch_scc1 %s" % end)
        srd_from_ptr(a, 76, 4, 65536, 64 * MB + P['rtidx'] * 65536)
        a("v_mov_b32 v4, s64")
        a("v_mov_b32 v5, s66")
        a("v_mov_b32 v6, s68")
        a("v_mov_b32 v7, s70")
        a("s_lshl_b32 s80, s2, 4")
        a("v_mov_b32 v8, s80")
        a("s_mov_b64 exec, 1")
        a("buffer_store_dwordx4 v[4:7], v8, s[76:79], 0 offen")
    if "stamp" in EXP:
        a("s_waitcnt vmcnt(0)")
        a("s_memtime s[70:71]")
        a("s_waitcnt lgkmcnt(0)")
        a("s_cmp_lg_u32 s%d, 0" % S_WAVE)
        a("s_cbranch_scc1 %s" % end)
        a("s_cmp_ge_u32 s2, 16")
        a("s_cbranch_scc1 %s" % end)
        a("s_sub_u32 s66, s66, s64")
        a("s_sub_u32 s68, s68, s64")
        a("s_sub_u32 s70, s70, s64")
        a("s_mov_b32 s76, s72")
        a("s_mov_b32 s77, s73")
        a("s_mov_b32 s78, 256")
        a("s_mov_b32 s79, 0x20000")
        a("s_sub_u32 s64, s94, s92")
        a("v_mov_b32 v4, s64")
        a("v_mov_b32 v5, s66")
        a("v_mov_b32 v6, s68")
        a("v_mov_b32 v7, s70")
        a("s_lshl_b32 s80, s2, 4")
        a("v_mov_b32 v8, s80")
        a("s_mov_b64 exec, 1")
        a("buffer_store_dwordx4 v[4:7], v8, s[76:79], 0 offen")
    return max(top or 0, ACC0 + nacc, protop), 2 * FS


def phi_ops(a, regs, tmp):
    for r, t in zip(regs, tmp):
        a("v_min_f32 v%d, 0, v%d" % (t, r))
    for r, t in zip(regs, tmp):
        a("v_mul_f32 v%d, %s, v%d" % (t, f32hex(LOG2E), t))
    for r, t in zip(regs, tmp):
        a("v_exp_f32 v%d, v%d" % (t, t))
    for r, t in zip(regs, tmp):
        a("v_max_f32 v%d, 0, v%d" % (r, r))
    for r, t in zip(regs, tmp):
        a("v_add_f32 v%d, v%d, v%d" % (r, r, t))
    for r, t in zip(regs, tmp):
        a("v_add_f32 v%d, %s, v%d" % (r, f32hex(1e-6), r))


def round4(a, c, t0, t1):
    a("v_cvt_pk_bf16_f32 v%d, v%d, v%d" % (t0, c, c + 1))
    a("v_cvt_pk_bf16_f32 v%d, v%d, v%d" % (t1, c + 2, c + 3))
    a("v_lshlrev_b32 v%d, 16, v%d" % (c, t0))
    a("v_and_b32 v%d, 0xffff0000, v%d" % (c + 1, t0))
    a("v_lshlrev_b32 v%d, 16, v%d" % (c + 2, t1))
    a("v_and_b32 v%d, 0xffff0000, v%d" % (c + 3, t1))


def epi_gemm1(a, c):
    acc, V_L15, V_G, R = c['acc'], c['V_L15'], c['V_G'], c['R']
    F = c['free']
    TMP = 4
    wave_affine(a, S_T0, [r * 2048 for r in R['row_coef']], S_T0 + 1)
    a("s_lshl_b32 s%d, s%d, 18" % (S_T0 + 1, S_TM))
    a("s_add_u32 s%d, s%d, s%d" % (S_T0, S_T0, S_T0 + 1))
    a("s_lshl_b32 s%d, s%d, 7" % (S_T0 + 1, S_TN))
    a("s_add_u32 s%d, s%d, s%d" % (S_T0, S_T0, S_T0 + 1))
    a("s_lshl_b32 s%d, s%d, 6" % (S_T0 + 1, S_B[1]))
    a("s_add_u32 s%d, s%d, s%d" % (S_T0, S_T0, S_T0 + 1))
    a("s_add_u32 s%d, s%d, %d" % (S_T0 + 1, S_T0, 16 * 2048))
    a("v_lshlrev_b32 v8, 11, v%d" % V_L15)
    a("v_lshl_add_u32 v8, v%d, 3, v8" % V_G)
    PK, VF, ONE = F, F + 8, F + 16
    KVA, ZA = acc(0, 2), acc(0, 2) + 16
    top = F + 20
    for i in range(2):
        for dt in range(2):
            cc = acc(i, 2 + dt)
            round4(a, cc, TMP, TMP + 1)
            phi_ops(a, [cc + r for r in range(4)], [TMP + r for r in range(4)])
            d = PK + dt * 4 + i * 2
            a("v_cvt_pk_bf16_f32 v%d, v%d, v%d" % (d, cc, cc + 1))
            a("v_cvt_pk_bf16_f32 v%d, v%d, v%d" % (d + 1, cc + 2, cc + 3))
        for et in range(2):
            cc = acc(i, 4 + et)
            d = VF + et * 4 + i * 2
            a("v_cvt_pk_bf16_f32 v%d, v%d, v%d" % (d, cc, cc + 1))
            a("v_cvt_pk_bf16_f32 v%d, v%d, v%d" % (d + 1, cc + 2, cc + 3))
    for r in range(4):
        a("v_mov_b32 v%d, 0x3f803f80" % (ONE + r))
    a("s_nop 1")
    for et in range(2):
        for dt in range(2):
            d = KVA + (et * 2 + dt) * 4
            A = VF + et * 4
            B = PK + dt * 4
            a("v_mfma_f32_16x16x32_bf16 v[%d:%d], v[%d:%d], v[%d:%d], 0" % (d, d + 3, A, A + 3, B, B + 3))
    for dt in range(2):
        d = ZA + dt * 4
        B = PK + dt * 4
        a("v_mfma_f32_16x16x32_bf16 v[%d:%d], v[%d:%d], v[%d:%d], 0" % (d, d + 3, ONE, ONE + 3, B, B + 3))
    for i in range(2):
        for j in range(2):
            cc = acc(i, j)
            round4(a, cc, TMP, TMP + 1)
            phi_ops(a, [cc + r for r in range(4)], [TMP + r for r in range(4)])
            a("v_cvt_pk_bf16_f32 v%d, v%d, v%d" % (cc, cc, cc + 1))
            a("v_cvt_pk_bf16_f32 v%d, v%d, v%d" % (cc + 1, cc + 2, cc + 3))
            a("buffer_store_dwordx2 v[%d:%d], v8, s[16:19], s%d offen offset:%d" % (cc, cc + 1, S_T0 + i, j * 32))
    a("s_barrier")
    a("s_mul_i32 s%d, s%d, 5120" % (S_T0 + 2, S_WAVE))
    a("v_lshlrev_b32 v9, 4, v0")
    a("v_add_u32 v9, s%d, v9" % (S_T0 + 2))
    for t in range(4):
        a("ds_write_b128 v9, v[%d:%d] offset:%d" % (KVA + 4 * t, KVA + 4 * t + 3, t * 1024))
    a("v_mov_b32 v%d, v%d" % (ZA + 1, ZA + 4))
    a("ds_write_b64 v9, v[%d:%d] offset:4096" % (ZA, ZA + 1))
    a("s_waitcnt lgkmcnt(0)")
    a("s_barrier")
    wave_affine(a, S_T0 + 2, [64, 2 * 5120, 2048], S_T0 + 3)
    a("v_lshlrev_b32 v9, 8, v%d" % V_G)
    a("v_and_b32 v10, 3, v0")
    a("v_lshl_add_u32 v9, v10, 4, v9")
    a("v_bfe_u32 v10, v0, 2, 2")
    a("v_lshl_add_u32 v9, v10, 2, v9")
    a("v_add_u32 v9, s%d, v9" % (S_T0 + 2))
    for k in range(4):
        for q, wv in enumerate((0, 1, 4, 5)):
            a("ds_read_b32 v%d, v9 offset:%d" % (KVA + 4 * q + k, wv * 5120 + (k >> 1) * 1024 + (k & 1) * 128))
    wave_affine(a, S_T0 + 3, [0, 2 * 5120, 0], S_T0 + 4, base=4096)
    a("v_lshlrev_b32 v10, 4, v0")
    a("v_add_u32 v10, s%d, v10" % (S_T0 + 3))
    for k, wv in enumerate((0, 1, 4, 5)):
        a("ds_read_b64 v[%d:%d], v10 offset:%d" % (ZA + 2 * k, ZA + 2 * k + 1, wv * 5120))
    a("s_lshl_b32 s%d, s%d, 1" % (S_T0, S_TN))
    a("s_add_u32 s%d, s%d, s%d" % (S_T0, S_T0, S_B[1]))
    a("s_lshl_b32 s%d, s%d, 12" % (S_T0 + 1, S_T0))
    wave_affine(a, S_T0 + 4, [1024, 0, 2048], S_T0 + 5)
    a("s_add_u32 s%d, s%d, s%d" % (S_T0 + 1, S_T0 + 1, S_T0 + 4))
    a("s_lshl_b32 s%d, s%d, 7" % (S_T0 + 2, S_T0))
    a("s_add_u32 s%d, s%d, 131072" % (S_T0 + 2, S_T0 + 2))
    a("v_lshlrev_b32 v8, 2, v0")
    a("v_lshlrev_b32 v9, 2, v%d" % V_L15)
    a("s_waitcnt lgkmcnt(0)")
    for r in range(4):
        a("v_add_f32 v%d, v%d, v%d" % (KVA + r, KVA + r, KVA + 4 + r))
        a("v_add_f32 v%d, v%d, v%d" % (KVA + 8 + r, KVA + 8 + r, KVA + 12 + r))
    for r in range(4):
        a("v_add_f32 v%d, v%d, v%d" % (KVA + r, KVA + r, KVA + 8 + r))
    for r in range(4):
        a("buffer_atomic_add_f32 v%d, v8, s[20:23], s%d offen offset:%d" % (KVA + r, S_T0 + 1, r * 256))
    skip = a.newlabel("noz")
    a("s_or_b32 s%d, s%d, s%d" % (S_T0 + 3, S_B[0], S_B[2]))
    a("s_cmp_lg_u32 s%d, 0" % (S_T0 + 3))
    a("s_cbranch_scc1 %s" % skip)
    for r in range(2):
        a("v_add_f32 v%d, v%d, v%d" % (ZA + r, ZA + r, ZA + 2 + r))
        a("v_add_f32 v%d, v%d, v%d" % (ZA + 4 + r, ZA + 4 + r, ZA + 6 + r))
    for r in range(2):
        a("v_add_f32 v%d, v%d, v%d" % (ZA + r, ZA + r, ZA + 4 + r))
    a("s_mov_b64 exec, 0xffff")
    for dt in range(2):
        a("buffer_atomic_add_f32 v%d, v9, s[20:23], s%d offen offset:%d" % (ZA + dt, S_T0 + 2, dt * 64))
    a("s_mov_b64 exec, -1")
    a.label(skip)
    return top


def xreduce(a, v, t):
    a("v_mov_b32 v%d, v%d" % (t, v))
    a("s_nop 1")
    a("v_permlane16_swap_b32 v%d, v%d" % (v, t))
    a("s_nop 1")
    a("v_add_f32 v%d, v%d, v%d" % (v, v, t))
    a("v_mov_b32 v%d, v%d" % (t, v))
    a("s_nop 1")
    a("v_permlane32_swap_b32 v%d, v%d" % (v, t))
    a("s_nop 1")
    a("v_add_f32 v%d, v%d, v%d" % (v, v, t))


def pro_gemm2(a, c):
    V_L15, V_G = c['V_L15'], c['V_G']
    B = ACC0
    NH = 4
    NT = NH // 2
    LH = {4: 2, 8: 3}[NH]
    srd_from_ptr(a, 44, 4, S * D * 2, WS_PQ)
    srd_from_ptr(a, 52, 4, 135168, WS_KV)
    VK, VZ, VD, VT = B, B + 1, B + 2, B + 3
    VW = [B + 4, B + 5, B + 6, B + 7]
    VR = [B + 8, B + 9]
    a("v_lshrrev_b32 v%d, 3, v0" % VT)
    a("v_and_b32 v%d, 7, v0" % VD)
    a("v_xor_b32 v%d, v%d, v%d" % (VD, VD, VT))
    a("v_lshlrev_b32 v%d, 4, v%d" % (VD, VD))
    a("v_lshl_add_u32 v%d, v%d, 11, v%d" % (VD, VT, VD))
    a("s_lshl_b32 s58, s%d, 17" % S_TM)
    a("s_lshl_b32 s59, s%d, %d" % (S_WAVE, 6 + LH))
    a("s_add_u32 s58, s58, s59")
    a("s_lshl_b32 s57, s%d, %d" % (S_WAVE, 12 + LH))
    a("v_lshlrev_b32 v%d, 4, v0" % VK)
    a("v_lshlrev_b32 v%d, 5, v%d" % (VZ, V_G))
    a("s_lshl_b32 s56, s%d, %d" % (S_WAVE, 12 + LH))
    a("s_lshl_b32 s65, s%d, %d" % (S_WAVE, 7 + LH))
    a("s_add_u32 s65, s65, 131072")
    LD = B + 12
    for u in range(NT):
        for pc in range(8):
            a("s_add_u32 s59, s58, %d" % (pc * 16384 + u * 128))
            a("s_add_u32 m0, s57, %d" % (u * 8192 + pc * 1024))
            a("s_nop 0")
            a("buffer_load_dwordx4 v%d, s[44:47], s59 offen lds" % VD)
        for hh in (2 * u, 2 * u + 1):
            b = LD + hh * 24
            a("s_add_u32 s66, s56, %d" % (hh * 4096))
            for k in range(4):
                a("buffer_load_dwordx4 v[%d:%d], v%d, s[52:55], s66 offen offset:%d" % (b + 4 * k, b + 4 * k + 3, VK, k * 1024))
            a("buffer_load_dwordx4 v[%d:%d], v%d, s[52:55], s65 offen offset:%d" % (b + 16, b + 19, VZ, hh * 128))
            a("buffer_load_dwordx4 v[%d:%d], v%d, s[52:55], s65 offen offset:%d" % (b + 20, b + 23, VZ, hh * 128 + 16))
    a("v_and_b32 v%d, 7, v0" % VT)
    a("v_xor_b32 v%d, v%d, v%d" % (VR[0], VT, V_G))
    a("v_lshlrev_b32 v%d, 4, v%d" % (VR[0], VR[0]))
    a("v_lshl_add_u32 v%d, v%d, 7, v%d" % (VR[0], V_L15, VR[0]))
    a("v_add_u32 v%d, s57, v%d" % (VR[0], VR[0]))
    a("v_xor_b32 v%d, 64, v%d" % (VR[1], VR[0]))
    a("v_lshrrev_b32 v%d, 1, v%d" % (VW[0], V_G))
    a("v_xor_b32 v%d, v%d, v%d" % (VW[0], VW[0], VT))
    a("v_lshlrev_b32 v%d, 4, v%d" % (VW[0], VW[0]))
    a("v_lshl_add_u32 v%d, v%d, 7, v%d" % (VW[0], V_L15, VW[0]))
    a("v_and_b32 v%d, 1, v%d" % (VW[1], V_G))
    a("v_lshl_add_u32 v%d, v%d, 3, v%d" % (VW[0], VW[1], VW[0]))
    a("v_add_u32 v%d, s57, v%d" % (VW[0], VW[0]))
    for k in range(1, 4):
        a("v_xor_b32 v%d, %d, v%d" % (VW[k], 32 * k, VW[0]))
    for hh in range(NH):
        b = LD + hh * 24
        a("s_waitcnt vmcnt(%d)" % min(63, 20 * (NT - 1 - (hh >> 1)) + 6 * (1 - (hh & 1))))
        aq = (hh & 1) * 16
        for i in range(4):
            a("ds_read_b128 a[%d:%d], v%d offset:%d" % (aq + 4 * i, aq + 4 * i + 3, VR[hh & 1], (hh >> 1) * 8192 + i * 2048))
        for j in range(12):
            a("v_cvt_pk_bf16_f32 v%d, v%d, v%d" % (b + j, b + 2 * j, b + 2 * j + 1))
        a("s_waitcnt lgkmcnt(0)")
        RS = LD + NH * 24
        for i0 in (0, 2):
            for i in (i0, i0 + 1):
                for t in range(3):
                    d = RS + 12 * (i - i0) + 4 * t
                    a("v_mfma_f32_16x16x32_bf16 v[%d:%d], v[%d:%d], a[%d:%d], 0" % (d, d + 3, b + 4 * t, b + 4 * t + 3, aq + 4 * i, aq + 4 * i + 3))
            a("s_nop 7")
            for i in (i0, i0 + 1):
                d = RS + 12 * (i - i0)
                a("v_cvt_pk_bf16_f32 v%d, v%d, v%d" % (d + 8, d + 8, d + 8))
            for i in (i0, i0 + 1):
                d = RS + 12 * (i - i0)
                a("v_lshlrev_b32 v%d, 16, v%d" % (d + 8, d + 8))
            for i in (i0, i0 + 1):
                d = RS + 12 * (i - i0)
                a("v_add_f32 v%d, %s, v%d" % (d + 8, f32hex(1e-6), d + 8))
            for i in (i0, i0 + 1):
                d = RS + 12 * (i - i0)
                a("v_rcp_f32 v%d, v%d" % (d + 8, d + 8))
            a("s_nop 0")
            for i in (i0, i0 + 1):
                d = RS + 12 * (i - i0)
                for r in range(8):
                    a("v_mul_f32 v%d, v%d, v%d" % (d + r, d + r, d + 8))
                for r in range(4):
                    a("v_cvt_pk_bf16_f32 v%d, v%d, v%d" % (b + 12 + 4 * (i & 1) + r, d + 2 * r, d + 2 * r + 1))
                for et in range(2):
                    o = b + 12 + 4 * (i & 1) + 2 * et
                    a("ds_write_b64 v%d, v[%d:%d] offset:%d" % (VW[(hh & 1) * 2 + et], o, o + 1, (hh >> 1) * 8192 + i * 2048))
            if i0 == 0:
                a("s_waitcnt lgkmcnt(0)")
    return LD + NH * 24 + 24


def early_resid(c):
    V_L15, V_G, mt, nt, F = c['V_L15'], c['V_G'], c['mt'], c['nt'], c['free']
    T = 50
    g = ["s_lshl_b32 s%d, s%d, 6" % (T, S_TM),
         "s_lshl_b32 s%d, s%d, 5" % (T + 1, S_B[0]),
         "s_add_u32 s%d, s%d, s%d" % (T, T, T + 1),
         "s_lshl_b32 s%d, s%d, 11" % (T, T),
         "s_lshl_b32 s%d, s%d, 8" % (T + 1, S_TN),
         "s_add_u32 s%d, s%d, s%d" % (T, T, T + 1),
         "s_lshl_b32 s%d, s%d, 5" % (T + 1, S_B[1]),
         "s_add_u32 s%d, s%d, s%d" % (T, T, T + 1),
         "s_lshl_b32 s%d, s%d, 7" % (T + 1, S_B[2]),
         "s_add_u32 s%d, s%d, s%d" % (T, T, T + 1),
         "s_add_u32 s%d, s%d, %d" % (T + 1, T, 16 * 2048),
         "v_lshlrev_b32 v%d, 11, v%d" % (F, V_L15),
         "v_lshl_add_u32 v%d, v%d, 3, v%d" % (F, V_G, F)]
    for i in range(mt):
        for j in range(nt):
            d = F + 2 + (i * nt + j) * 2
            g.append("buffer_load_dwordx2 v[%d:%d], v%d, s[20:23], s%d offen offset:%d" % (d, d + 1, F, T + i, j * 64))
    return [g]


def epi_resid_stats(a, c):
    return epi_resid(a, c, True)


def epi_resid(a, c, stats=False):
    acc, V_L15, V_G, mt, nt = c['acc'], c['V_L15'], c['V_G'], c['mt'], c['nt']
    F = c['free']
    Rr = F + 2
    S_T0 = 50
    for i in range(mt):
        for j in range(nt):
            round4(a, acc(i, j), 4, 5)
    a("s_waitcnt vmcnt(0)")
    for i in range(mt):
        for j in range(nt):
            d = Rr + (i * nt + j) * 2
            cc = acc(i, j)
            a("v_lshlrev_b32 v4, 16, v%d" % d)
            a("v_and_b32 v5, 0xffff0000, v%d" % d)
            a("v_add_f32 v%d, v%d, v4" % (cc, cc))
            a("v_add_f32 v%d, v%d, v5" % (cc + 1, cc + 1))
            a("v_lshlrev_b32 v4, 16, v%d" % (d + 1))
            a("v_and_b32 v5, 0xffff0000, v%d" % (d + 1))
            a("v_add_f32 v%d, v%d, v4" % (cc + 2, cc + 2))
            a("v_add_f32 v%d, v%d, v5" % (cc + 3, cc + 3))
            a("v_cvt_pk_bf16_f32 v%d, v%d, v%d" % (d, cc, cc + 1))
            a("v_cvt_pk_bf16_f32 v%d, v%d, v%d" % (d + 1, cc + 2, cc + 3))
            a("buffer_store_dwordx2 v[%d:%d], v%d, s[16:19], s%d offen offset:%d" % (d, d + 1, F, S_T0 + i, j * 64))
    if stats:
        a("s_lshl_b32 s%d, s%d, 6" % (S_T0 + 2, S_TM))
        a("s_lshl_b32 s%d, s%d, 5" % (S_T0 + 3, S_B[0]))
        a("s_add_u32 s%d, s%d, s%d" % (S_T0 + 2, S_T0 + 2, S_T0 + 3))
        a("s_lshl_b32 s%d, s%d, 6" % (S_T0 + 2, S_T0 + 2))
        a("s_lshl_b32 s%d, s%d, 3" % (S_T0 + 3, S_TN))
        a("s_add_u32 s%d, s%d, s%d" % (S_T0 + 2, S_T0 + 2, S_T0 + 3))
        a("v_lshlrev_b32 v9, 6, v%d" % V_L15)
        for i in range(mt):
            regs = [acc(i, j) + r for j in range(nt) for r in range(4)]
            m, q = 10 + 2 * i, 11 + 2 * i
            a("v_add_f32 v%d, v%d, v%d" % (m, regs[0], regs[1]))
            for r in regs[2:]:
                a("v_add_f32 v%d, v%d, v%d" % (m, m, r))
            xreduce(a, m, 4)
            a("v_mul_f32 v%d, %s, v%d" % (m, f32hex(1.0 / (16 * nt)), m))
            a("v_sub_f32 v4, v%d, v%d" % (regs[0], m))
            a("v_mul_f32 v%d, v4, v4" % q)
            for r in regs[1:]:
                a("v_sub_f32 v4, v%d, v%d" % (r, m))
                a("v_fmac_f32 v%d, v4, v4" % q)
            xreduce(a, q, 4)
        G = 128 // (16 * nt)
        a("s_barrier")
        a("v_lshlrev_b32 v14, 4, v0")
        wave_affine(a, S_T0 + 3, [4096, 1024, 2048], S_T0 + 4)
        a("v_add_u32 v15, s%d, v14" % (S_T0 + 3))
        a("ds_write_b128 v15, v[10:13]")
        a("s_waitcnt lgkmcnt(0)")
        a("s_barrier")
        sk = a.newlabel("st0")
        a("s_or_b32 s%d, s%d, s%d" % (S_T0 + 4, S_B[1], S_B[2]))
        a("s_cmp_lg_u32 s%d, 0" % (S_T0 + 4))
        a("s_cbranch_scc1 %s" % sk)
        OB = F + 20
        for k in range(1, G):
            a("ds_read_b128 v[%d:%d], v15 offset:%d" % (OB + 4 * k, OB + 4 * k + 3, k * 1024))
        a("s_waitcnt lgkmcnt(0)")
        for i in range(mt):
            m, q = 10 + 2 * i, 11 + 2 * i
            ms = [m] + [OB + 4 * k + 2 * i for k in range(1, G)]
            qs = [q] + [OB + 4 * k + 2 * i + 1 for k in range(1, G)]
            a("v_add_f32 v4, v%d, v%d" % (ms[0], ms[1]))
            for k in range(2, G):
                a("v_add_f32 v4, v4, v%d" % ms[k])
            a("v_mul_f32 v4, %s, v4" % f32hex(1.0 / G))
            for k in range(1, G):
                a("v_add_f32 v%d, v%d, v%d" % (q, q, qs[k]))
            a("v_mov_b32 v5, 0")
            for k in range(G):
                a("v_sub_f32 v6, v%d, v4" % ms[k])
                a("v_fmac_f32 v5, v6, v6")
            a("v_fmac_f32 v%d, %s, v5" % (q, f32hex(16.0 * nt)))
            a("v_mov_b32 v%d, v4" % m)
        a("s_mov_b64 exec, 0xffff")
        for i in range(mt):
            a("buffer_store_dwordx2 v[%d:%d], v9, s[24:27], s%d offen offset:%d" % (10 + 2 * i, 11 + 2 * i, S_T0 + 2, i * 1024))
        a("s_mov_b64 exec, -1")
        a.label(sk)
    return F + 40


def early_gemm4(c):
    V_L15, V_G, mt, nt, F = c['V_L15'], c['V_G'], c['mt'], c['nt'], c['free']
    T = 50
    g = ["s_lshl_b32 s%d, s%d, 7" % (T, S_TM),
         "s_lshl_b32 s%d, s%d, 6" % (T + 1, S_B[0]),
         "s_add_u32 s%d, s%d, s%d" % (T, T, T + 1),
         "s_lshl_b32 s%d, s%d, 11" % (T, T),
         "s_lshl_b32 s%d, s%d, 8" % (T + 1, S_TN),
         "s_add_u32 s%d, s%d, s%d" % (T, T, T + 1),
         "s_lshl_b32 s%d, s%d, 7" % (T + 1, S_B[2]),
         "s_add_u32 s%d, s%d, s%d" % (T, T, T + 1),
         "s_lshl_b32 s%d, s%d, 5" % (T + 1, S_B[1]),
         "s_add_u32 s%d, s%d, s%d" % (T, T, T + 1)]
    for i in range(1, 4):
        g.append("s_add_u32 s%d, s%d, %d" % (T + i, T, i * 16 * 2048))
    g += ["v_lshlrev_b32 v%d, 11, v%d" % (F, V_L15),
          "v_lshl_add_u32 v%d, v%d, 3, v%d" % (F, V_G, F)]
    for i in range(mt):
        for j in range(nt):
            d = F + 2 + (i * nt + j) * 2
            g.append("buffer_load_dwordx2 v[%d:%d], v%d, s[20:23], s%d offen offset:%d" % (d, d + 1, F, T + i, j * 64))
    return [g]


def epi_gemm4(a, c):
    acc, V_L15, V_G, mt, nt = c['acc'], c['V_L15'], c['V_G'], c['mt'], c['nt']
    F = c['free']
    Rr = F + 2
    PB = F + 2 + mt * nt * 2
    T = 50
    a("s_lshl_b32 s54, s%d, 3" % S_TM)
    a("s_add_u32 s54, s54, s%d" % S_TN)
    a("s_and_b32 s55, s54, 1")
    a("s_lshl_b32 s55, s55, 4")
    a("s_lshr_b32 s56, s54, 1")
    a("s_lshl_b32 s56, s56, 2")
    a("s_lshl_b32 s57, 1, s55")
    a("s_lshl_b32 s58, 0x100, s55")
    a("s_lshl_b32 s59, s54, 16")
    a("s_lshl_b32 s%d, s%d, 13" % (S_T0, S_WAVE))
    a("s_add_u32 s59, s59, s%d" % S_T0)
    a("v_lshlrev_b32 v4, 4, v0")
    a("v_mov_b32 v5, 0")
    nw0 = a.newlabel("nw0")
    a("s_barrier")
    a("s_cmp_lg_u32 s%d, 0" % S_WAVE)
    a("s_cbranch_scc1 %s" % nw0)
    a("v_mov_b32 v6, s57")
    a("s_mov_b64 exec, 1")
    a("buffer_atomic_add v6, v5, s[24:27], s56 offen sc0 sc1")
    a("s_waitcnt vmcnt(0)")
    a("ds_write_b32 v5, v6")
    a("s_waitcnt lgkmcnt(0)")
    a("s_mov_b64 exec, -1")
    a.label(nw0)
    a("s_barrier")
    a("ds_read_b32 v6, v5")
    a("s_waitcnt lgkmcnt(0)")
    a("v_readfirstlane_b32 s%d, v6" % S_T0)
    a("s_lshr_b32 s%d, s%d, s55" % (S_T0, S_T0))
    a("s_and_b32 s%d, s%d, 0xff" % (S_T0, S_T0))
    second = a.newlabel("second")
    done = a.newlabel("done")
    a("s_cmp_lg_u32 s%d, 0" % S_T0)
    a("s_cbranch_scc1 %s" % second)
    for i in range(mt):
        for j in range(nt):
            cc = acc(i, j)
            k = i * nt + j
            if k == 4:
                a("s_add_u32 s59, s59, 4096")
            a("buffer_store_dwordx4 v[%d:%d], v4, s[92:95], s59 offen offset:%d sc1" % (cc, cc + 3, (k & 3) * 1024))
    a("s_waitcnt vmcnt(0)")
    a("s_barrier")
    a("s_cmp_lg_u32 s%d, 0" % S_WAVE)
    a("s_cbranch_scc1 %s" % done)
    a("v_mov_b32 v6, s58")
    a("s_mov_b64 exec, 1")
    a("buffer_atomic_add v6, v5, s[24:27], s56 offen sc1")
    a("s_mov_b64 exec, -1")
    a("s_branch %s" % done)
    a.label(second)
    nw1 = a.newlabel("nw1")
    a("s_cmp_lg_u32 s%d, 0" % S_WAVE)
    a("s_cbranch_scc1 %s" % nw1)
    poll = a.newlabel("poll")
    a.label(poll)
    a("buffer_load_dword v6, v5, s[24:27], s56 offen sc1")
    a("s_waitcnt vmcnt(0)")
    a("v_readfirstlane_b32 s%d, v6" % S_T0)
    a("s_and_b32 s%d, s%d, s58" % (S_T0, S_T0))
    a("s_cmp_lg_u32 s%d, 0" % S_T0)
    a("s_cbranch_scc1 %s" % nw1)
    a("s_sleep 2")
    a("s_branch %s" % poll)
    a.label(nw1)
    a("s_barrier")
    for k in range(mt * nt):
        if k == 4:
            a("s_add_u32 s59, s59, 4096")
        a("buffer_load_dwordx4 v[%d:%d], v4, s[92:95], s59 offen offset:%d sc1" % (PB + 4 * k, PB + 4 * k + 3, (k & 3) * 1024))
    for i in range(mt):
        for j in range(nt):
            k = i * nt + j
            cc = acc(i, j)
            d = Rr + k * 2
            a("s_waitcnt vmcnt(%d)" % (mt * nt - 1 - k + k))
            for r in range(4):
                a("v_add_f32 v%d, v%d, v%d" % (cc + r, cc + r, PB + 4 * k + r))
            round4(a, cc, 6, 7)
            a("v_lshlrev_b32 v6, 16, v%d" % d)
            a("v_and_b32 v7, 0xffff0000, v%d" % d)
            a("v_add_f32 v%d, v%d, v6" % (cc, cc))
            a("v_add_f32 v%d, v%d, v7" % (cc + 1, cc + 1))
            a("v_lshlrev_b32 v6, 16, v%d" % (d + 1))
            a("v_and_b32 v7, 0xffff0000, v%d" % (d + 1))
            a("v_add_f32 v%d, v%d, v6" % (cc + 2, cc + 2))
            a("v_add_f32 v%d, v%d, v7" % (cc + 3, cc + 3))
            a("v_cvt_pk_bf16_f32 v%d, v%d, v%d" % (d, cc, cc + 1))
            a("v_cvt_pk_bf16_f32 v%d, v%d, v%d" % (d + 1, cc + 2, cc + 3))
            a("buffer_store_dwordx2 v[%d:%d], v%d, s[16:19], s%d offen offset:%d" % (d, d + 1, F, T + i, j * 64))
    a.label(done)
    return PB + 4 * mt * nt


V_ST = 19
V_PAR = 20


def pre_gemm3(a, c):
    V_L15, V_G, t = c['V_L15'], c['V_G'], c['V_T']
    srd_from_ptr(a, 20, 4, S * 128, WS_ST)
    a("s_lshl_b32 s%d, s%d, 7" % (S_T0, S_TM))
    a("s_lshl_b32 s%d, s%d, 6" % (S_T0 + 1, S_B[0]))
    a("s_add_u32 s%d, s%d, s%d" % (S_T0, S_T0, S_T0 + 1))
    a("s_lshl_b32 s%d, s%d, 7" % (S_T0, S_T0))
    a("v_lshlrev_b32 v%d, 7, v%d" % (t, V_L15))
    a("v_lshl_add_u32 v%d, v%d, 5, v%d" % (t, V_G, t))
    a("s_add_u32 s%d, s%d, 4096" % (S_T0 + 1, S_T0))
    for i in range(4):
        so = S_T0 + (i >> 1)
        a("buffer_load_dwordx4 v[%d:%d], v%d, s[20:23], s%d offen offset:%d" % (ACC0 + 8 * i, ACC0 + 8 * i + 3, t, so, (i & 1) * 2048))
        a("buffer_load_dwordx4 v[%d:%d], v%d, s[20:23], s%d offen offset:%d" % (ACC0 + 8 * i + 4, ACC0 + 8 * i + 7, t, so, (i & 1) * 2048 + 16))
    return 8


def pro_gemm3(a, c):
    a("s_waitcnt vmcnt(%d)" % c['nissued'])
    T = ACC0 + 40
    for i in range(4):
        b = ACC0 + 8 * i
        m, q = T, T + 1
        a("v_add_f32 v%d, v%d, v%d" % (m, b, b + 2))
        a("v_add_f32 v%d, v%d, v%d" % (m, m, b + 4))
        a("v_add_f32 v%d, v%d, v%d" % (m, m, b + 6))
        xreduce(a, m, T + 2)
        a("v_mul_f32 v%d, %s, v%d" % (m, f32hex(1.0 / 16), m))
        a("v_add_f32 v%d, v%d, v%d" % (q, b + 1, b + 3))
        a("v_add_f32 v%d, v%d, v%d" % (q, q, b + 5))
        a("v_add_f32 v%d, v%d, v%d" % (q, q, b + 7))
        a("v_mov_b32 v%d, 0" % (T + 3))
        for k in range(4):
            a("v_sub_f32 v%d, v%d, v%d" % (T + 2, b + 2 * k, m))
            a("v_fmac_f32 v%d, v%d, v%d" % (T + 3, T + 2, T + 2))
        a("v_fmac_f32 v%d, %s, v%d" % (q, f32hex(64.0), T + 3))
        xreduce(a, q, T + 2)
        a("v_mul_f32 v%d, %s, v%d" % (q, f32hex(1.0 / D), q))
        a("v_cvt_pk_bf16_f32 v%d, v%d, v%d" % (T + 2, m, q))
        a("v_lshlrev_b32 v%d, 16, v%d" % (m, T + 2))
        a("v_and_b32 v%d, 0xffff0000, v%d" % (q, T + 2))
        a("v_add_f32 v%d, %s, v%d" % (q, f32hex(1e-5), q))
        a("v_cvt_pk_bf16_f32 v%d, v%d, v%d" % (T + 2, q, q))
        a("v_lshlrev_b32 v%d, 16, v%d" % (q, T + 2))
        a("v_sqrt_f32 v%d, v%d" % (q, q))
        a("s_nop 0")
        a("v_cvt_pk_bf16_f32 v%d, v%d, v%d" % (T + 2, q, q))
        a("v_lshlrev_b32 v%d, 16, v%d" % (q, T + 2))
        a("v_rcp_f32 v%d, v%d" % (V_PAR + 2 * i, q))
        a("s_nop 0")
        a("v_mul_f32 v%d, v%d, v%d" % (V_PAR + 2 * i + 1, m, V_PAR + 2 * i))
        a("v_sub_f32 v%d, 0, v%d" % (V_PAR + 2 * i + 1, V_PAR + 2 * i + 1))


def last_gemm3(c):
    R, V_G, VX, af = c['R'], c['V_G'], c['V_XO'], c['afree']
    ocol = R['ocol']
    g = ["s_add_u32 s88, s4, 0x%x" % WS_CS, "s_addc_u32 s89, s5, 0", "s_mov_b32 s90, %d" % (2 * DF * 4), "s_mov_b32 s91, 0x00020000",
         "s_mul_i32 s%d, s%d, 896" % (S_T0, S_TN),
         "s_lshl_b32 s%d, s%d, 6" % (S_T0 + 1, S_B[1]),
         "s_add_u32 s%d, s%d, s%d" % (S_T0, S_T0, S_T0 + 1),
         "s_and_b32 s%d, s%d, 1" % (S_T0 + 1, S_TN),
         "s_cmp_lg_u32 s%d, 0" % (S_T0 + 1),
         "s_cselect_b32 s%d, 0, 768" % (S_T0 + 2),
         "s_cselect_b32 s%d, 128, 0" % (S_T0 + 1),
         "s_add_u32 s%d, s%d, s%d" % (S_T0 + 2, S_T0 + 2, S_T0),
         "s_add_u32 s%d, s%d, s%d" % (S_T0 + 1, S_T0 + 1, S_T0),
         "s_add_u32 s%d, s%d, %d" % (S_T0 + 3, S_T0 + 1, DF * 4),
         "s_add_u32 s%d, s%d, %d" % (S_T0 + 4, S_T0 + 2, DF * 4),
         "v_lshlrev_b32 v%d, 4, v%d" % (VX[0], V_G)]
    np_ = len(ocol)
    g += ["s_add_u32 s20, s4, 0x%x" % WS_ST, "s_addc_u32 s21, s5, 0", "s_mov_b32 s22, %d" % (S * 64), "s_mov_b32 s23, 0x00020000",
          "s_lshl_b32 s%d, s%d, 7" % (S_T0 + 5, S_TM),
          "s_lshl_b32 s%d, s%d, 6" % (S_T0 + 6, S_B[0]),
          "s_add_u32 s%d, s%d, s%d" % (S_T0 + 5, S_T0 + 5, S_T0 + 6),
          "s_lshl_b32 s%d, s%d, 6" % (S_T0 + 5, S_T0 + 5),
          "v_lshl_add_u32 v%d, v%d, 6, v%d" % (VX[1], c['V_L15'], VX[0])]
    for i in range(4):
        d = af + 2 * np_ * 4 + 4 * i
        g.append("buffer_load_dwordx4 a[%d:%d], v%d, s[20:23], s%d offen offset:%d" % (d, d + 3, VX[1], S_T0 + 5, i * 1024))
    for m in range(2):
        for j, (typ, off) in enumerate(ocol):
            so = (S_T0 + 1 if typ == 'A' else S_T0 + 2) + 2 * m
            d = af + (m * np_ + j) * 4
            g.append("buffer_load_dwordx4 a[%d:%d], v%d, s[88:91], s%d offen offset:%d" % (d, d + 3, VX[0], so, off * 2))
    return [g]


def epi_gemm3(a, c):
    acc, V_L15, V_G, R = c['acc'], c['V_L15'], c['V_G'], c['R']
    npair = c['nt'] // 2
    ocol = R['ocol']
    ldo = DF * 2
    a("s_lshl_b32 s%d, s%d, 7" % (S_T0, S_TM))
    a("s_lshl_b32 s%d, s%d, 6" % (S_T0 + 1, S_B[0]))
    a("s_add_u32 s%d, s%d, s%d" % (S_T0, S_T0, S_T0 + 1))
    a("s_mul_i32 s%d, s%d, %d" % (S_T0, S_T0, ldo))
    a("s_mul_i32 s%d, s%d, 448" % (S_T0 + 1, S_TN))
    a("s_add_u32 s%d, s%d, s%d" % (S_T0, S_T0, S_T0 + 1))
    a("s_lshl_b32 s%d, s%d, 5" % (S_T0 + 1, S_B[1]))
    a("s_add_u32 s%d, s%d, s%d" % (S_T0, S_T0, S_T0 + 1))
    for i in range(1, 4):
        a("s_add_u32 s%d, s%d, %d" % (S_T0 + i, S_T0, i * 16 * ldo))
    a("s_mov_b32 s%d, %d" % (S_T0 + 4, ldo))
    VA = 3
    a("v_mul_lo_u32 v%d, v%d, s%d" % (VA, V_L15, S_T0 + 4))
    a("v_lshl_add_u32 v%d, v%d, 3, v%d" % (VA, V_G, VA))
    a("s_and_b32 s%d, s%d, 1" % (S_T0 + 5, S_TN))
    a("s_cmp_lg_u32 s%d, 0" % (S_T0 + 5))
    a("s_cselect_b32 s%d, 0, 384" % (S_T0 + 6))
    a("s_cselect_b32 s%d, 64, 0" % (S_T0 + 5))
    c1 = -2.0 * LOG2E * 0.7978845608028654
    c2 = c1 * 0.044715
    a("s_mov_b32 s%d, %s" % (S_T0 + 8, f32hex(c2)))
    a("s_mov_b32 s%d, %s" % (S_T0 + 9, f32hex(c2)))
    a("v_mov_b32 v4, %s" % f32hex(c1))
    a("v_mov_b32 v5, %s" % f32hex(c1))
    T0 = 6
    af = c['afree']
    a("s_waitcnt vmcnt(0)")
    for i0 in (0, 2):
        ii = (i0, i0 + 1)
        raw = {i: 6 + 4 * (i - i0) for i in ii}
        mm = {i: 14 + 3 * (i - i0) for i in ii}
        for i in ii:
            for r in range(4):
                a("v_accvgpr_read_b32 v%d, a%d" % (raw[i] + r, af + 2 * npair * 4 + 4 * i + r))

        def par(fn):
            for i in ii:
                fn(raw[i], mm[i], mm[i] + 1, mm[i] + 2, V_PAR + 2 * i)

        def xred2(sel):
            par(lambda b, m, q, t, p: a("v_mov_b32 v%d, v%d" % (t, sel(m, q))))
            a("s_nop 0")
            par(lambda b, m, q, t, p: a("v_permlane16_swap_b32 v%d, v%d" % (sel(m, q), t)))
            a("s_nop 0")
            par(lambda b, m, q, t, p: a("v_add_f32 v%d, v%d, v%d" % (sel(m, q), sel(m, q), t)))
            par(lambda b, m, q, t, p: a("v_mov_b32 v%d, v%d" % (t, sel(m, q))))
            a("s_nop 1")
            par(lambda b, m, q, t, p: a("v_permlane32_swap_b32 v%d, v%d" % (sel(m, q), t)))
            a("s_nop 0")
            par(lambda b, m, q, t, p: a("v_add_f32 v%d, v%d, v%d" % (sel(m, q), sel(m, q), t)))
        par(lambda b, m, q, t, p: a("v_add_f32 v%d, v%d, v%d" % (m, b, b + 2)))
        par(lambda b, m, q, t, p: a("v_add_f32 v%d, v%d, v%d" % (q, b + 1, b + 3)))
        a("s_nop 0")
        xred2(lambda m, q: m)
        par(lambda b, m, q, t, p: a("v_mul_f32 v%d, %s, v%d" % (m, f32hex(1.0 / 8), m)))
        par(lambda b, m, q, t, p: a("v_sub_f32 v%d, v%d, v%d" % (b, b, m)))
        par(lambda b, m, q, t, p: a("v_sub_f32 v%d, v%d, v%d" % (b + 2, b + 2, m)))
        par(lambda b, m, q, t, p: a("v_mul_f32 v%d, v%d, v%d" % (b, b, b)))
        par(lambda b, m, q, t, p: a("v_fmac_f32 v%d, v%d, v%d" % (b, b + 2, b + 2)))
        par(lambda b, m, q, t, p: a("v_fmac_f32 v%d, %s, v%d" % (q, f32hex(128.0), b)))
        a("s_nop 0")
        xred2(lambda m, q: q)
        par(lambda b, m, q, t, p: a("v_mul_f32 v%d, %s, v%d" % (q, f32hex(1.0 / D), q)))
        par(lambda b, m, q, t, p: a("v_cvt_pk_bf16_f32 v%d, v%d, v%d" % (t, m, q)))
        par(lambda b, m, q, t, p: a("v_lshlrev_b32 v%d, 16, v%d" % (m, t)))
        par(lambda b, m, q, t, p: a("v_and_b32 v%d, 0xffff0000, v%d" % (q, t)))
        par(lambda b, m, q, t, p: a("v_add_f32 v%d, %s, v%d" % (q, f32hex(1e-5), q)))
        par(lambda b, m, q, t, p: a("v_cvt_pk_bf16_f32 v%d, v%d, v%d" % (t, q, q)))
        par(lambda b, m, q, t, p: a("v_lshlrev_b32 v%d, 16, v%d" % (q, t)))
        par(lambda b, m, q, t, p: a("v_sqrt_f32 v%d, v%d" % (q, q)))
        a("s_nop 0")
        par(lambda b, m, q, t, p: a("v_cvt_pk_bf16_f32 v%d, v%d, v%d" % (t, q, q)))
        par(lambda b, m, q, t, p: a("v_lshlrev_b32 v%d, 16, v%d" % (q, t)))
        par(lambda b, m, q, t, p: a("v_rcp_f32 v%d, v%d" % (p, q)))
        a("s_nop 0")
        par(lambda b, m, q, t, p: a("v_mul_f32 v%d, v%d, v%d" % (p + 1, m, p)))
        par(lambda b, m, q, t, p: a("v_sub_f32 v%d, 0, v%d" % (p + 1, p + 1)))
    a("v_add_u32 v10, s%d, v%d" % (S_T0 + 6, VA))
    a("v_add_u32 v%d, s%d, v%d" % (VA, S_T0 + 5, VA))
    for j in range(npair):
        for m in range(2):
            for r in range(4):
                a("v_accvgpr_read_b32 v%d, a%d" % (12 + r, af + (m * npair + j) * 4 + r))
            for i in range(4):
                cc = acc(i, m * npair + j)
                pr = V_PAR + 2 * i
                for h in range(2):
                    a("v_pk_mul_f32 v[%d:%d], v[%d:%d], v[%d:%d] op_sel:[0,1] op_sel_hi:[1,1]" % (16, 17, 12 + 2 * h, 13 + 2 * h, pr, pr + 1))
                    a("v_pk_fma_f32 v[%d:%d], v[%d:%d], v[%d:%d], v[16:17] op_sel:[0,0,0] op_sel_hi:[1,0,1]" % (cc + 2 * h, cc + 2 * h + 1, cc + 2 * h, cc + 2 * h + 1, pr, pr + 1))
    for i in range(4):
        for j in range(npair):
            g = acc(i, j)
            u = acc(i, npair + j)
            for h in range(2):
                gg = g + 2 * h
                tt = T0 + 2 * h
                a("v_pk_mul_f32 v[%d:%d], v[%d:%d], v[%d:%d]" % (tt, tt + 1, gg, gg + 1, gg, gg + 1))
            for h in range(2):
                tt = T0 + 2 * h
                a("v_pk_fma_f32 v[%d:%d], v[%d:%d], s[%d:%d], v[4:5]" % (tt, tt + 1, tt, tt + 1, S_T0 + 8, S_T0 + 9))
            for h in range(2):
                gg = g + 2 * h
                tt = T0 + 2 * h
                a("v_pk_mul_f32 v[%d:%d], v[%d:%d], v[%d:%d]" % (tt, tt + 1, tt, tt + 1, gg, gg + 1))
            for r in range(4):
                a("v_exp_f32 v%d, v%d" % (T0 + r, T0 + r))
            for h in range(2):
                gg = g + 2 * h
                uu = u + 2 * h
                a("v_pk_mul_f32 v[%d:%d], v[%d:%d], v[%d:%d]" % (gg, gg + 1, gg, gg + 1, uu, uu + 1))
            for r in range(4):
                a("v_add_f32 v%d, 1.0, v%d" % (T0 + r, T0 + r))
            for r in range(4):
                a("v_rcp_f32 v%d, v%d" % (T0 + r, T0 + r))
            a("s_nop 0")
            for h in range(2):
                gg = g + 2 * h
                tt = T0 + 2 * h
                a("v_pk_mul_f32 v[%d:%d], v[%d:%d], v[%d:%d]" % (gg, gg + 1, gg, gg + 1, tt, tt + 1))
            a("v_cvt_pk_bf16_f32 v%d, v%d, v%d" % (g, g, g + 1))
            a("v_cvt_pk_bf16_f32 v%d, v%d, v%d" % (g + 1, g + 2, g + 3))
            a("buffer_store_dwordx2 v[%d:%d], v%d, s[16:19], s%d offen offset:%d" % (g, g + 1, VA if ocol[j][0] == 'A' else 10, S_T0 + i, ocol[j][1]) + (" sc0 sc1" if "wt1" in EXP else " nt" if "wt2" in EXP else " sc1" if "wt3" in EXP else ""))
    return 0


def build():
    a = Asm()
    descs = []
    launches = []

    if "pf" in EXP:
        descs.append(prefetch_kernel(a, "pf_kernel"))
        launches.append(("pf_kernel", 1024, 256, 0))
    descs.append(ln_kernel(a, "ln1_kernel", ('arg', 'x'), WS_XN, True))
    launches.append(("ln1_kernel", S // 4, 256, 0))

    ldw = 3 * D * 2

    def srds1(a):
        srd_from_ptr(a, 16, 4, S * D * 2, WS_PQ)
        srd_from_ptr(a, 20, 4, 135168, WS_KV)
    R1 = dict(nxp=2, xp_coef=[2, 4, 8], mt=2,
              waddr=[('A', 0), ('A', 32)], t_coefA=[0, 2, 0],
              ntiles=[(0, 0, True), (1, 0, True), (0, 1024, False), (1, 1024, False), (0, 2048, False), (1, 2048, False)],
              w_slot=[('A', i * 2048, i * 1024, 0) for i in range(3)], ko_par=0,
              wg_coefA=[8 * ldw, 16 * ldw, 32 * ldw], wl_coefA=[3 * 1024, 6 * 1024, 12 * 1024],
              row_coef=[32, 0, 64], wr_coef=[0, 0, 0])
    P1 = dict(name="gemm1_kernel", rtidx=0, NW=8, BM=128, kbx=2, kbw=2, NSX=4, NSW=4, WB=24576, kostrideA=3072,
              K=D, ldx=D * 2, ldw=ldw, x_ws=WS_XN,
              w=['wqkv'], helper=[('wg', D * DF * 2), ('wu', D * DF * 2)], epi_bars=2, mblk_bits=1, srds=srds1, tn_bytes=128, epilogue=epi_gemm1, roles=[R1])
    descs.append(gemm_kernel(a, P1))
    launches.append(("gemm1_kernel", 256, 576, 4 * 16384 + 4 * 24576))


    def srds2(a):
        srd_from_ptr(a, 16, 4, S * D * 2, WS_H)
        srd_from_ptr(a, 20, 62, S * D * 2)
        srd_from_ptr(a, 24, 4, S * 64, WS_ST)
    ldw = D * 2
    R2 = dict(nxp=2, xp_coef=[2, 4, 0], mt=2,
              waddr=[('A', 0), ('A', 64)], t_coefA=[0, 1, 0],
              ntiles=[(0, 0, True), (1, 0, True), (0, 1024, True), (1, 1024, True)],
              w_slot=[('A', (i >> 1) * 8 * ldw + (i & 1) * 128, i * 1024, i >> 1) for i in range(4)], ko_par=None,
              wg_coefA=[16 * ldw, 32 * ldw, 0], wl_coefA=[4 * 1024, 8 * 1024, 0],
              row_coef=[32, 0, 0], wr_coef=[0, 0, 0])
    NS2 = 6
    P2 = dict(name="gemm2_kernel", rtidx=1, NW=4, BM=64, kbx=2, kbw=2, NSX=NS2, NSW=NS2, WB=16384, kostrideA=2048,
              K=D, ldx=D * 2, ldw=ldw, x_ws=WS_O,
              w=['wo'], argptrs=[(62, 'x')], mblk_bits=2, srds=srds2, tn_bytes=256, epilogue=epi_resid_stats, early=early_resid, roles=[R2])
    R2f = dict(nxp=0, xp_coef=[0, 0, 0], mt=2,
               waddr=[('A', 0), ('A', 64)], t_coefA=[0, 1, 0],
               ntiles=[(0, 0, True), (1, 0, True)],
               w_slot=[('A', 0, 0, 0)], ko_par=0,
               wg_coefA=[8 * ldw, 16 * ldw, 128], wl_coefA=[2 * 1024, 4 * 1024, 1024],
               row_coef=[32, 0, 0], wr_coef=[0, 0, 1024])
    P2f = dict(P2)
    P2f.update(NW=8, x_static=True, NSX=16, kbw=1, NSW=4, WB=8192, pro=pro_gemm2, roles=[R2f])
    descs.append(gemm_kernel(a, P2f))
    launches.append(("gemm2_kernel", 256, 512, 163840))


    def srds3(a):
        srd_from_ptr(a, 16, 4, S * DF * 2, WS_HH)
    ldw = DF * 2
    KB = 1024
    R3a = dict(nxp=2, xp_coef=[2, 4, 8], mt=4,
               waddr=[('A', 0), ('A', 64)], t_coefA=[0, 1, 0],
               ntiles=[(a_, o_ + m_ * 14 * KB, True) for m_ in range(2) for (a_, o_) in ((0, 0), (1, 0), (0, KB), (1, KB))],
               w_slot=[('A', i * 128, i * KB, 0) for i in range(3)], ko_par=0,
               wg_coefA=[8 * ldw, 0, 0], wl_coefA=[3 * KB, 14 * KB, 0],
               row_coef=[64, 0, 0], wr_coef=[0, 0, 0],
               ocol=[('A', 0), ('A', 64), ('A', 128), ('A', 192)])
    R3b = dict(nxp=2, xp_coef=[2, 4, 8], mt=4,
               waddr=[('A', 0), ('A', 64), ('B', 0)], t_coefA=[0, 1, 0], t_coefB=[0, 1, 0],
               ntiles=[(a_, o_ + m_ * 14 * KB, True) for m_ in range(2) for (a_, o_) in ((0, 2 * KB), (1, 2 * KB), (2, 12 * KB))],
               w_slot=[('A', 16 * ldw + i * 128, 6 * KB + i * KB, 0) for i in range(3)] + [('B', 0, 12 * KB)], ko_par=0,
               wg_coefA=[8 * ldw, 0, 0], wl_coefA=[3 * KB, 14 * KB, 0],
               wg_coefB=[16 * ldw, 0, 0], wl_coefB=[KB, 14 * KB, 0],
               row_coef=[64, 0, 0], wr_coef=[0, 0, 0],
               ocol=[('A', 256), ('A', 320), ('B', 0)])
    P3 = dict(name="gemm3_kernel", rtidx=2, NW=8, BM=128, kbx=2, kbw=1, NSX=3, NSW=4, WB=28 * KB, kostrideA=3 * KB, k16strideB=KB,
              par_offA=(0, 64), par_offB=(384, 0),
              K=D, ldx=D * 2, ldw=ldw, x_ws=WS_H,
              w=['wg', 'wu'], pf=[('wd', D * DF * 2)], pf_step=16, last_extras=last_gemm3, wsel_bit=1, mblk_bits=1, srds=srds3, tn_bytes=448, epilogue=epi_gemm3,
              roles=[R3a, R3b])
    descs.append(gemm_kernel(a, P3))
    launches.append(("gemm3_kernel", 256, 512, 3 * 16384 + 4 * 28 * KB))

    def srds4(a):
        srd_from_ptr(a, 16, 62, S * D * 2)
        srd_from_ptr(a, 20, 4, S * D * 2, WS_H)
    P4 = dict(P2)
    P4.update(name="gemm4_kernel", rtidx=3, K=DF, ldx=DF * 2, x_ws=WS_HH, w=['wd'], pf=[], helper=[], argptrs=[(62, 'out')],
              srds=srds4, epilogue=epi_resid)
    if True:
        ldw = D * 2
        R4 = dict(nxp=1, xp_coef=[1, 2, 4], mt=2,
                  waddr=[('A', 0), ('A', 64)], t_coefA=[0, 1, 0],
                  ntiles=[(0, 0, True), (1, 0, True)],
                  w_slot=[('A', i * 128, i * 1024, 0) for i in range(2)], ko_par=0,
                  wg_coefA=[8 * ldw, 16 * ldw, 32 * ldw], wl_coefA=[2 * 1024, 4 * 1024, 8 * 1024],
                  row_coef=[32, 0, 0], wr_coef=[0, 0, 1024])
        P4.update(NW=8, roles=[R4])
    descs.append(gemm_kernel(a, P4))
    launches.append(("gemm4_kernel", 256, 64 * P4['NW'], NS2 * (8192 + 16384)))

    hdr = ["; pre-LN linear attention block + GEGLU FFN, hand-written gfx950 kernels (generated by gen/gen.py)"]
    for (k, g, b, l) in launches:
        hdr.append("; @launch kernel=%s grid=(%d,1,1) block=(%d,1,1) lds=%d" % (k, g, b, l))
    hdr.append('.amdgcn_target "amdgcn-amd-amdhsa--gfx950"')
    hdr.append(".text")
    txt = "\n".join(hdr) + "\n" + "\n".join(a.lines) + "\n" + '.section .rodata,"a"\n' + "".join(descs)
    return txt


if __name__ == "__main__":
    out = sys.argv[1] if len(sys.argv) > 1 else OUT
    open(out, "w").write(build())
    print("wrote", out)
```

```python
import sys, os
EXP = os.environ.get("EXP", "").split(",")

OUT = "sequential_preLN__linear_attn_block__glu_gated_geglu__prompt.s"

S, D, DF = 2048, 1024, 3584
MB = 1 << 20
WS_XN = 0
WS_PQ = 4 * MB
WS_KV = 8 * MB
WS_Z = WS_KV + 131072
WS_CS = WS_KV + 0x30000
WS_CNT = WS_KV + 0x37000
WS_ST = WS_KV + 0x40000
WS_O = 9 * MB
WS_H = 13 * MB
WS_HN = 17 * MB
WS_HH = 21 * MB
WS_SLAB = 40 * MB
KA = dict(x=0, wqkv=8, wo=16, bx=24, wg=32, wu=40, wd=48, out=56, dbg=64, ws=72)

LOG2E = 1.4426950408889634


def f32hex(x):
    import struct
    return "0x%08x" % struct.unpack("<I", struct.pack("<f", x))[0]


class Asm:
    def __init__(self):
        self.lines = []
        self.uid = 0

    def __call__(self, s):
        if "offset:" in s:
            off = int(s.split("offset:")[1].split()[0])
            assert off < (4096 if s.startswith("buffer_") else 65536), s
        self.lines.append("    " + s)

    def label(self, s):
        self.lines.append(s + ":")

    def raw(self, s):
        self.lines.append(s)

    def newlabel(self, p):
        self.uid += 1
        return "L_%s_%d" % (p, self.uid)


def kernel_header(a, name):
    a.raw(".globl %s" % name)
    a.raw(".p2align 8")
    a.raw(".type %s,@function" % name)
    a.label(name)


def kernel_desc(name, nvgpr, accum, nsgpr=102):
    return """.p2align 6
.amdhsa_kernel %s
  .amdhsa_next_free_vgpr %d
  .amdhsa_next_free_sgpr %d
  .amdhsa_accum_offset %d
  .amdhsa_group_segment_fixed_size 0
  .amdhsa_kernarg_size 80
  .amdhsa_user_sgpr_count 2
  .amdhsa_user_sgpr_kernarg_segment_ptr 1
  .amdhsa_system_sgpr_workgroup_id_x 1
.end_amdhsa_kernel
""" % (name, nvgpr, nsgpr, accum)


def srd_from_ptr(a, d, p, nbytes, off=0):
    if off:
        a("s_add_u32 s%d, s%d, 0x%x" % (d, p, off))
        a("s_addc_u32 s%d, s%d, 0" % (d + 1, p + 1))
    else:
        a("s_mov_b32 s%d, s%d" % (d, p))
        a("s_mov_b32 s%d, s%d" % (d + 1, p + 1))
    a("s_mov_b32 s%d, 0x%x" % (d + 2, nbytes))
    a("s_mov_b32 s%d, 0x00020000" % (d + 3))


def rt_begin(a):
    if "rt" in EXP:
        a("s_memrealtime s[64:65]")


def rt_end(a, idx):
    if "rt" not in EXP:
        return
    a("s_waitcnt vmcnt(0)")
    a("s_memrealtime s[70:71]")
    a("s_waitcnt lgkmcnt(0)")
    srd_from_ptr(a, 76, 4, 65536, 64 * MB + idx * 65536)
    a("v_mov_b32 v4, s64")
    a("v_mov_b32 v5, s64")
    a("v_mov_b32 v6, s70")
    a("v_mov_b32 v7, s70")
    a("s_lshl_b32 s80, s2, 4")
    a("v_mov_b32 v8, s80")
    a("s_mov_b64 exec, 1")
    a("buffer_store_dwordx4 v[4:7], v8, s[76:79], 0 offen")

def ln_kernel(a, name, src, dst, zero_kv):
    kernel_header(a, name)
    end = a.newlabel("end")
    cs = a.newlabel("cs")
    a("s_cmp_ge_u32 s2, %d" % (S // 4))
    a("s_cbranch_scc1 %s" % end)
    rt_begin(a)
    a("s_load_dwordx2 s[4:5], s[0:1], %d" % KA['ws'])
    if src[0] == 'arg':
        a("s_load_dwordx2 s[6:7], s[0:1], %d" % KA[src[1]])
    a("v_lshrrev_b32 v1, 6, v0")
    a("v_and_b32 v2, 63, v0")
    a("s_lshl_b32 s3, s2, 2")
    a("v_add_u32 v1, s3, v1")
    a("v_lshlrev_b32 v1, 11, v1")
    a("v_lshl_add_u32 v1, v2, 4, v1")
    a("s_waitcnt lgkmcnt(0)")
    if src[0] == 'arg':
        srd_from_ptr(a, 8, 6, S * D * 2)
    else:
        srd_from_ptr(a, 8, 4, S * D * 2, src[1])
    srd_from_ptr(a, 12, 4, S * D * 2, dst)
    a("buffer_load_dwordx4 v[4:7], v1, s[8:11], 0 offen")
    a("buffer_load_dwordx4 v[8:11], v1, s[8:11], 0 offen offset:1024")
    npf = 0
    if zero_kv:
        a("s_load_dwordx4 s[40:43], s[0:1], %d" % KA['wqkv'])
        a("v_lshlrev_b32 v3, 6, v0")
        a("s_lshl_b32 s3, s2, 14")
        a("v_add_u32 v3, s3, v3")
        a("s_waitcnt lgkmcnt(0)")
        srd_from_ptr(a, 52, 40, D * 3 * D * 2)
        srd_from_ptr(a, 56, 42, D * D * 2)
        a("buffer_load_dword v40, v3, s[52:55], 0 offen")
        a("v_subrev_u32 v3, 0x%x, v3" % (D * 3 * D * 2))
        a("buffer_load_dword v41, v3, s[56:59], 0 offen")
        npf = 2
        if "nocodepf" not in EXP:
            sk = a.newlabel("ncp")
            a("s_cmp_ge_u32 s2, 16")
            a("s_cbranch_scc1 %s" % sk)
            a("s_getpc_b64 s[60:61]")
            a("v_lshlrev_b32 v42, 6, v0")
            for j in range(4):
                a("global_load_dword v43, v42, s[60:61]")
                a("v_add_u32 v42, 0x3400, v42")
            a("s_waitcnt vmcnt(0)")
            a.label(sk)
    if zero_kv:
        skip = a.newlabel("nz")
        a("s_cmp_ge_u32 s2, 57")
        a("s_cbranch_scc1 %s" % skip)
        srd_from_ptr(a, 16, 4, 0x39000, WS_KV)
        a("s_lshl_b32 s3, s2, 12")
        a("v_lshlrev_b32 v3, 4, v0")
        a("v_add_u32 v3, s3, v3")
        a("v_mov_b32 v12, 0")
        a("v_mov_b32 v13, 0")
        a("v_mov_b32 v14, 0")
        a("v_mov_b32 v15, 0")
        a("buffer_store_dwordx4 v[12:15], v3, s[16:19], 0 offen")
        a.label(skip)
    a("s_waitcnt vmcnt(%d)" % (npf + (1 if zero_kv else 0)) if False else "s_waitcnt vmcnt(%d)" % npf)
    for i in range(8):
        a("v_lshlrev_b32 v%d, 16, v%d" % (16 + 2 * i, 4 + i))
        a("v_and_b32 v%d, 0xffff0000, v%d" % (17 + 2 * i, 4 + i))

    def reduce(v, t):
        a("s_nop 1")
        a("v_add_f32_dpp %s, %s, %s quad_perm:[1,0,3,2] row_mask:0xf bank_mask:0xf" % (t, v, v))
        a("s_nop 1")
        a("v_add_f32_dpp %s, %s, %s quad_perm:[2,3,0,1] row_mask:0xf bank_mask:0xf" % (v, t, t))
        a("s_nop 1")
        a("v_add_f32_dpp %s, %s, %s row_half_mirror row_mask:0xf bank_mask:0xf" % (t, v, v))
        a("s_nop 1")
        a("v_add_f32_dpp %s, %s, %s row_mirror row_mask:0xf bank_mask:0xf" % (v, t, t))
        a("s_nop 1")
        a("v_readlane_b32 s20, %s, 0" % v)
        a("v_readlane_b32 s21, %s, 16" % v)
        a("v_readlane_b32 s22, %s, 32" % v)
        a("v_readlane_b32 s23, %s, 48" % v)
        a("s_nop 1")
        a("v_mov_b32 %s, s20" % v)
        a("v_add_f32 %s, s21, %s" % (v, v))
        a("v_add_f32 %s, s22, %s" % (v, v))
        a("v_add_f32 %s, s23, %s" % (v, v))

    a("v_add_f32 v32, v16, v17")
    for i in range(2, 16):
        a("v_add_f32 v32, v32, v%d" % (16 + i))
    reduce("v32", "v33")
    a("v_mul_f32 v32, %s, v32" % f32hex(1.0 / D))
    a("v_sub_f32 v34, v16, v32")
    a("v_mul_f32 v35, v34, v34")
    for i in range(1, 16):
        a("v_sub_f32 v34, v%d, v32" % (16 + i))
        a("v_fmac_f32 v35, v34, v34")
    reduce("v35", "v33")
    a("v_mul_f32 v35, %s, v35" % f32hex(1.0 / D))
    a("v_cvt_pk_bf16_f32 v36, v32, v35")
    a("v_lshlrev_b32 v32, 16, v36")
    a("v_and_b32 v35, 0xffff0000, v36")
    a("v_add_f32 v35, %s, v35" % f32hex(1e-5))
    a("v_cvt_pk_bf16_f32 v36, v35, v35")
    a("v_lshlrev_b32 v35, 16, v36")
    a("v_sqrt_f32 v35, v35")
    a("s_nop 0")
    a("v_cvt_pk_bf16_f32 v36, v35, v35")
    a("v_lshlrev_b32 v35, 16, v36")
    a("v_rcp_f32 v35, v35")
    for i in range(16):
        a("v_sub_f32 v%d, v%d, v32" % (16 + i, 16 + i))
    for i in range(8):
        a("v_cvt_pk_bf16_f32 v%d, v%d, v%d" % (4 + i, 16 + 2 * i, 17 + 2 * i))
    for i in range(8):
        a("v_lshlrev_b32 v%d, 16, v%d" % (16 + 2 * i, 4 + i))
        a("v_and_b32 v%d, 0xffff0000, v%d" % (17 + 2 * i, 4 + i))
    for i in range(16):
        a("v_mul_f32 v%d, v%d, v35" % (16 + i, 16 + i))
    for i in range(8):
        a("v_cvt_pk_bf16_f32 v%d, v%d, v%d" % (4 + i, 16 + 2 * i, 17 + 2 * i))
    a("buffer_store_dwordx4 v[4:7], v1, s[12:15], 0 offen")
    a("buffer_store_dwordx4 v[8:11], v1, s[12:15], 0 offen offset:1024")
    rt_end(a, 4)
    a.label(end)
    a("s_endpgm")
    return kernel_desc(name, 44, 44)


def prefetch_kernel(a, name):
    kernel_header(a, name)
    end = a.newlabel("end")
    a("s_cmp_ge_u32 s2, 1024")
    a("s_cbranch_scc1 %s" % end)
    for i, k in enumerate(['wqkv', 'wo', 'wg', 'wu', 'wd']):
        a("s_load_dwordx2 s[%d:%d], s[0:1], %d" % (40 + 2 * i, 41 + 2 * i, KA[k]))
    a("v_lshlrev_b32 v1, 4, v0")
    a("s_lshl_b32 s3, s2, 12")
    a("v_add_u32 v1, s3, v1")
    a("s_waitcnt lgkmcnt(0)")
    sizes = [D * 3 * D * 2, D * D * 2, D * DF * 2, D * DF * 2, DF * D * 2]
    r = 4
    for i, sz in enumerate(sizes):
        srd_from_ptr(a, 8 + 4 * i, 40 + 2 * i, sz)
        for j in range((sz + (4 << 20) - 1) // (4 << 20)):
            a("s_mov_b32 s4, %d" % (j * (4 << 20)))
            a("buffer_load_dwordx4 v[%d:%d], v1, s[%d:%d], s4 offen" % (r, r + 3, 8 + 4 * i, 11 + 4 * i))
            r += 4
    a("s_waitcnt vmcnt(0)")
    a.label(end)
    a("s_endpgm")
    return kernel_desc(name, 64, 64)

def colsum_code(a, cs, end, NB0):
    a("s_endpgm")
    a.label(cs)
    a("s_cmp_ge_u32 s2, %d" % (NB0 + 448))
    a("s_cbranch_scc1 %s" % end)
    a("s_load_dwordx2 s[4:5], s[0:1], %d" % KA['ws'])
    a("s_load_dwordx4 s[40:43], s[0:1], %d" % KA['wg'])
    a("s_sub_u32 s3, s2, %d" % (NB0))
    a("s_and_b32 s47, s3, 3")
    a("s_lshr_b32 s3, s3, 2")
    a("s_cmp_ge_u32 s3, 56")
    a("s_cselect_b32 s44, 56, 0")
    a("s_sub_u32 s45, s3, s44")
    a("v_and_b32 v1, 7, v0")
    a("v_lshrrev_b32 v2, 3, v0")
    a("s_mov_b32 s46, %d" % (DF * 2))
    a("v_mul_lo_u32 v2, v2, s46")
    a("v_lshl_add_u32 v2, v1, 4, v2")
    a("s_lshl_b32 s46, s45, 7")
    a("v_add_u32 v2, s46, v2")
    a("s_mul_i32 s46, s47, %d" % (256 * DF * 2))
    a("v_add_u32 v2, s46, v2")
    a("s_waitcnt lgkmcnt(0)")
    a("s_cmp_ge_u32 s3, 56")
    a("s_cselect_b32 s40, s42, s40")
    a("s_cselect_b32 s41, s43, s41")
    srd_from_ptr(a, 8, 40, D * DF * 2)
    srd_from_ptr(a, 12, 4, 2 * DF * 4, WS_CS)
    for j in range(8):
        a("s_mov_b32 s46, %d" % (j * 32 * DF * 2))
        a("buffer_load_dwordx4 v[%d:%d], v2, s[8:11], s46 offen" % (16 + 4 * j, 19 + 4 * j))
    for j in range(8):
        a("s_waitcnt vmcnt(%d)" % (7 - j))
        for q in range(4):
            r = 16 + 4 * j + q
            if j == 0:
                a("v_lshlrev_b32 v%d, 16, v%d" % (4 + 2 * q, r))
                a("v_and_b32 v%d, 0xffff0000, v%d" % (5 + 2 * q, r))
            else:
                a("v_lshlrev_b32 v12, 16, v%d" % r)
                a("v_and_b32 v13, 0xffff0000, v%d" % r)
                a("v_add_f32 v%d, v%d, v12" % (4 + 2 * q, 4 + 2 * q))
                a("v_add_f32 v%d, v%d, v13" % (5 + 2 * q, 5 + 2 * q))
    a("v_lshlrev_b32 v3, 5, v0")
    a("ds_write_b128 v3, v[4:7]")
    a("ds_write_b128 v3, v[8:11] offset:16")
    a("s_waitcnt lgkmcnt(0)")
    a("s_barrier")
    a("v_and_b32 v1, 63, v0")
    a("v_lshrrev_b32 v2, 6, v0")
    a("v_lshlrev_b32 v3, 2, v1")
    a("v_lshl_add_u32 v3, v2, 11, v3")
    for j in range(8):
        a("ds_read_b32 v%d, v3 offset:%d" % (4 + j, j * 256))
    a("s_waitcnt lgkmcnt(0)")
    for j in range(1, 8):
        a("v_add_f32 v4, v4, v%d" % (4 + j))
    a("v_lshlrev_b32 v3, 2, v0")
    a("ds_write_b32 v3, v4 offset:8192")
    a("s_waitcnt lgkmcnt(0)")
    a("s_barrier")
    a("v_lshlrev_b32 v3, 2, v1")
    for j in range(4):
        a("ds_read_b32 v%d, v3 offset:%d" % (4 + j, 8192 + j * 256))
    a("s_waitcnt lgkmcnt(0)")
    for j in range(1, 4):
        a("v_add_f32 v4, v4, v%d" % (4 + j))
    a("s_lshl_b32 s46, s3, 8")
    a("v_cmp_gt_u32 vcc, 64, v0")
    a("s_and_saveexec_b64 s[48:49], vcc")
    a("s_cbranch_execz %s" % end)
    a("buffer_atomic_add_f32 v4, v3, s[12:15], s46 offen")


def apply_kernel(a, name):
    kernel_header(a, name)
    end = a.newlabel("end")
    cs = a.newlabel("cs")
    a("s_cmp_ge_u32 s2, 256")
    a("s_cbranch_scc1 %s" % cs)
    rt_begin(a)
    a("s_load_dwordx2 s[4:5], s[0:1], %d" % KA['ws'])
    a("v_lshrrev_b32 v1, 6, v0")
    a("v_and_b32 v0, 63, v0")
    a("s_nop 0")
    a("v_readfirstlane_b32 s28, v1")
    a("v_and_b32 v2, 15, v0")
    a("v_lshrrev_b32 v3, 4, v0")
    a("s_and_b32 s29, s2, 7")
    a("s_lshr_b32 s30, s2, 3")
    a("s_lshl_b32 s29, s29, 2")
    a("s_add_u32 s29, s29, s28")
    a("s_waitcnt lgkmcnt(0)")
    srd_from_ptr(a, 8, 4, S * D * 2, WS_PQ)
    srd_from_ptr(a, 12, 4, 135168, WS_KV)
    srd_from_ptr(a, 16, 4, S * D * 2, WS_O)
    a("v_lshlrev_b32 v4, 7, v2")
    a("v_lshl_add_u32 v4, v3, 5, v4")
    a("s_lshl_b32 s31, s29, 12")
    a("buffer_load_dwordx4 v[8:11], v4, s[12:15], s31 offen")
    a("buffer_load_dwordx4 v[12:15], v4, s[12:15], s31 offen offset:16")
    a("buffer_load_dwordx4 v[16:19], v4, s[12:15], s31 offen offset:2048")
    a("buffer_load_dwordx4 v[20:23], v4, s[12:15], s31 offen offset:2064")
    a("v_lshlrev_b32 v5, 5, v3")
    a("s_lshl_b32 s32, s29, 7")
    a("s_add_u32 s32, s32, 131072")
    a("buffer_load_dwordx4 v[24:27], v5, s[12:15], s32 offen")
    a("buffer_load_dwordx4 v[28:31], v5, s[12:15], s32 offen offset:16")
    a("v_lshlrev_b32 v6, 11, v2")
    a("v_lshl_add_u32 v6, v3, 4, v6")
    a("s_lshl_b32 s33, s30, 17")
    a("s_lshl_b32 s34, s29, 6")
    a("s_add_u32 s33, s33, s34")
    for i in range(4):
        a("s_add_u32 s34, s33, %d" % (i * 32768))
        a("buffer_load_dwordx4 v[%d:%d], v6, s[8:11], s34 offen" % (32 + 4 * i, 35 + 4 * i))
    a("s_waitcnt vmcnt(4)")
    for j in range(4):
        a("v_cvt_pk_bf16_f32 v%d, v%d, v%d" % (48 + j, 8 + 2 * j, 9 + 2 * j))
        a("v_cvt_pk_bf16_f32 v%d, v%d, v%d" % (52 + j, 16 + 2 * j, 17 + 2 * j))
        a("v_cvt_pk_bf16_f32 v%d, v%d, v%d" % (56 + j, 24 + 2 * j, 25 + 2 * j))
    a("s_waitcnt vmcnt(0)")
    a("s_nop 1")
    for i in range(4):
        a("v_mfma_f32_16x16x32_bf16 v[%d:%d], v[48:51], v[%d:%d], 0" % (64 + 12 * i, 67 + 12 * i, 32 + 4 * i, 35 + 4 * i))
        a("v_mfma_f32_16x16x32_bf16 v[%d:%d], v[52:55], v[%d:%d], 0" % (68 + 12 * i, 71 + 12 * i, 32 + 4 * i, 35 + 4 * i))
        a("v_mfma_f32_16x16x32_bf16 v[%d:%d], v[56:59], v[%d:%d], 0" % (72 + 12 * i, 75 + 12 * i, 32 + 4 * i, 35 + 4 * i))
    a("v_lshlrev_b32 v7, 11, v2")
    a("v_lshl_add_u32 v7, v3, 3, v7")
    a("s_nop 7")
    a("s_nop 1")
    for i in range(4):
        b = 64 + 12 * i
        a("v_cvt_pk_bf16_f32 v%d, v%d, v%d" % (b + 8, b + 8, b + 8))
        a("v_lshlrev_b32 v%d, 16, v%d" % (b + 8, b + 8))
        a("v_add_f32 v%d, %s, v%d" % (b + 8, f32hex(1e-6), b + 8))
        a("v_rcp_f32 v%d, v%d" % (b + 8, b + 8))
        a("s_nop 0")
        for r in range(8):
            a("v_mul_f32 v%d, v%d, v%d" % (b + r, b + r, b + 8))
        for r in range(4):
            a("v_cvt_pk_bf16_f32 v%d, v%d, v%d" % (b + r, b + 2 * r, b + 2 * r + 1))
        a("s_add_u32 s34, s33, %d" % (i * 32768))
        a("buffer_store_dwordx2 v[%d:%d], v7, s[16:19], s34 offen" % (b, b + 1))
        a("buffer_store_dwordx2 v[%d:%d], v7, s[16:19], s34 offen offset:32" % (b + 2, b + 3))
    rt_end(a, 5)
    colsum_code(a, cs, end, 256)
    a.label(end)
    a("s_endpgm")
    return kernel_desc(name, 144, 144)


S_WAVE, S_TM, S_TN, S_CNT = 28, 29, 30, 31
S_KX, S_KW, S_RD, S_WR, S_MX, S_MW = 32, 33, 34, 35, 36, 37
S_B = [38, 39, 40]
S_T0 = 42
ACC0 = 28


def wave_affine(a, sd, coefs, tmp, base=0):
    a("s_mov_b32 s%d, %d" % (sd, base))
    for b, c in enumerate(coefs):
        if c:
            a("s_mul_i32 s%d, s%d, %d" % (tmp, S_B[b], c))
            a("s_add_u32 s%d, s%d, s%d" % (sd, sd, tmp))


def helper_colsum(a, nbar):
    a("s_waitcnt lgkmcnt(0)")
    idle = a.newlabel("hidle")
    a("s_cmp_ge_u32 s2, 224")
    a("s_cbranch_scc1 %s" % idle)
    a("s_lshr_b32 s40, s2, 1")
    a("s_and_b32 s41, s2, 1")
    a("s_cmp_ge_u32 s40, 56")
    a("s_cselect_b32 s82, s84, s82")
    a("s_cselect_b32 s83, s85, s83")
    a("s_cselect_b32 s42, 56, 0")
    a("s_sub_u32 s42, s40, s42")
    srd_from_ptr(a, 8, 82, D * DF * 2)
    srd_from_ptr(a, 12, 4, 2 * DF * 4, WS_CS)
    a("v_and_b32 v3, 7, v0")
    a("v_lshrrev_b32 v4, 3, v0")
    a("s_mov_b32 s43, %d" % (DF * 2))
    a("v_mul_lo_u32 v4, v4, s43")
    a("v_lshl_add_u32 v4, v3, 4, v4")
    a("s_lshl_b32 s43, s42, 7")
    a("s_mul_i32 s44, s41, %d" % (512 * DF * 2))
    a("s_add_u32 s43, s43, s44")
    for r in range(8):
        a("v_mov_b32 v%d, 0" % (8 + r))
    NB = 8
    bar = 0

    def issue(b):
        for j in range(8):
            a("buffer_load_dwordx4 v[%d:%d], v4, s[8:11], s43 offen" % (16 + (b & 1) * 32 + 4 * j, 19 + (b & 1) * 32 + 4 * j))
            a("s_add_u32 s43, s43, %d" % (8 * DF * 2))

    def consume(b):
        for j in range(8):
            for q in range(4):
                r = 16 + (b & 1) * 32 + 4 * j + q
                a("v_lshlrev_b32 v5, 16, v%d" % r)
                a("v_and_b32 v6, 0xffff0000, v%d" % r)
                a("v_add_f32 v%d, v%d, v5" % (8 + 2 * q, 8 + 2 * q))
                a("v_add_f32 v%d, v%d, v6" % (9 + 2 * q, 9 + 2 * q))
    issue(0)
    for b in range(NB):
        a("s_barrier"); bar += 1
        if b + 1 < NB:
            issue(b + 1)
        a("s_barrier"); bar += 1
        a("s_waitcnt vmcnt(%d)" % (8 if b + 1 < NB else 0))
        consume(b)
    for r in range(8):
        v = 8 + r
        a("s_nop 1")
        a("v_add_f32_dpp v5, v%d, v%d row_ror:8 row_mask:0xf bank_mask:0xf" % (v, v))
        a("v_mov_b32 v%d, v5" % v)
        xreduce(a, v, 5)
    a("v_lshlrev_b32 v3, 5, v0")
    a("s_lshl_b32 s43, s40, 8")
    a("s_mov_b64 exec, 0xff")
    for r in range(8):
        a("buffer_atomic_add_f32 v%d, v3, s[12:15], s43 offen offset:%d" % (8 + r, 4 * r))
    a("s_mov_b64 exec, -1")
    assert bar <= nbar
    for _ in range(nbar - bar):
        a("s_barrier")
    a("s_endpgm")
    a.label(idle)
    for _ in range(nbar):
        a("s_barrier")


def gemm_kernel(a, P):
    name = P['name']
    kernel_header(a, name)
    end = a.newlabel("end")
    a("s_cmp_ge_u32 s2, 256")
    a("s_cbranch_scc1 %s" % end)
    if "stamp" in EXP:
        a("s_memtime s[64:65]")
        a("s_load_dwordx2 s[72:73], s[0:1], %d" % KA['dbg'])
    if "rt" in EXP:
        a("s_memrealtime s[64:65]")
    a("s_load_dwordx2 s[4:5], s[0:1], %d" % KA['ws'])
    a("s_load_dwordx2 s[6:7], s[0:1], %d" % KA[P['w'][0]])
    if len(P['w']) > 1:
        a("s_load_dwordx2 s[60:61], s[0:1], %d" % KA[P['w'][1]])
    for (sd, key) in P.get('argptrs', []):
        a("s_load_dwordx2 s[%d:%d], s[0:1], %d" % (sd, sd + 1, KA[key]))
    for i, (key, nb) in enumerate(P.get('pf', []) + P.get('helper', [])):
        a("s_load_dwordx2 s[%d:%d], s[0:1], %d" % (82 + 2 * i, 83 + 2 * i, KA[key]))
    a("v_lshrrev_b32 v1, 6, v0")
    a("v_and_b32 v0, 63, v0")
    a("s_nop 0")
    a("v_readfirstlane_b32 s%d, v1" % S_WAVE)
    a("v_and_b32 v1, 15, v0")
    a("v_lshrrev_b32 v2, 4, v0")
    S_VID = 100
    a("s_getreg_b32 s101, hwreg(HW_REG_XCC_ID)")
    a("s_and_b32 s101, s101, 7")
    a("v_mov_b32 v5, %d" % (P['lds'] - 4))
    a("s_waitcnt lgkmcnt(0)")
    ncl = a.newlabel("ncl")
    a("s_cmp_lg_u32 s%d, 0" % S_WAVE)
    a("s_cbranch_scc1 %s" % ncl)
    srd_from_ptr(a, 92, 4, 2048, WS_CNT + P['rtidx'] * 2048)
    a("s_mov_b32 s99, 0")
    cl = a.newlabel("cl")
    got = a.newlabel("got")
    a.label(cl)
    a("s_lshl_b32 s%d, s101, 8" % S_T0)
    a("v_mov_b32 v3, s%d" % S_T0)
    a("v_mov_b32 v4, 1")
    a("s_mov_b64 exec, 1")
    a("buffer_atomic_add v4, v3, s[92:95], 0 offen sc0 sc1")
    a("s_waitcnt vmcnt(0)")
    a("s_mov_b64 exec, -1")
    a("v_readfirstlane_b32 s%d, v4" % S_VID)
    a("s_cmp_lt_u32 s%d, 32" % S_VID)
    a("s_cbranch_scc1 %s" % got)
    a("s_add_u32 s101, s101, 1")
    a("s_and_b32 s101, s101, 7")
    a("s_add_u32 s99, s99, 1")
    a("s_cmp_lt_u32 s99, 8")
    a("s_cbranch_scc1 %s" % cl)
    a.label(got)
    a("s_lshl_b32 s%d, s%d, 3" % (S_VID, S_VID))
    a("s_add_u32 s%d, s%d, s101" % (S_VID, S_VID))
    a("v_mov_b32 v4, s%d" % S_VID)
    a("ds_write_b32 v5, v4")
    a("s_waitcnt lgkmcnt(0)")
    a.label(ncl)
    a("s_barrier")
    a("ds_read_b32 v4, v5")
    a("s_waitcnt lgkmcnt(0)")
    a("v_readfirstlane_b32 s%d, v4" % S_VID)
    a("s_cmp_ge_u32 s%d, 256" % S_VID)
    a("s_cbranch_scc1 %s" % end)
    mblk_bits = P['mblk_bits']
    if P.get('splitk'):
        a("s_and_b32 s%d, s2, 7" % S_T0)
        a("s_lshr_b32 s%d, s2, 3" % (S_T0 + 1))
        a("s_and_b32 s99, s%d, 1" % (S_T0 + 1))
        a("s_lshr_b32 s%d, s%d, 1" % (S_T0 + 1, S_T0 + 1))
        a("s_and_b32 s%d, s%d, 3" % (S_TM, S_T0))
        a("s_lshl_b32 s%d, s%d, 2" % (S_TM, S_TM))
        a("s_and_b32 s%d, s%d, 3" % (S_T0 + 2, S_T0 + 1))
        a("s_add_u32 s%d, s%d, s%d" % (S_TM, S_TM, S_T0 + 2))
        a("s_lshr_b32 s%d, s%d, 2" % (S_TN, S_T0))
        a("s_lshl_b32 s%d, s%d, 2" % (S_TN, S_TN))
        a("s_lshr_b32 s%d, s%d, 2" % (S_T0 + 2, S_T0 + 1))
        a("s_add_u32 s%d, s%d, s%d" % (S_TN, S_TN, S_T0 + 2))
    else:
        a("s_and_b32 s%d, s%d, 7" % (S_T0, S_VID))
        a("s_lshr_b32 s%d, s%d, 3" % (S_T0 + 1, S_VID))
        a("s_and_b32 s%d, s%d, %d" % (S_TM, S_T0, (1 << mblk_bits) - 1))
        a("s_lshl_b32 s%d, s%d, 3" % (S_TM, S_TM))
        a("s_and_b32 s%d, s%d, 7" % (S_T0 + 2, S_T0 + 1))
        a("s_add_u32 s%d, s%d, s%d" % (S_TM, S_TM, S_T0 + 2))
        a("s_lshr_b32 s%d, s%d, %d" % (S_TN, S_T0, mblk_bits))
        a("s_lshl_b32 s%d, s%d, 2" % (S_TN, S_TN))
        a("s_lshr_b32 s%d, s%d, 3" % (S_T0 + 2, S_T0 + 1))
        a("s_add_u32 s%d, s%d, s%d" % (S_TN, S_TN, S_T0 + 2))
    a("s_and_b32 s%d, s%d, 1" % (S_B[0], S_WAVE))
    a("s_bfe_u32 s%d, s%d, 0x10001" % (S_B[1], S_WAVE))
    a("s_lshr_b32 s%d, s%d, 2" % (S_B[2], S_WAVE))
    roles = P['roles']
    maxv = 0
    hl = None
    if P.get('helper'):
        hl = a.newlabel("helper")
        a("s_cmp_ge_u32 s%d, %d" % (S_WAVE, P['NW']))
        a("s_cbranch_scc1 %s" % hl)
    if len(roles) == 2:
        r1 = a.newlabel("role1")
        a("s_cmp_ge_u32 s%d, 4" % S_WAVE)
        a("s_cbranch_scc1 %s" % r1)
        nv0 = gemm_body(a, P, roles[0], end)
        a("s_branch %s" % end)
        a.label(r1)
        nv1 = gemm_body(a, P, roles[1], end)
        arch = max(nv0[0], nv1[0]); acc_n = max(nv0[1], nv1[1])
    else:
        arch, acc_n = gemm_body(a, P, roles[0], end)
    if hl:
        a("s_branch %s" % end)
        a.label(hl)
        helper_colsum(a, P['_nbar'])
    a.label(end)
    a("s_endpgm")
    arch = (arch + 3) // 4 * 4
    lim = 512 if P['NW'] == 4 else 256
    if hl:
        lim = 256 if P['NW'] == 4 else 168
    assert arch + acc_n <= lim, (name, arch, acc_n)
    return kernel_desc(name, arch + acc_n, arch)


S_RDX, S_WRX, S_RDW, S_WRW = 34, 35, 41, 96


def gemm_body(a, P, R, end):
    BM, K = P['BM'], P['K']
    kbx, kbw, NSX, NSW = P['kbx'], P['kbw'], P['NSX'], P['NSW']
    ldx, ldw = P['ldx'], P['ldw']
    nsteps = K // 32
    TX, TW = nsteps // kbx, nsteps // kbw
    XB = BM * kbx * 64
    WB = P['WB']
    WBASE = NSX * XB
    assert WBASE + NSW * WB <= 163840
    nxp = R['nxp']
    wsl = R['w_slot']
    nwp = len(wsl)
    mt = R['mt']
    ntl = R['ntiles']
    nt = len(ntl)
    wad = R['waddr']
    nwa = len(wad)
    V_L15, V_G = 1, 2
    v = 3
    V_XO = list(range(v, v + nxp)); v += nxp
    V_WO = list(range(v, v + nwp)); v += nwp
    nxa = kbx
    V_XAB = list(range(v, v + nxa)); v += nxa
    V_WAB = list(range(v, v + nwa)); v += nwa
    V_XA = list(range(v, v + nxa)); v += nxa
    V_WA = list(range(v, v + nwa)); v += nwa
    V_T = v; v += 4
    V_PF = V_T + 1 if 'pro' not in P else V_T
    assert v <= ACC0 - 1, v
    nacc = mt * nt * 4

    def acc(i, j):
        return ACC0 + (j * mt + i) * 4
    FS = (mt + nt) * 4

    def xf(s, i):
        return s * FS + i * 4

    def wf(s, j):
        return s * FS + mt * 4 + j * 4

    t0, t1, t2, t3 = V_T, V_T + 1, V_T + 2, V_T + 3
    rpp = 8 if kbx == 2 else 16
    if kbx == 2:
        a("v_lshrrev_b32 v%d, 3, v0" % t0)
        a("v_and_b32 v%d, 7, v0" % t1)
        a("v_xor_b32 v%d, v%d, v%d" % (t1, t1, t0))
    else:
        a("v_lshrrev_b32 v%d, 2, v0" % t0)
        a("v_bfe_u32 v%d, v0, 4, 1" % t2)
        a("v_bfe_u32 v%d, v0, 5, 1" % t3)
        a("v_xor_b32 v%d, v%d, v%d" % (t2, t2, t3))
        a("v_lshl_or_b32 v%d, v%d, 1, v%d" % (t2, t2, t3))
        a("v_and_b32 v%d, 3, v0" % t1)
        a("v_xor_b32 v%d, v%d, v%d" % (t1, t1, t2))
    if nxp:
        wave_affine(a, S_T0, [c * rpp for c in R['xp_coef']], S_T0 + 1)
        a("s_mul_i32 s%d, s%d, %d" % (S_T0 + 1, S_TM, BM))
        a("s_add_u32 s%d, s%d, s%d" % (S_T0, S_T0, S_T0 + 1))
        a("v_add_u32 v%d, s%d, v%d" % (t0, S_T0, t0))
        a("s_mov_b32 s%d, %d" % (S_T0 + 1, ldx))
        a("v_mul_lo_u32 v%d, v%d, s%d" % (t0, t0, S_T0 + 1))
        a("v_lshl_add_u32 v%d, v%d, 4, v%d" % (V_XO[0], t1, t0))
        for i in range(1, nxp):
            a("v_add_u32 v%d, 0x%x, v%d" % (V_XO[i], i * rpp * ldx, V_XO[0]))
        wave_affine(a, S_MX, [c * 1024 for c in R['xp_coef']], S_T0)
    a("s_mul_i32 s%d, s%d, %d" % (S_T0 + 2, S_TN, P['tn_bytes']))
    a("s_mov_b32 s%d, %d" % (S_T0 + 3, ldw))
    for typ in ('A', 'B'):
        sl = [i for i in range(nwp) if wsl[i][0] == typ]
        if not sl:
            continue
        if typ == 'A':
            a("v_lshrrev_b32 v%d, 3, v0" % t0)
            a("v_bfe_u32 v%d, v0, 4, 1" % t2)
            a("v_lshlrev_b32 v%d, 1, v%d" % (t2, t2))
            a("v_and_b32 v%d, 7, v0" % t1)
            a("v_xor_b32 v%d, v%d, v%d" % (t1, t1, t2))
        else:
            a("v_lshrrev_b32 v%d, 2, v0" % t0)
            a("v_lshrrev_b32 v%d, 5, v0" % t2)
            a("v_lshlrev_b32 v%d, 1, v%d" % (t2, t2))
            a("v_and_b32 v%d, 3, v0" % t1)
            a("v_xor_b32 v%d, v%d, v%d" % (t1, t1, t2))
        a("v_mul_lo_u32 v%d, v%d, s%d" % (t0, t0, S_T0 + 3))
        wave_affine(a, S_T0, R['wg_coef' + typ], S_T0 + 1)
        a("s_add_u32 s%d, s%d, s%d" % (S_T0, S_T0, S_T0 + 2))
        if 'par_off' + typ in P:
            c0, c1 = P['par_off' + typ]
            a("s_and_b32 s%d, s%d, 1" % (S_T0 + 1, S_TN))
            a("s_cmp_lg_u32 s%d, 0" % (S_T0 + 1))
            a("s_cselect_b32 s%d, %d, %d" % (S_T0 + 1, c1, c0))
            a("s_add_u32 s%d, s%d, s%d" % (S_T0, S_T0, S_T0 + 1))
        a("v_add_u32 v%d, s%d, v%d" % (t0, S_T0, t0))
        if typ == 'A':
            kp = R['ko_par']
            for i in sl:
                par_c, par_bit = wsl[i][3], kp
                if par_bit is None:
                    a("v_xor_b32 v%d, %d, v%d" % (t2, par_c * 4, t1))
                else:
                    a("s_lshl_b32 s%d, s%d, 2" % (S_T0 + 1, S_B[par_bit]))
                    a("s_xor_b32 s%d, s%d, %d" % (S_T0 + 1, S_T0 + 1, par_c * 4))
                    a("v_xor_b32 v%d, s%d, v%d" % (t2, S_T0 + 1, t1))
                a("v_lshl_add_u32 v%d, v%d, 4, v%d" % (t2, t2, t0))
                a("v_add_u32 v%d, 0x%x, v%d" % (V_WO[i], wsl[i][1], t2))
        else:
            a("v_lshl_add_u32 v%d, v%d, 4, v%d" % (t0, t1, t0))
            for i in sl:
                a("v_add_u32 v%d, 0x%x, v%d" % (V_WO[i], wsl[i][1], t0))
    S_MWA, S_MWB = S_MW, 97
    wave_affine(a, S_MWA, R['wl_coefA'], S_T0, base=WBASE)
    if any(w[0] == 'B' for w in wsl):
        wave_affine(a, S_MWB, R['wl_coefB'], S_T0, base=WBASE)
    a("s_waitcnt lgkmcnt(0)")
    srd_from_ptr(a, 8, 4, S * ldx, P['x_ws'])
    if len(P['w']) > 1:
        a("s_cmp_lg_u32 s%d, 0" % S_B[P['wsel_bit']])
        a("s_cselect_b32 s6, s60, s6")
        a("s_cselect_b32 s7, s61, s7")
    srd_from_ptr(a, 12, 6, K * ldw * P.get('splitk', 1))

    def dma_x():
        g = []
        for i in range(nxp):
            g.append(["s_add_u32 s%d, s%d, s%d" % (S_T0, S_WRX, S_MX),
                      "s_add_u32 m0, s%d, %d" % (S_T0, i * 1024),
                      "s_nop 0",
                      "buffer_load_dwordx4 v%d, s[8:11], s%d offen lds" % (V_XO[i], S_KX)])
        g.append(["s_add_u32 s%d, s%d, %d" % (S_KX, S_KX, kbx * 64)])
        return g

    def dma_w():
        g = []
        for i in range(nwp):
            g.append(["s_add_u32 s%d, s%d, s%d" % (S_T0, S_WRW, S_MWA if wsl[i][0] == 'A' else S_MWB),
                      "s_add_u32 m0, s%d, %d" % (S_T0, wsl[i][2]),
                      "s_nop 0",
                      "buffer_load_dwordx4 v%d, s[12:15], s%d offen lds" % (V_WO[i], S_KW)])
        g.append(["s_add_u32 s%d, s%d, %d" % (S_KW, S_KW, kbw * 32 * ldw)])
        return g

    issued = []

    def sim_issue(op, tile):
        for _ in range(nxp if op == 'X' else nwp):
            issued.append((op, tile))

    xst = P.get('x_static', False)
    protop = 0

    def sim_wait(s):
        need = {('X', s // kbx), ('W', s // kbw)}
        last = max(i for i, e in enumerate(issued) if e in need)
        return len(issued) - 1 - last

    npre = 0
    if 'pre' in P and 'nostat' not in EXP:
        npre = P['pre'](a, dict(R=R, V_L15=V_L15, V_G=V_G, V_T=V_T))
        issued.extend([('P', 0)] * npre)
    if P.get('splitk'):
        a("s_mul_i32 s%d, s99, %d" % (S_KX, K * 2))
        a("s_mul_i32 s%d, s99, %d" % (S_KW, K * ldw))
    else:
        a("s_mov_b32 s%d, 0" % S_KX)
        a("s_mov_b32 s%d, 0" % S_KW)
    a("s_mov_b32 s%d, 0" % S_WRX)
    a("s_mov_b32 s%d, 0" % S_WRW)
    order = sorted([(t * kbx, 0, 'X', t) for t in range(0 if xst else NSX - 1)] + [(t * kbw, 1, 'W', t) for t in range(NSW - 1)])
    for (_, _, op, t) in order:
        for g in (dma_x() if op == 'X' else dma_w()):
            for x in g:
                a(x)
        sim_issue(op, t)
        if op == 'X':
            a("s_add_u32 s%d, s%d, %d" % (S_WRX, S_WRX, XB))
        else:
            a("s_add_u32 s%d, s%d, %d" % (S_WRW, S_WRW, WB))
    P['srds'](a)
    if kbx == 2:
        a("v_and_b32 v%d, 7, v0" % t0)
        a("v_xor_b32 v%d, v%d, v%d" % (t0, t0, V_G))
        a("v_lshlrev_b32 v%d, 4, v%d" % (t0, t0))
        a("v_lshl_add_u32 v%d, v%d, 7, v%d" % (t0, V_L15, t0))
        wave_affine(a, S_T0, [c * 128 for c in R['row_coef']], S_T0 + 1)
        a("v_add_u32 v%d, s%d, v%d" % (V_XAB[0], S_T0, t0))
        a("v_xor_b32 v%d, 64, v%d" % (V_XAB[1], V_XAB[0]))
        xmstride = 2048
    else:
        a("v_bfe_u32 v%d, v0, 2, 1" % t2)
        a("v_bfe_u32 v%d, v0, 3, 1" % t3)
        a("v_xor_b32 v%d, v%d, v%d" % (t2, t2, t3))
        a("v_lshl_or_b32 v%d, v%d, 1, v%d" % (t2, t2, t3))
        a("v_xor_b32 v%d, v%d, v%d" % (t0, t2, V_G))
        a("v_lshlrev_b32 v%d, 4, v%d" % (t0, t0))
        a("v_lshl_add_u32 v%d, v%d, 6, v%d" % (t0, V_L15, t0))
        wave_affine(a, S_T0, [c * 64 for c in R['row_coef']], S_T0 + 1)
        a("v_add_u32 v%d, s%d, v%d" % (V_XAB[0], S_T0, t0))
        xmstride = 1024
    done = {}
    for wi, (typ, xc) in enumerate(wad):
        if typ in done:
            a("v_xor_b32 v%d, %d, v%d" % (V_WAB[wi], xc, V_WAB[done[typ]]))
            continue
        done[typ] = wi
        assert xc == 0
        if typ == 'A':
            a("s_mov_b32 s%d, %d" % (S_T0, P['kostrideA']))
            a("v_mul_lo_u32 v%d, v%d, s%d" % (t0, V_G, S_T0))
            a("v_lshrrev_b32 v%d, 2, v%d" % (t2, V_L15))
            a("v_lshl_add_u32 v%d, v%d, 7, v%d" % (t0, t2, t0))
            a("v_bfe_u32 v%d, v0, 3, 2" % t1)
            wave_affine(a, S_T0, R['t_coefA'], S_T0 + 1)
            a("v_xor_b32 v%d, s%d, v%d" % (t1, S_T0, t1))
            a("v_lshl_add_u32 v%d, v%d, 5, v%d" % (t0, t1, t0))
        else:
            a("v_lshrrev_b32 v%d, 1, v%d" % (t0, V_G))
            a("s_mov_b32 s%d, %d" % (S_T0, P['k16strideB']))
            a("v_mul_lo_u32 v%d, v%d, s%d" % (t0, t0, S_T0))
            a("v_and_b32 v%d, 1, v%d" % (t1, V_G))
            a("v_lshrrev_b32 v%d, 2, v%d" % (t2, V_L15))
            a("v_lshl_add_u32 v%d, v%d, 3, v%d" % (t2, t1, t2))
            a("v_lshl_add_u32 v%d, v%d, 6, v%d" % (t0, t2, t0))
            wave_affine(a, S_T0, R['t_coefB'], S_T0 + 1)
            a("v_xor_b32 v%d, s%d, v%d" % (t1, S_T0, t1))
            a("v_lshl_add_u32 v%d, v%d, 5, v%d" % (t0, t1, t0))
        a("v_bfe_u32 v%d, v0, 1, 1" % t2)
        a("v_lshl_add_u32 v%d, v%d, 4, v%d" % (t0, t2, t0))
        a("v_and_b32 v%d, 1, v0" % t2)
        a("v_lshl_add_u32 v%d, v%d, 3, v%d" % (t0, t2, t0))
        wave_affine(a, S_T0, R['wr_coef'], S_T0 + 1, base=WBASE)
        a("v_add_u32 v%d, s%d, v%d" % (V_WAB[wi], S_T0, t0))

    def reads(fs, s):
        r = []
        ksx = s % kbx
        ksw = s % kbw
        for i in range(mt):
            r.append(["ds_read_b128 a[%d:%d], v%d offset:%d" % (xf(fs, i), xf(fs, i) + 3, V_XA[ksx], i * xmstride)])
        for j, (asel, loff, sw) in enumerate(ntl):
            typ = wad[asel][0]
            for hf in range(2):
                if typ == 'A':
                    off = loff + hf * 512 + ksw * 4 * P['kostrideA']
                else:
                    off = loff + hf * 256 + ksw * 2 * P['k16strideB']
                r.append(["ds_read_b64_tr_b16 a[%d:%d], v%d offset:%d" % (wf(fs, j) + 2 * hf, wf(fs, j) + 2 * hf + 1, V_WA[asel], off)])
        return r

    def mfmas(fs, first):
        m = []
        for j, (asel, loff, sw) in enumerate(ntl):
            for i in range(mt):
                A, B = (wf(fs, j), xf(fs, i)) if sw else (xf(fs, i), wf(fs, j))
                c = acc(i, j)
                cin = "0" if first else "v[%d:%d]" % (c, c + 3)
                m.append("v_mfma_f32_16x16x32_bf16 v[%d:%d], a[%d:%d], a[%d:%d], %s" % (c, c + 3, A, A + 3, B, B + 3, cin))
        return m

    def upd_x():
        return ["v_add_u32 v%d, s%d, v%d" % (V_XA[x], S_RDX, V_XAB[x]) for x in range(nxa)]

    def upd_w():
        return ["v_add_u32 v%d, s%d, v%d" % (V_WA[x], S_RDW, V_WAB[x]) for x in range(nwa)]

    if 'pro' in P and 'nostat' not in EXP:
        protop = P['pro'](a, dict(R=R, V_L15=V_L15, V_G=V_G, V_T=V_T, nissued=len(issued) - npre)) or 0
        issued.append(('P', 0))
    if "prio" in EXP and P['NW'] == 8:
        sk = a.newlabel("np")
        a("s_cmp_lt_u32 s%d, 4" % S_WAVE)
        a("s_cbranch_scc1 %s" % sk)
        a("s_setprio 1")
        a.label(sk)
    a("s_mov_b32 s%d, 0" % S_RDX)
    a("s_mov_b32 s%d, 0" % S_RDW)
    for x in upd_x() + upd_w():
        a(x)
    a("s_waitcnt vmcnt(%d) lgkmcnt(0)" % sim_wait(0))
    a("s_barrier")
    for r in reads(0, 0):
        for x in r:
            a(x)
    for g in ([] if xst else dma_x()) + dma_w():
        for x in g:
            a(x)
    if not xst:
        sim_issue('X', NSX - 1)
    sim_issue('W', NSW - 1)
    a("s_waitcnt lgkmcnt(0)")

    def gen_step(n):
        o = []
        fs = n & 1
        last = (n + 1 == nsteps)
        s1 = n + 1
        evx = (not last) and (s1 % kbx == 0)
        evw = (not last) and (s1 % kbw == 0)
        extras = []
        dmas = []
        if evx or evw:
            if evx:
                o += ["s_mov_b32 s%d, s%d" % (S_WRX, S_RDX),
                      "s_add_u32 s%d, s%d, %d" % (S_RDX, S_RDX, XB),
                      "s_cmp_eq_u32 s%d, %d" % (S_RDX, NSX * XB),
                      "s_cselect_b32 s%d, 0, s%d" % (S_RDX, S_RDX)] + upd_x()
            if evw:
                o += ["s_mov_b32 s%d, s%d" % (S_WRW, S_RDW),
                      "s_add_u32 s%d, s%d, %d" % (S_RDW, S_RDW, WB),
                      "s_cmp_eq_u32 s%d, %d" % (S_RDW, NSW * WB),
                      "s_cselect_b32 s%d, 0, s%d" % (S_RDW, S_RDW)] + upd_w()
            o.append("s_waitcnt vmcnt(%d)" % sim_wait(s1))
            o.append("s_barrier")
            if evw and s1 // kbw - 1 + NSW < TW:
                dmas += dma_w()
                sim_issue('W', s1 // kbw - 1 + NSW)
            if evx and s1 // kbx - 1 + NSX < TX and not xst:
                dmas += dma_x()
                sim_issue('X', s1 // kbx - 1 + NSX)
        if not last and "noread" not in EXP:
            extras += reads(fs ^ 1, s1)
        if "nodma" not in EXP:
            if P.get('dma_first') or "dmafirst" in EXP:
                extras = dmas + extras
            else:
                extras += dmas
        if n == P.get('pf_step', nsteps - 4) and P.get('pf'):
            g = []
            for i, (key, nb) in enumerate(P['pf']):
                per = (nb + 256 * P['NW'] * 4096 - 1) // (256 * P['NW'] * 4096)
                g += ["s_mov_b32 s88, s%d" % (82 + 2 * i), "s_mov_b32 s89, s%d" % (83 + 2 * i),
                      "s_mov_b32 s90, 0x%x" % nb, "s_mov_b32 s91, 0x00020000",
                      "s_mul_i32 s98, s2, %d" % P['NW'],
                      "s_add_u32 s98, s98, s%d" % S_WAVE,
                      "s_mul_i32 s98, s98, %d" % (per * 4096),
                      "v_lshlrev_b32 v%d, 6, v0" % V_T]
                for j in range(per):
                    g += ["buffer_load_dword v%d, v%d, s[88:91], s%d offen" % (V_PF, V_T, 98),
                          "s_add_u32 s98, s98, 4096"]
                    issued.append(('P', 0))
            extras.append(g)
        if n == nsteps - 3 and 'early' in P:
            ee = P['early'](dict(R=R, V_L15=V_L15, V_G=V_G, mt=mt, nt=nt, free=ACC0 + nacc))
            extras += ee
            issued.extend([('P', 0)] * sum(1 for g in ee for x in g if x.startswith("buffer_")))
        if last and 'last_extras' in P:
            extras += P['last_extras'](dict(R=R, V_L15=V_L15, V_G=V_G, V_XO=V_XO, afree=xf(fs ^ 1, 0)))
        mm = mfmas(fs, n == 0)
        if "nomfma" in EXP:
            mm = ["s_nop 0"] * 2
        nm = len(mm)
        ne = len(extras)
        span = max(1, int(nm * float(os.environ.get('SPAN', P.get('span', 0.85)))))
        pos = [min(nm - 1, (k * span) // max(ne, 1)) for k in range(ne)]
        k = 0
        for idx, m in enumerate(mm):
            o.append(m)
            while k < ne and pos[k] == idx:
                o += extras[k]
                k += 1
        if not last:
            o.append("s_waitcnt lgkmcnt(0)")
        return o

    if "stamp" in EXP:
        a("s_memtime s[66:67]")
        a("s_memrealtime s[92:93]")
        a("s_waitcnt lgkmcnt(0)")
    if "rt" in EXP:
        a("s_memrealtime s[66:67]")
        a("s_waitcnt lgkmcnt(0)")
    codes = [gen_step(n) for n in range(nsteps)]
    P['_nbar'] = 1 + sum(c.count("s_barrier") for c in codes) + P.get('epi_bars', 0)
    bodies = [codes[n] + codes[n + 1] for n in range(0, nsteps, 2)]
    i = 0
    while i < len(bodies):
        j = i
        while j + 1 < len(bodies) and bodies[j + 1] == bodies[i]:
            j += 1
        cnt = j - i + 1
        if cnt >= 3:
            a("s_mov_b32 s%d, %d" % (S_CNT, cnt))
            loop = a.newlabel("loop")
            a.label(loop)
            for x in bodies[i]:
                a(x)
            a("s_sub_u32 s%d, s%d, 1" % (S_CNT, S_CNT))
            a("s_cmp_lg_u32 s%d, 0" % S_CNT)
            a("s_cbranch_scc1 %s" % loop)
        else:
            for b in bodies[i:j + 1]:
                for x in b:
                    a(x)
        i = j + 1
    if "stamp" in EXP:
        a("s_memtime s[68:69]")
        a("s_memrealtime s[94:95]")
        a("s_waitcnt lgkmcnt(0)")
    if "rt" in EXP:
        a("s_memrealtime s[68:69]")
        a("s_waitcnt lgkmcnt(0)")
    a("s_nop 7")
    ctx = dict(acc=acc, mt=mt, nt=nt, V_L15=V_L15, V_G=V_G, BM=BM, nacc=nacc, R=R, free=ACC0 + nacc, afree=xf(nsteps & 1, 0))
    top = P['epilogue'](a, ctx)
    if "rt" in EXP:
        a("s_waitcnt vmcnt(0)")
        a("s_memrealtime s[70:71]")
        a("s_waitcnt lgkmcnt(0)")
        a("s_cmp_lg_u32 s%d, 0" % S_WAVE)
        a("s_cbranch_scc1 %s" % end)
        srd_from_ptr(a, 76, 4, 65536, 64 * MB + P['rtidx'] * 65536)
        a("v_mov_b32 v4, s64")
        a("v_mov_b32 v5, s66")
        a("v_mov_b32 v6, s68")
        a("v_mov_b32 v7, s70")
        a("s_lshl_b32 s80, s2, 4")
        a("v_mov_b32 v8, s80")
        a("s_mov_b64 exec, 1")
        a("buffer_store_dwordx4 v[4:7], v8, s[76:79], 0 offen")
    if "stamp" in EXP:
        a("s_waitcnt vmcnt(0)")
        a("s_memtime s[70:71]")
        a("s_waitcnt lgkmcnt(0)")
        a("s_cmp_lg_u32 s%d, 0" % S_WAVE)
        a("s_cbranch_scc1 %s" % end)
        a("s_cmp_ge_u32 s2, 16")
        a("s_cbranch_scc1 %s" % end)
        a("s_sub_u32 s66, s66, s64")
        a("s_sub_u32 s68, s68, s64")
        a("s_sub_u32 s70, s70, s64")
        a("s_mov_b32 s76, s72")
        a("s_mov_b32 s77, s73")
        a("s_mov_b32 s78, 256")
        a("s_mov_b32 s79, 0x20000")
        a("s_sub_u32 s64, s94, s92")
        a("v_mov_b32 v4, s64")
        a("v_mov_b32 v5, s66")
        a("v_mov_b32 v6, s68")
        a("v_mov_b32 v7, s70")
        a("s_lshl_b32 s80, s2, 4")
        a("v_mov_b32 v8, s80")
        a("s_mov_b64 exec, 1")
        a("buffer_store_dwordx4 v[4:7], v8, s[76:79], 0 offen")
    return max(top or 0, ACC0 + nacc, protop), 2 * FS


def phi_ops(a, regs, tmp):
    for r, t in zip(regs, tmp):
        a("v_min_f32 v%d, 0, v%d" % (t, r))
    for r, t in zip(regs, tmp):
        a("v_mul_f32 v%d, %s, v%d" % (t, f32hex(LOG2E), t))
    for r, t in zip(regs, tmp):
        a("v_exp_f32 v%d, v%d" % (t, t))
    for r, t in zip(regs, tmp):
        a("v_max_f32 v%d, 0, v%d" % (r, r))
    for r, t in zip(regs, tmp):
        a("v_add_f32 v%d, v%d, v%d" % (r, r, t))
    for r, t in zip(regs, tmp):
        a("v_add_f32 v%d, %s, v%d" % (r, f32hex(1e-6), r))


def round4(a, c, t0, t1):
    a("v_cvt_pk_bf16_f32 v%d, v%d, v%d" % (t0, c, c + 1))
    a("v_cvt_pk_bf16_f32 v%d, v%d, v%d" % (t1, c + 2, c + 3))
    a("v_lshlrev_b32 v%d, 16, v%d" % (c, t0))
    a("v_and_b32 v%d, 0xffff0000, v%d" % (c + 1, t0))
    a("v_lshlrev_b32 v%d, 16, v%d" % (c + 2, t1))
    a("v_and_b32 v%d, 0xffff0000, v%d" % (c + 3, t1))


def epi_gemm1(a, c):
    acc, V_L15, V_G, R = c['acc'], c['V_L15'], c['V_G'], c['R']
    F = c['free']
    TMP = 4
    wave_affine(a, S_T0, [r * 2048 for r in R['row_coef']], S_T0 + 1)
    a("s_lshl_b32 s%d, s%d, 18" % (S_T0 + 1, S_TM))
    a("s_add_u32 s%d, s%d, s%d" % (S_T0, S_T0, S_T0 + 1))
    a("s_lshl_b32 s%d, s%d, 7" % (S_T0 + 1, S_TN))
    a("s_add_u32 s%d, s%d, s%d" % (S_T0, S_T0, S_T0 + 1))
    a("s_lshl_b32 s%d, s%d, 6" % (S_T0 + 1, S_B[1]))
    a("s_add_u32 s%d, s%d, s%d" % (S_T0, S_T0, S_T0 + 1))
    a("s_add_u32 s%d, s%d, %d" % (S_T0 + 1, S_T0, 16 * 2048))
    a("v_lshlrev_b32 v8, 11, v%d" % V_L15)
    a("v_lshl_add_u32 v8, v%d, 3, v8" % V_G)
    PK, VF, ONE = F, F + 8, F + 16
    KVA, ZA = acc(0, 2), acc(0, 2) + 16
    top = F + 20
    for i in range(2):
        for dt in range(2):
            cc = acc(i, 2 + dt)
            round4(a, cc, TMP, TMP + 1)
            phi_ops(a, [cc + r for r in range(4)], [TMP + r for r in range(4)])
            d = PK + dt * 4 + i * 2
            a("v_cvt_pk_bf16_f32 v%d, v%d, v%d" % (d, cc, cc + 1))
            a("v_cvt_pk_bf16_f32 v%d, v%d, v%d" % (d + 1, cc + 2, cc + 3))
        for et in range(2):
            cc = acc(i, 4 + et)
            d = VF + et * 4 + i * 2
            a("v_cvt_pk_bf16_f32 v%d, v%d, v%d" % (d, cc, cc + 1))
            a("v_cvt_pk_bf16_f32 v%d, v%d, v%d" % (d + 1, cc + 2, cc + 3))
    for r in range(4):
        a("v_mov_b32 v%d, 0x3f803f80" % (ONE + r))
    a("s_nop 1")
    for et in range(2):
        for dt in range(2):
            d = KVA + (et * 2 + dt) * 4
            A = VF + et * 4
            B = PK + dt * 4
            a("v_mfma_f32_16x16x32_bf16 v[%d:%d], v[%d:%d], v[%d:%d], 0" % (d, d + 3, A, A + 3, B, B + 3))
    for dt in range(2):
        d = ZA + dt * 4
        B = PK + dt * 4
        a("v_mfma_f32_16x16x32_bf16 v[%d:%d], v[%d:%d], v[%d:%d], 0" % (d, d + 3, ONE, ONE + 3, B, B + 3))
    for i in range(2):
        for j in range(2):
            cc = acc(i, j)
            round4(a, cc, TMP, TMP + 1)
            phi_ops(a, [cc + r for r in range(4)], [TMP + r for r in range(4)])
            a("v_cvt_pk_bf16_f32 v%d, v%d, v%d" % (cc, cc, cc + 1))
            a("v_cvt_pk_bf16_f32 v%d, v%d, v%d" % (cc + 1, cc + 2, cc + 3))
            a("buffer_store_dwordx2 v[%d:%d], v8, s[16:19], s%d offen offset:%d" % (cc, cc + 1, S_T0 + i, j * 32))
    a("s_barrier")
    a("s_mul_i32 s%d, s%d, 5120" % (S_T0 + 2, S_WAVE))
    a("v_lshlrev_b32 v9, 4, v0")
    a("v_add_u32 v9, s%d, v9" % (S_T0 + 2))
    for t in range(4):
        a("ds_write_b128 v9, v[%d:%d] offset:%d" % (KVA + 4 * t, KVA + 4 * t + 3, t * 1024))
    a("v_mov_b32 v%d, v%d" % (ZA + 1, ZA + 4))
    a("ds_write_b64 v9, v[%d:%d] offset:4096" % (ZA, ZA + 1))
    a("s_waitcnt lgkmcnt(0)")
    a("s_barrier")
    wave_affine(a, S_T0 + 2, [64, 2 * 5120, 2048], S_T0 + 3)
    a("v_lshlrev_b32 v9, 8, v%d" % V_G)
    a("v_and_b32 v10, 3, v0")
    a("v_lshl_add_u32 v9, v10, 4, v9")
    a("v_bfe_u32 v10, v0, 2, 2")
    a("v_lshl_add_u32 v9, v10, 2, v9")
    a("v_add_u32 v9, s%d, v9" % (S_T0 + 2))
    for k in range(4):
        for q, wv in enumerate((0, 1, 4, 5)):
            a("ds_read_b32 v%d, v9 offset:%d" % (KVA + 4 * q + k, wv * 5120 + (k >> 1) * 1024 + (k & 1) * 128))
    wave_affine(a, S_T0 + 3, [0, 2 * 5120, 0], S_T0 + 4, base=4096)
    a("v_lshlrev_b32 v10, 4, v0")
    a("v_add_u32 v10, s%d, v10" % (S_T0 + 3))
    for k, wv in enumerate((0, 1, 4, 5)):
        a("ds_read_b64 v[%d:%d], v10 offset:%d" % (ZA + 2 * k, ZA + 2 * k + 1, wv * 5120))
    a("s_lshl_b32 s%d, s%d, 1" % (S_T0, S_TN))
    a("s_add_u32 s%d, s%d, s%d" % (S_T0, S_T0, S_B[1]))
    a("s_lshl_b32 s%d, s%d, 12" % (S_T0 + 1, S_T0))
    wave_affine(a, S_T0 + 4, [1024, 0, 2048], S_T0 + 5)
    a("s_add_u32 s%d, s%d, s%d" % (S_T0 + 1, S_T0 + 1, S_T0 + 4))
    a("s_lshl_b32 s%d, s%d, 7" % (S_T0 + 2, S_T0))
    a("s_add_u32 s%d, s%d, 131072" % (S_T0 + 2, S_T0 + 2))
    a("v_lshlrev_b32 v8, 2, v0")
    a("v_lshlrev_b32 v9, 2, v%d" % V_L15)
    a("s_waitcnt lgkmcnt(0)")
    for r in range(4):
        a("v_add_f32 v%d, v%d, v%d" % (KVA + r, KVA + r, KVA + 4 + r))
        a("v_add_f32 v%d, v%d, v%d" % (KVA + 8 + r, KVA + 8 + r, KVA + 12 + r))
    for r in range(4):
        a("v_add_f32 v%d, v%d, v%d" % (KVA + r, KVA + r, KVA + 8 + r))
    for r in range(4):
        a("buffer_atomic_add_f32 v%d, v8, s[20:23], s%d offen offset:%d" % (KVA + r, S_T0 + 1, r * 256))
    skip = a.newlabel("noz")
    a("s_or_b32 s%d, s%d, s%d" % (S_T0 + 3, S_B[0], S_B[2]))
    a("s_cmp_lg_u32 s%d, 0" % (S_T0 + 3))
    a("s_cbranch_scc1 %s" % skip)
    for r in range(2):
        a("v_add_f32 v%d, v%d, v%d" % (ZA + r, ZA + r, ZA + 2 + r))
        a("v_add_f32 v%d, v%d, v%d" % (ZA + 4 + r, ZA + 4 + r, ZA + 6 + r))
    for r in range(2):
        a("v_add_f32 v%d, v%d, v%d" % (ZA + r, ZA + r, ZA + 4 + r))
    a("s_mov_b64 exec, 0xffff")
    for dt in range(2):
        a("buffer_atomic_add_f32 v%d, v9, s[20:23], s%d offen offset:%d" % (ZA + dt, S_T0 + 2, dt * 64))
    a("s_mov_b64 exec, -1")
    a.label(skip)
    return top


def xreduce(a, v, t):
    a("v_mov_b32 v%d, v%d" % (t, v))
    a("s_nop 1")
    a("v_permlane16_swap_b32 v%d, v%d" % (v, t))
    a("s_nop 1")
    a("v_add_f32 v%d, v%d, v%d" % (v, v, t))
    a("v_mov_b32 v%d, v%d" % (t, v))
    a("s_nop 1")
    a("v_permlane32_swap_b32 v%d, v%d" % (v, t))
    a("s_nop 1")
    a("v_add_f32 v%d, v%d, v%d" % (v, v, t))


def pro_gemm2(a, c):
    V_L15, V_G = c['V_L15'], c['V_G']
    B = ACC0
    NH = 4
    NT = NH // 2
    LH = {4: 2, 8: 3}[NH]
    srd_from_ptr(a, 44, 4, S * D * 2, WS_PQ)
    srd_from_ptr(a, 52, 4, 135168, WS_KV)
    VK, VZ, VD, VT = B, B + 1, B + 2, B + 3
    VW = [B + 4, B + 5, B + 6, B + 7]
    VR = [B + 8, B + 9]
    a("v_lshrrev_b32 v%d, 3, v0" % VT)
    a("v_and_b32 v%d, 7, v0" % VD)
    a("v_xor_b32 v%d, v%d, v%d" % (VD, VD, VT))
    a("v_lshlrev_b32 v%d, 4, v%d" % (VD, VD))
    a("v_lshl_add_u32 v%d, v%d, 11, v%d" % (VD, VT, VD))
    a("s_lshl_b32 s58, s%d, 17" % S_TM)
    a("s_lshl_b32 s59, s%d, %d" % (S_WAVE, 6 + LH))
    a("s_add_u32 s58, s58, s59")
    a("s_lshl_b32 s57, s%d, %d" % (S_WAVE, 12 + LH))
    a("v_lshlrev_b32 v%d, 4, v0" % VK)
    a("v_lshlrev_b32 v%d, 5, v%d" % (VZ, V_G))
    a("s_lshl_b32 s56, s%d, %d" % (S_WAVE, 12 + LH))
    a("s_lshl_b32 s65, s%d, %d" % (S_WAVE, 7 + LH))
    a("s_add_u32 s65, s65, 131072")
    LD = B + 12
    for u in range(NT):
        for pc in range(8):
            a("s_add_u32 s59, s58, %d" % (pc * 16384 + u * 128))
            a("s_add_u32 m0, s57, %d" % (u * 8192 + pc * 1024))
            a("s_nop 0")
            a("buffer_load_dwordx4 v%d, s[44:47], s59 offen lds" % VD)
        for hh in (2 * u, 2 * u + 1):
            b = LD + hh * 24
            a("s_add_u32 s66, s56, %d" % (hh * 4096))
            for k in range(4):
                a("buffer_load_dwordx4 v[%d:%d], v%d, s[52:55], s66 offen offset:%d" % (b + 4 * k, b + 4 * k + 3, VK, k * 1024))
            a("buffer_load_dwordx4 v[%d:%d], v%d, s[52:55], s65 offen offset:%d" % (b + 16, b + 19, VZ, hh * 128))
            a("buffer_load_dwordx4 v[%d:%d], v%d, s[52:55], s65 offen offset:%d" % (b + 20, b + 23, VZ, hh * 128 + 16))
    a("v_and_b32 v%d, 7, v0" % VT)
    a("v_xor_b32 v%d, v%d, v%d" % (VR[0], VT, V_G))
    a("v_lshlrev_b32 v%d, 4, v%d" % (VR[0], VR[0]))
    a("v_lshl_add_u32 v%d, v%d, 7, v%d" % (VR[0], V_L15, VR[0]))
    a("v_add_u32 v%d, s57, v%d" % (VR[0], VR[0]))
    a("v_xor_b32 v%d, 64, v%d" % (VR[1], VR[0]))
    a("v_lshrrev_b32 v%d, 1, v%d" % (VW[0], V_G))
    a("v_xor_b32 v%d, v%d, v%d" % (VW[0], VW[0], VT))
    a("v_lshlrev_b32 v%d, 4, v%d" % (VW[0], VW[0]))
    a("v_lshl_add_u32 v%d, v%d, 7, v%d" % (VW[0], V_L15, VW[0]))
    a("v_and_b32 v%d, 1, v%d" % (VW[1], V_G))
    a("v_lshl_add_u32 v%d, v%d, 3, v%d" % (VW[0], VW[1], VW[0]))
    a("v_add_u32 v%d, s57, v%d" % (VW[0], VW[0]))
    for k in range(1, 4):
        a("v_xor_b32 v%d, %d, v%d" % (VW[k], 32 * k, VW[0]))
    for hh in range(NH):
        b = LD + hh * 24
        a("s_waitcnt vmcnt(%d)" % min(63, 20 * (NT - 1 - (hh >> 1)) + 6 * (1 - (hh & 1))))
        aq = (hh & 1) * 16
        for i in range(4):
            a("ds_read_b128 a[%d:%d], v%d offset:%d" % (aq + 4 * i, aq + 4 * i + 3, VR[hh & 1], (hh >> 1) * 8192 + i * 2048))
        for j in range(12):
            a("v_cvt_pk_bf16_f32 v%d, v%d, v%d" % (b + j, b + 2 * j, b + 2 * j + 1))
        a("s_waitcnt lgkmcnt(0)")
        RS = LD + NH * 24
        for i0 in (0, 2):
            for i in (i0, i0 + 1):
                for t in range(3):
                    d = RS + 12 * (i - i0) + 4 * t
                    a("v_mfma_f32_16x16x32_bf16 v[%d:%d], v[%d:%d], a[%d:%d], 0" % (d, d + 3, b + 4 * t, b + 4 * t + 3, aq + 4 * i, aq + 4 * i + 3))
            a("s_nop 7")
            for i in (i0, i0 + 1):
                d = RS + 12 * (i - i0)
                a("v_cvt_pk_bf16_f32 v%d, v%d, v%d" % (d + 8, d + 8, d + 8))
            for i in (i0, i0 + 1):
                d = RS + 12 * (i - i0)
                a("v_lshlrev_b32 v%d, 16, v%d" % (d + 8, d + 8))
            for i in (i0, i0 + 1):
                d = RS + 12 * (i - i0)
                a("v_add_f32 v%d, %s, v%d" % (d + 8, f32hex(1e-6), d + 8))
            for i in (i0, i0 + 1):
                d = RS + 12 * (i - i0)
                a("v_rcp_f32 v%d, v%d" % (d + 8, d + 8))
            a("s_nop 0")
            for i in (i0, i0 + 1):
                d = RS + 12 * (i - i0)
                for r in range(8):
                    a("v_mul_f32 v%d, v%d, v%d" % (d + r, d + r, d + 8))
                for r in range(4):
                    a("v_cvt_pk_bf16_f32 v%d, v%d, v%d" % (b + 12 + 4 * (i & 1) + r, d + 2 * r, d + 2 * r + 1))
                for et in range(2):
                    o = b + 12 + 4 * (i & 1) + 2 * et
                    a("ds_write_b64 v%d, v[%d:%d] offset:%d" % (VW[(hh & 1) * 2 + et], o, o + 1, (hh >> 1) * 8192 + i * 2048))
            if i0 == 0:
                a("s_waitcnt lgkmcnt(0)")
    return LD + NH * 24 + 24


def early_resid(c):
    V_L15, V_G, mt, nt, F = c['V_L15'], c['V_G'], c['mt'], c['nt'], c['free']
    T = 50
    g = ["s_lshl_b32 s%d, s%d, 6" % (T, S_TM),
         "s_lshl_b32 s%d, s%d, 5" % (T + 1, S_B[0]),
         "s_add_u32 s%d, s%d, s%d" % (T, T, T + 1),
         "s_lshl_b32 s%d, s%d, 11" % (T, T),
         "s_lshl_b32 s%d, s%d, 8" % (T + 1, S_TN),
         "s_add_u32 s%d, s%d, s%d" % (T, T, T + 1),
         "s_lshl_b32 s%d, s%d, 5" % (T + 1, S_B[1]),
         "s_add_u32 s%d, s%d, s%d" % (T, T, T + 1),
         "s_lshl_b32 s%d, s%d, 7" % (T + 1, S_B[2]),
         "s_add_u32 s%d, s%d, s%d" % (T, T, T + 1),
         "s_add_u32 s%d, s%d, %d" % (T + 1, T, 16 * 2048),
         "v_lshlrev_b32 v%d, 11, v%d" % (F, V_L15),
         "v_lshl_add_u32 v%d, v%d, 3, v%d" % (F, V_G, F)]
    for i in range(mt):
        for j in range(nt):
            d = F + 2 + (i * nt + j) * 2
            g.append("buffer_load_dwordx2 v[%d:%d], v%d, s[20:23], s%d offen offset:%d" % (d, d + 1, F, T + i, j * 64))
    return [g]


def epi_resid_stats(a, c):
    return epi_resid(a, c, True)


def epi_resid(a, c, stats=False):
    acc, V_L15, V_G, mt, nt = c['acc'], c['V_L15'], c['V_G'], c['mt'], c['nt']
    F = c['free']
    Rr = F + 2
    S_T0 = 50
    for i in range(mt):
        for j in range(nt):
            round4(a, acc(i, j), 4, 5)
    a("s_waitcnt vmcnt(0)")
    for i in range(mt):
        for j in range(nt):
            d = Rr + (i * nt + j) * 2
            cc = acc(i, j)
            a("v_lshlrev_b32 v4, 16, v%d" % d)
            a("v_and_b32 v5, 0xffff0000, v%d" % d)
            a("v_add_f32 v%d, v%d, v4" % (cc, cc))
            a("v_add_f32 v%d, v%d, v5" % (cc + 1, cc + 1))
            a("v_lshlrev_b32 v4, 16, v%d" % (d + 1))
            a("v_and_b32 v5, 0xffff0000, v%d" % (d + 1))
            a("v_add_f32 v%d, v%d, v4" % (cc + 2, cc + 2))
            a("v_add_f32 v%d, v%d, v5" % (cc + 3, cc + 3))
            a("v_cvt_pk_bf16_f32 v%d, v%d, v%d" % (d, cc, cc + 1))
            a("v_cvt_pk_bf16_f32 v%d, v%d, v%d" % (d + 1, cc + 2, cc + 3))
            a("buffer_store_dwordx2 v[%d:%d], v%d, s[16:19], s%d offen offset:%d" % (d, d + 1, F, S_T0 + i, j * 64))
    if stats:
        a("s_lshl_b32 s%d, s%d, 6" % (S_T0 + 2, S_TM))
        a("s_lshl_b32 s%d, s%d, 5" % (S_T0 + 3, S_B[0]))
        a("s_add_u32 s%d, s%d, s%d" % (S_T0 + 2, S_T0 + 2, S_T0 + 3))
        a("s_lshl_b32 s%d, s%d, 6" % (S_T0 + 2, S_T0 + 2))
        a("s_lshl_b32 s%d, s%d, 3" % (S_T0 + 3, S_TN))
        a("s_add_u32 s%d, s%d, s%d" % (S_T0 + 2, S_T0 + 2, S_T0 + 3))
        a("v_lshlrev_b32 v9, 6, v%d" % V_L15)
        for i in range(mt):
            regs = [acc(i, j) + r for j in range(nt) for r in range(4)]
            m, q = 10 + 2 * i, 11 + 2 * i
            a("v_add_f32 v%d, v%d, v%d" % (m, regs[0], regs[1]))
            for r in regs[2:]:
                a("v_add_f32 v%d, v%d, v%d" % (m, m, r))
            xreduce(a, m, 4)
            a("v_mul_f32 v%d, %s, v%d" % (m, f32hex(1.0 / (16 * nt)), m))
            a("v_sub_f32 v4, v%d, v%d" % (regs[0], m))
            a("v_mul_f32 v%d, v4, v4" % q)
            for r in regs[1:]:
                a("v_sub_f32 v4, v%d, v%d" % (r, m))
                a("v_fmac_f32 v%d, v4, v4" % q)
            xreduce(a, q, 4)
        G = 128 // (16 * nt)
        a("s_barrier")
        a("v_lshlrev_b32 v14, 4, v0")
        wave_affine(a, S_T0 + 3, [4096, 1024, 2048], S_T0 + 4)
        a("v_add_u32 v15, s%d, v14" % (S_T0 + 3))
        a("ds_write_b128 v15, v[10:13]")
        a("s_waitcnt lgkmcnt(0)")
        a("s_barrier")
        sk = a.newlabel("st0")
        a("s_or_b32 s%d, s%d, s%d" % (S_T0 + 4, S_B[1], S_B[2]))
        a("s_cmp_lg_u32 s%d, 0" % (S_T0 + 4))
        a("s_cbranch_scc1 %s" % sk)
        OB = F + 20
        for k in range(1, G):
            a("ds_read_b128 v[%d:%d], v15 offset:%d" % (OB + 4 * k, OB + 4 * k + 3, k * 1024))
        a("s_waitcnt lgkmcnt(0)")
        for i in range(mt):
            m, q = 10 + 2 * i, 11 + 2 * i
            ms = [m] + [OB + 4 * k + 2 * i for k in range(1, G)]
            qs = [q] + [OB + 4 * k + 2 * i + 1 for k in range(1, G)]
            a("v_add_f32 v4, v%d, v%d" % (ms[0], ms[1]))
            for k in range(2, G):
                a("v_add_f32 v4, v4, v%d" % ms[k])
            a("v_mul_f32 v4, %s, v4" % f32hex(1.0 / G))
            for k in range(1, G):
                a("v_add_f32 v%d, v%d, v%d" % (q, q, qs[k]))
            a("v_mov_b32 v5, 0")
            for k in range(G):
                a("v_sub_f32 v6, v%d, v4" % ms[k])
                a("v_fmac_f32 v5, v6, v6")
            a("v_fmac_f32 v%d, %s, v5" % (q, f32hex(16.0 * nt)))
            a("v_mov_b32 v%d, v4" % m)
        a("s_mov_b64 exec, 0xffff")
        for i in range(mt):
            a("buffer_store_dwordx2 v[%d:%d], v9, s[24:27], s%d offen offset:%d" % (10 + 2 * i, 11 + 2 * i, S_T0 + 2, i * 1024))
        a("s_mov_b64 exec, -1")
        a.label(sk)
    return F + 40


def early_gemm4(c):
    V_L15, V_G, mt, nt, F = c['V_L15'], c['V_G'], c['mt'], c['nt'], c['free']
    T = 50
    g = ["s_lshl_b32 s%d, s%d, 7" % (T, S_TM),
         "s_lshl_b32 s%d, s%d, 6" % (T + 1, S_B[0]),
         "s_add_u32 s%d, s%d, s%d" % (T, T, T + 1),
         "s_lshl_b32 s%d, s%d, 11" % (T, T),
         "s_lshl_b32 s%d, s%d, 8" % (T + 1, S_TN),
         "s_add_u32 s%d, s%d, s%d" % (T, T, T + 1),
         "s_lshl_b32 s%d, s%d, 7" % (T + 1, S_B[2]),
         "s_add_u32 s%d, s%d, s%d" % (T, T, T + 1),
         "s_lshl_b32 s%d, s%d, 5" % (T + 1, S_B[1]),
         "s_add_u32 s%d, s%d, s%d" % (T, T, T + 1)]
    for i in range(1, 4):
        g.append("s_add_u32 s%d, s%d, %d" % (T + i, T, i * 16 * 2048))
    g += ["v_lshlrev_b32 v%d, 11, v%d" % (F, V_L15),
          "v_lshl_add_u32 v%d, v%d, 3, v%d" % (F, V_G, F)]
    for i in range(mt):
        for j in range(nt):
            d = F + 2 + (i * nt + j) * 2
            g.append("buffer_load_dwordx2 v[%d:%d], v%d, s[20:23], s%d offen offset:%d" % (d, d + 1, F, T + i, j * 64))
    return [g]


def epi_gemm4(a, c):
    acc, V_L15, V_G, mt, nt = c['acc'], c['V_L15'], c['V_G'], c['mt'], c['nt']
    F = c['free']
    Rr = F + 2
    PB = F + 2 + mt * nt * 2
    T = 50
    a("s_lshl_b32 s54, s%d, 3" % S_TM)
    a("s_add_u32 s54, s54, s%d" % S_TN)
    a("s_and_b32 s55, s54, 1")
    a("s_lshl_b32 s55, s55, 4")
    a("s_lshr_b32 s56, s54, 1")
    a("s_lshl_b32 s56, s56, 2")
    a("s_lshl_b32 s57, 1, s55")
    a("s_lshl_b32 s58, 0x100, s55")
    a("s_lshl_b32 s59, s54, 16")
    a("s_lshl_b32 s%d, s%d, 13" % (S_T0, S_WAVE))
    a("s_add_u32 s59, s59, s%d" % S_T0)
    a("v_lshlrev_b32 v4, 4, v0")
    a("v_mov_b32 v5, 0")
    nw0 = a.newlabel("nw0")
    a("s_barrier")
    a("s_cmp_lg_u32 s%d, 0" % S_WAVE)
    a("s_cbranch_scc1 %s" % nw0)
    a("v_mov_b32 v6, s57")
    a("s_mov_b64 exec, 1")
    a("buffer_atomic_add v6, v5, s[24:27], s56 offen sc0 sc1")
    a("s_waitcnt vmcnt(0)")
    a("ds_write_b32 v5, v6")
    a("s_waitcnt lgkmcnt(0)")
    a("s_mov_b64 exec, -1")
    a.label(nw0)
    a("s_barrier")
    a("ds_read_b32 v6, v5")
    a("s_waitcnt lgkmcnt(0)")
    a("v_readfirstlane_b32 s%d, v6" % S_T0)
    a("s_lshr_b32 s%d, s%d, s55" % (S_T0, S_T0))
    a("s_and_b32 s%d, s%d, 0xff" % (S_T0, S_T0))
    second = a.newlabel("second")
    done = a.newlabel("done")
    a("s_cmp_lg_u32 s%d, 0" % S_T0)
    a("s_cbranch_scc1 %s" % second)
    for i in range(mt):
        for j in range(nt):
            cc = acc(i, j)
            k = i * nt + j
            if k == 4:
                a("s_add_u32 s59, s59, 4096")
            a("buffer_store_dwordx4 v[%d:%d], v4, s[92:95], s59 offen offset:%d sc1" % (cc, cc + 3, (k & 3) * 1024))
    a("s_waitcnt vmcnt(0)")
    a("s_barrier")
    a("s_cmp_lg_u32 s%d, 0" % S_WAVE)
    a("s_cbranch_scc1 %s" % done)
    a("v_mov_b32 v6, s58")
    a("s_mov_b64 exec, 1")
    a("buffer_atomic_add v6, v5, s[24:27], s56 offen sc1")
    a("s_mov_b64 exec, -1")
    a("s_branch %s" % done)
    a.label(second)
    nw1 = a.newlabel("nw1")
    a("s_cmp_lg_u32 s%d, 0" % S_WAVE)
    a("s_cbranch_scc1 %s" % nw1)
    poll = a.newlabel("poll")
    a.label(poll)
    a("buffer_load_dword v6, v5, s[24:27], s56 offen sc1")
    a("s_waitcnt vmcnt(0)")
    a("v_readfirstlane_b32 s%d, v6" % S_T0)
    a("s_and_b32 s%d, s%d, s58" % (S_T0, S_T0))
    a("s_cmp_lg_u32 s%d, 0" % S_T0)
    a("s_cbranch_scc1 %s" % nw1)
    a("s_sleep 2")
    a("s_branch %s" % poll)
    a.label(nw1)
    a("s_barrier")
    for k in range(mt * nt):
        if k == 4:
            a("s_add_u32 s59, s59, 4096")
        a("buffer_load_dwordx4 v[%d:%d], v4, s[92:95], s59 offen offset:%d sc1" % (PB + 4 * k, PB + 4 * k + 3, (k & 3) * 1024))
    for i in range(mt):
        for j in range(nt):
            k = i * nt + j
            cc = acc(i, j)
            d = Rr + k * 2
            a("s_waitcnt vmcnt(%d)" % (mt * nt - 1 - k + k))
            for r in range(4):
                a("v_add_f32 v%d, v%d, v%d" % (cc + r, cc + r, PB + 4 * k + r))
            round4(a, cc, 6, 7)
            a("v_lshlrev_b32 v6, 16, v%d" % d)
            a("v_and_b32 v7, 0xffff0000, v%d" % d)
            a("v_add_f32 v%d, v%d, v6" % (cc, cc))
            a("v_add_f32 v%d, v%d, v7" % (cc + 1, cc + 1))
            a("v_lshlrev_b32 v6, 16, v%d" % (d + 1))
            a("v_and_b32 v7, 0xffff0000, v%d" % (d + 1))
            a("v_add_f32 v%d, v%d, v6" % (cc + 2, cc + 2))
            a("v_add_f32 v%d, v%d, v7" % (cc + 3, cc + 3))
            a("v_cvt_pk_bf16_f32 v%d, v%d, v%d" % (d, cc, cc + 1))
            a("v_cvt_pk_bf16_f32 v%d, v%d, v%d" % (d + 1, cc + 2, cc + 3))
            a("buffer_store_dwordx2 v[%d:%d], v%d, s[16:19], s%d offen offset:%d" % (d, d + 1, F, T + i, j * 64))
    a.label(done)
    return PB + 4 * mt * nt


V_ST = 19
V_PAR = 20


def pre_gemm3(a, c):
    V_L15, V_G, t = c['V_L15'], c['V_G'], c['V_T']
    srd_from_ptr(a, 20, 4, S * 128, WS_ST)
    a("s_lshl_b32 s%d, s%d, 7" % (S_T0, S_TM))
    a("s_lshl_b32 s%d, s%d, 6" % (S_T0 + 1, S_B[0]))
    a("s_add_u32 s%d, s%d, s%d" % (S_T0, S_T0, S_T0 + 1))
    a("s_lshl_b32 s%d, s%d, 7" % (S_T0, S_T0))
    a("v_lshlrev_b32 v%d, 7, v%d" % (t, V_L15))
    a("v_lshl_add_u32 v%d, v%d, 5, v%d" % (t, V_G, t))
    a("s_add_u32 s%d, s%d, 4096" % (S_T0 + 1, S_T0))
    for i in range(4):
        so = S_T0 + (i >> 1)
        a("buffer_load_dwordx4 v[%d:%d], v%d, s[20:23], s%d offen offset:%d" % (ACC0 + 8 * i, ACC0 + 8 * i + 3, t, so, (i & 1) * 2048))
        a("buffer_load_dwordx4 v[%d:%d], v%d, s[20:23], s%d offen offset:%d" % (ACC0 + 8 * i + 4, ACC0 + 8 * i + 7, t, so, (i & 1) * 2048 + 16))
    return 8


def pro_gemm3(a, c):
    a("s_waitcnt vmcnt(%d)" % c['nissued'])
    T = ACC0 + 40
    for i in range(4):
        b = ACC0 + 8 * i
        m, q = T, T + 1
        a("v_add_f32 v%d, v%d, v%d" % (m, b, b + 2))
        a("v_add_f32 v%d, v%d, v%d" % (m, m, b + 4))
        a("v_add_f32 v%d, v%d, v%d" % (m, m, b + 6))
        xreduce(a, m, T + 2)
        a("v_mul_f32 v%d, %s, v%d" % (m, f32hex(1.0 / 16), m))
        a("v_add_f32 v%d, v%d, v%d" % (q, b + 1, b + 3))
        a("v_add_f32 v%d, v%d, v%d" % (q, q, b + 5))
        a("v_add_f32 v%d, v%d, v%d" % (q, q, b + 7))
        a("v_mov_b32 v%d, 0" % (T + 3))
        for k in range(4):
            a("v_sub_f32 v%d, v%d, v%d" % (T + 2, b + 2 * k, m))
            a("v_fmac_f32 v%d, v%d, v%d" % (T + 3, T + 2, T + 2))
        a("v_fmac_f32 v%d, %s, v%d" % (q, f32hex(64.0), T + 3))
        xreduce(a, q, T + 2)
        a("v_mul_f32 v%d, %s, v%d" % (q, f32hex(1.0 / D), q))
        a("v_cvt_pk_bf16_f32 v%d, v%d, v%d" % (T + 2, m, q))
        a("v_lshlrev_b32 v%d, 16, v%d" % (m, T + 2))
        a("v_and_b32 v%d, 0xffff0000, v%d" % (q, T + 2))
        a("v_add_f32 v%d, %s, v%d" % (q, f32hex(1e-5), q))
        a("v_cvt_pk_bf16_f32 v%d, v%d, v%d" % (T + 2, q, q))
        a("v_lshlrev_b32 v%d, 16, v%d" % (q, T + 2))
        a("v_sqrt_f32 v%d, v%d" % (q, q))
        a("s_nop 0")
        a("v_cvt_pk_bf16_f32 v%d, v%d, v%d" % (T + 2, q, q))
        a("v_lshlrev_b32 v%d, 16, v%d" % (q, T + 2))
        a("v_rcp_f32 v%d, v%d" % (V_PAR + 2 * i, q))
        a("s_nop 0")
        a("v_mul_f32 v%d, v%d, v%d" % (V_PAR + 2 * i + 1, m, V_PAR + 2 * i))
        a("v_sub_f32 v%d, 0, v%d" % (V_PAR + 2 * i + 1, V_PAR + 2 * i + 1))


def last_gemm3(c):
    R, V_G, VX, af = c['R'], c['V_G'], c['V_XO'], c['afree']
    ocol = R['ocol']
    g = ["s_add_u32 s88, s4, 0x%x" % WS_CS, "s_addc_u32 s89, s5, 0", "s_mov_b32 s90, %d" % (2 * DF * 4), "s_mov_b32 s91, 0x00020000",
         "s_mul_i32 s%d, s%d, 896" % (S_T0, S_TN),
         "s_lshl_b32 s%d, s%d, 6" % (S_T0 + 1, S_B[1]),
         "s_add_u32 s%d, s%d, s%d" % (S_T0, S_T0, S_T0 + 1),
         "s_and_b32 s%d, s%d, 1" % (S_T0 + 1, S_TN),
         "s_cmp_lg_u32 s%d, 0" % (S_T0 + 1),
         "s_cselect_b32 s%d, 0, 768" % (S_T0 + 2),
         "s_cselect_b32 s%d, 128, 0" % (S_T0 + 1),
         "s_add_u32 s%d, s%d, s%d" % (S_T0 + 2, S_T0 + 2, S_T0),
         "s_add_u32 s%d, s%d, s%d" % (S_T0 + 1, S_T0 + 1, S_T0),
         "s_add_u32 s%d, s%d, %d" % (S_T0 + 3, S_T0 + 1, DF * 4),
         "s_add_u32 s%d, s%d, %d" % (S_T0 + 4, S_T0 + 2, DF * 4),
         "v_lshlrev_b32 v%d, 4, v%d" % (VX[0], V_G)]
    np_ = len(ocol)
    g += ["s_add_u32 s20, s4, 0x%x" % WS_ST, "s_addc_u32 s21, s5, 0", "s_mov_b32 s22, %d" % (S * 64), "s_mov_b32 s23, 0x00020000",
          "s_lshl_b32 s%d, s%d, 7" % (S_T0 + 5, S_TM),
          "s_lshl_b32 s%d, s%d, 6" % (S_T0 + 6, S_B[0]),
          "s_add_u32 s%d, s%d, s%d" % (S_T0 + 5, S_T0 + 5, S_T0 + 6),
          "s_lshl_b32 s%d, s%d, 6" % (S_T0 + 5, S_T0 + 5),
          "v_lshl_add_u32 v%d, v%d, 6, v%d" % (VX[1], c['V_L15'], VX[0])]
    for i in range(4):
        d = af + 2 * np_ * 4 + 4 * i
        g.append("buffer_load_dwordx4 a[%d:%d], v%d, s[20:23], s%d offen offset:%d" % (d, d + 3, VX[1], S_T0 + 5, i * 1024))
    for m in range(2):
        for j, (typ, off) in enumerate(ocol):
            so = (S_T0 + 1 if typ == 'A' else S_T0 + 2) + 2 * m
            d = af + (m * np_ + j) * 4
            g.append("buffer_load_dwordx4 a[%d:%d], v%d, s[88:91], s%d offen offset:%d" % (d, d + 3, VX[0], so, off * 2))
    return [g]


def epi_gemm3(a, c):
    acc, V_L15, V_G, R = c['acc'], c['V_L15'], c['V_G'], c['R']
    npair = c['nt'] // 2
    ocol = R['ocol']
    ldo = DF * 2
    a("s_lshl_b32 s%d, s%d, 7" % (S_T0, S_TM))
    a("s_lshl_b32 s%d, s%d, 6" % (S_T0 + 1, S_B[0]))
    a("s_add_u32 s%d, s%d, s%d" % (S_T0, S_T0, S_T0 + 1))
    a("s_mul_i32 s%d, s%d, %d" % (S_T0, S_T0, ldo))
    a("s_mul_i32 s%d, s%d, 448" % (S_T0 + 1, S_TN))
    a("s_add_u32 s%d, s%d, s%d" % (S_T0, S_T0, S_T0 + 1))
    a("s_lshl_b32 s%d, s%d, 5" % (S_T0 + 1, S_B[1]))
    a("s_add_u32 s%d, s%d, s%d" % (S_T0, S_T0, S_T0 + 1))
    for i in range(1, 4):
        a("s_add_u32 s%d, s%d, %d" % (S_T0 + i, S_T0, i * 16 * ldo))
    a("s_mov_b32 s%d, %d" % (S_T0 + 4, ldo))
    VA = 3
    a("v_mul_lo_u32 v%d, v%d, s%d" % (VA, V_L15, S_T0 + 4))
    a("v_lshl_add_u32 v%d, v%d, 3, v%d" % (VA, V_G, VA))
    a("s_and_b32 s%d, s%d, 1" % (S_T0 + 5, S_TN))
    a("s_cmp_lg_u32 s%d, 0" % (S_T0 + 5))
    a("s_cselect_b32 s%d, 0, 384" % (S_T0 + 6))
    a("s_cselect_b32 s%d, 64, 0" % (S_T0 + 5))
    c1 = -2.0 * LOG2E * 0.7978845608028654
    c2 = c1 * 0.044715
    a("s_mov_b32 s%d, %s" % (S_T0 + 8, f32hex(c2)))
    a("s_mov_b32 s%d, %s" % (S_T0 + 9, f32hex(c2)))
    a("v_mov_b32 v4, %s" % f32hex(c1))
    a("v_mov_b32 v5, %s" % f32hex(c1))
    T0 = 6
    af = c['afree']
    a("s_waitcnt vmcnt(0)")
    for i0 in (0, 2):
        ii = (i0, i0 + 1)
        raw = {i: 6 + 4 * (i - i0) for i in ii}
        mm = {i: 14 + 3 * (i - i0) for i in ii}
        for i in ii:
            for r in range(4):
                a("v_accvgpr_read_b32 v%d, a%d" % (raw[i] + r, af + 2 * npair * 4 + 4 * i + r))

        def par(fn):
            for i in ii:
                fn(raw[i], mm[i], mm[i] + 1, mm[i] + 2, V_PAR + 2 * i)

        def xred2(sel):
            par(lambda b, m, q, t, p: a("v_mov_b32 v%d, v%d" % (t, sel(m, q))))
            a("s_nop 0")
            par(lambda b, m, q, t, p: a("v_permlane16_swap_b32 v%d, v%d" % (sel(m, q), t)))
            a("s_nop 0")
            par(lambda b, m, q, t, p: a("v_add_f32 v%d, v%d, v%d" % (sel(m, q), sel(m, q), t)))
            par(lambda b, m, q, t, p: a("v_mov_b32 v%d, v%d" % (t, sel(m, q))))
            a("s_nop 1")
            par(lambda b, m, q, t, p: a("v_permlane32_swap_b32 v%d, v%d" % (sel(m, q), t)))
            a("s_nop 0")
            par(lambda b, m, q, t, p: a("v_add_f32 v%d, v%d, v%d" % (sel(m, q), sel(m, q), t)))
        par(lambda b, m, q, t, p: a("v_add_f32 v%d, v%d, v%d" % (m, b, b + 2)))
        par(lambda b, m, q, t, p: a("v_add_f32 v%d, v%d, v%d" % (q, b + 1, b + 3)))
        a("s_nop 0")
        xred2(lambda m, q: m)
        par(lambda b, m, q, t, p: a("v_mul_f32 v%d, %s, v%d" % (m, f32hex(1.0 / 8), m)))
        par(lambda b, m, q, t, p: a("v_sub_f32 v%d, v%d, v%d" % (b, b, m)))
        par(lambda b, m, q, t, p: a("v_sub_f32 v%d, v%d, v%d" % (b + 2, b + 2, m)))
        par(lambda b, m, q, t, p: a("v_mul_f32 v%d, v%d, v%d" % (b, b, b)))
        par(lambda b, m, q, t, p: a("v_fmac_f32 v%d, v%d, v%d" % (b, b + 2, b + 2)))
        par(lambda b, m, q, t, p: a("v_fmac_f32 v%d, %s, v%d" % (q, f32hex(128.0), b)))
        a("s_nop 0")
        xred2(lambda m, q: q)
        par(lambda b, m, q, t, p: a("v_mul_f32 v%d, %s, v%d" % (q, f32hex(1.0 / D), q)))
        par(lambda b, m, q, t, p: a("v_cvt_pk_bf16_f32 v%d, v%d, v%d" % (t, m, q)))
        par(lambda b, m, q, t, p: a("v_lshlrev_b32 v%d, 16, v%d" % (m, t)))
        par(lambda b, m, q, t, p: a("v_and_b32 v%d, 0xffff0000, v%d" % (q, t)))
        par(lambda b, m, q, t, p: a("v_add_f32 v%d, %s, v%d" % (q, f32hex(1e-5), q)))
        par(lambda b, m, q, t, p: a("v_cvt_pk_bf16_f32 v%d, v%d, v%d" % (t, q, q)))
        par(lambda b, m, q, t, p: a("v_lshlrev_b32 v%d, 16, v%d" % (q, t)))
        par(lambda b, m, q, t, p: a("v_sqrt_f32 v%d, v%d" % (q, q)))
        a("s_nop 0")
        par(lambda b, m, q, t, p: a("v_cvt_pk_bf16_f32 v%d, v%d, v%d" % (t, q, q)))
        par(lambda b, m, q, t, p: a("v_lshlrev_b32 v%d, 16, v%d" % (q, t)))
        par(lambda b, m, q, t, p: a("v_rcp_f32 v%d, v%d" % (p, q)))
        a("s_nop 0")
        par(lambda b, m, q, t, p: a("v_mul_f32 v%d, v%d, v%d" % (p + 1, m, p)))
        par(lambda b, m, q, t, p: a("v_sub_f32 v%d, 0, v%d" % (p + 1, p + 1)))
    a("v_add_u32 v10, s%d, v%d" % (S_T0 + 6, VA))
    a("v_add_u32 v%d, s%d, v%d" % (VA, S_T0 + 5, VA))
    for j in range(npair):
        for m in range(2):
            for r in range(4):
                a("v_accvgpr_read_b32 v%d, a%d" % (12 + r, af + (m * npair + j) * 4 + r))
            for i in range(4):
                cc = acc(i, m * npair + j)
                pr = V_PAR + 2 * i
                for h in range(2):
                    a("v_pk_mul_f32 v[%d:%d], v[%d:%d], v[%d:%d] op_sel:[0,1] op_sel_hi:[1,1]" % (16, 17, 12 + 2 * h, 13 + 2 * h, pr, pr + 1))
                    a("v_pk_fma_f32 v[%d:%d], v[%d:%d], v[%d:%d], v[16:17] op_sel:[0,0,0] op_sel_hi:[1,0,1]" % (cc + 2 * h, cc + 2 * h + 1, cc + 2 * h, cc + 2 * h + 1, pr, pr + 1))
    for i in range(4):
        for j in range(npair):
            g = acc(i, j)
            u = acc(i, npair + j)
            for h in range(2):
                gg = g + 2 * h
                tt = T0 + 2 * h
                a("v_pk_mul_f32 v[%d:%d], v[%d:%d], v[%d:%d]" % (tt, tt + 1, gg, gg + 1, gg, gg + 1))
            for h in range(2):
                tt = T0 + 2 * h
                a("v_pk_fma_f32 v[%d:%d], v[%d:%d], s[%d:%d], v[4:5]" % (tt, tt + 1, tt, tt + 1, S_T0 + 8, S_T0 + 9))
            for h in range(2):
                gg = g + 2 * h
                tt = T0 + 2 * h
                a("v_pk_mul_f32 v[%d:%d], v[%d:%d], v[%d:%d]" % (tt, tt + 1, tt, tt + 1, gg, gg + 1))
            for r in range(4):
                a("v_exp_f32 v%d, v%d" % (T0 + r, T0 + r))
            for h in range(2):
                gg = g + 2 * h
                uu = u + 2 * h
                a("v_pk_mul_f32 v[%d:%d], v[%d:%d], v[%d:%d]" % (gg, gg + 1, gg, gg + 1, uu, uu + 1))
            for r in range(4):
                a("v_add_f32 v%d, 1.0, v%d" % (T0 + r, T0 + r))
            for r in range(4):
                a("v_rcp_f32 v%d, v%d" % (T0 + r, T0 + r))
            a("s_nop 0")
            for h in range(2):
                gg = g + 2 * h
                tt = T0 + 2 * h
                a("v_pk_mul_f32 v[%d:%d], v[%d:%d], v[%d:%d]" % (gg, gg + 1, gg, gg + 1, tt, tt + 1))
            a("v_cvt_pk_bf16_f32 v%d, v%d, v%d" % (g, g, g + 1))
            a("v_cvt_pk_bf16_f32 v%d, v%d, v%d" % (g + 1, g + 2, g + 3))
            a("buffer_store_dwordx2 v[%d:%d], v%d, s[16:19], s%d offen offset:%d" % (g, g + 1, VA if ocol[j][0] == 'A' else 10, S_T0 + i, ocol[j][1]) + (" sc0 sc1" if "wt1" in EXP else " nt" if "wt2" in EXP else " sc1" if "wt3" in EXP else ""))
    return 0


def build():
    a = Asm()
    descs = []
    launches = []

    if "pf" in EXP:
        descs.append(prefetch_kernel(a, "pf_kernel"))
        launches.append(("pf_kernel", 1024, 256, 0))
    descs.append(ln_kernel(a, "ln1_kernel", ('arg', 'x'), WS_XN, True))
    launches.append(("ln1_kernel", S // 4, 256, 0))

    ldw = 3 * D * 2

    def srds1(a):
        srd_from_ptr(a, 16, 4, S * D * 2, WS_PQ)
        srd_from_ptr(a, 20, 4, 135168, WS_KV)
    R1 = dict(nxp=2, xp_coef=[2, 4, 8], mt=2,
              waddr=[('A', 0), ('A', 32)], t_coefA=[0, 2, 0],
              ntiles=[(0, 0, True), (1, 0, True), (0, 1024, False), (1, 1024, False), (0, 2048, False), (1, 2048, False)],
              w_slot=[('A', i * 2048, i * 1024, 0) for i in range(3)], ko_par=0,
              wg_coefA=[8 * ldw, 16 * ldw, 32 * ldw], wl_coefA=[3 * 1024, 6 * 1024, 12 * 1024],
              row_coef=[32, 0, 64], wr_coef=[0, 0, 0])
    P1 = dict(name="gemm1_kernel", rtidx=0, lds=163840, NW=8, BM=128, kbx=2, kbw=2, NSX=4, NSW=4, WB=24576, kostrideA=3072,
              K=D, ldx=D * 2, ldw=ldw, x_ws=WS_XN,
              w=['wqkv'], helper=[('wg', D * DF * 2), ('wu', D * DF * 2)], epi_bars=2, mblk_bits=1, srds=srds1, tn_bytes=128, epilogue=epi_gemm1, roles=[R1])
    descs.append(gemm_kernel(a, P1))
    launches.append(("gemm1_kernel", 256, 576, 4 * 16384 + 4 * 24576))


    def srds2(a):
        srd_from_ptr(a, 16, 4, S * D * 2, WS_H)
        srd_from_ptr(a, 20, 62, S * D * 2)
        srd_from_ptr(a, 24, 4, S * 64, WS_ST)
    ldw = D * 2
    R2 = dict(nxp=2, xp_coef=[2, 4, 0], mt=2,
              waddr=[('A', 0), ('A', 64)], t_coefA=[0, 1, 0],
              ntiles=[(0, 0, True), (1, 0, True), (0, 1024, True), (1, 1024, True)],
              w_slot=[('A', (i >> 1) * 8 * ldw + (i & 1) * 128, i * 1024, i >> 1) for i in range(4)], ko_par=None,
              wg_coefA=[16 * ldw, 32 * ldw, 0], wl_coefA=[4 * 1024, 8 * 1024, 0],
              row_coef=[32, 0, 0], wr_coef=[0, 0, 0])
    NS2 = 6
    P2 = dict(name="gemm2_kernel", rtidx=1, NW=4, BM=64, kbx=2, kbw=2, NSX=NS2, NSW=NS2, WB=16384, kostrideA=2048,
              K=D, ldx=D * 2, ldw=ldw, x_ws=WS_O,
              w=['wo'], argptrs=[(62, 'x')], mblk_bits=2, srds=srds2, tn_bytes=256, epilogue=epi_resid_stats, early=early_resid, roles=[R2])
    R2f = dict(nxp=0, xp_coef=[0, 0, 0], mt=2,
               waddr=[('A', 0), ('A', 64)], t_coefA=[0, 1, 0],
               ntiles=[(0, 0, True), (1, 0, True)],
               w_slot=[('A', 0, 0, 0)], ko_par=0,
               wg_coefA=[8 * ldw, 16 * ldw, 128], wl_coefA=[2 * 1024, 4 * 1024, 1024],
               row_coef=[32, 0, 0], wr_coef=[0, 0, 1024])
    P2f = dict(P2)
    P2f.update(lds=163840, NW=8, x_static=True, NSX=16, kbw=1, NSW=4, WB=8192, pro=pro_gemm2, roles=[R2f])
    descs.append(gemm_kernel(a, P2f))
    launches.append(("gemm2_kernel", 256, 512, 163840))


    def srds3(a):
        srd_from_ptr(a, 16, 4, S * DF * 2, WS_HH)
    ldw = DF * 2
    KB = 1024
    R3a = dict(nxp=2, xp_coef=[2, 4, 8], mt=4,
               waddr=[('A', 0), ('A', 64)], t_coefA=[0, 1, 0],
               ntiles=[(a_, o_ + m_ * 14 * KB, True) for m_ in range(2) for (a_, o_) in ((0, 0), (1, 0), (0, KB), (1, KB))],
               w_slot=[('A', i * 128, i * KB, 0) for i in range(3)], ko_par=0,
               wg_coefA=[8 * ldw, 0, 0], wl_coefA=[3 * KB, 14 * KB, 0],
               row_coef=[64, 0, 0], wr_coef=[0, 0, 0],
               ocol=[('A', 0), ('A', 64), ('A', 128), ('A', 192)])
    R3b = dict(nxp=2, xp_coef=[2, 4, 8], mt=4,
               waddr=[('A', 0), ('A', 64), ('B', 0)], t_coefA=[0, 1, 0], t_coefB=[0, 1, 0],
               ntiles=[(a_, o_ + m_ * 14 * KB, True) for m_ in range(2) for (a_, o_) in ((0, 2 * KB), (1, 2 * KB), (2, 12 * KB))],
               w_slot=[('A', 16 * ldw + i * 128, 6 * KB + i * KB, 0) for i in range(3)] + [('B', 0, 12 * KB)], ko_par=0,
               wg_coefA=[8 * ldw, 0, 0], wl_coefA=[3 * KB, 14 * KB, 0],
               wg_coefB=[16 * ldw, 0, 0], wl_coefB=[KB, 14 * KB, 0],
               row_coef=[64, 0, 0], wr_coef=[0, 0, 0],
               ocol=[('A', 256), ('A', 320), ('B', 0)])
    P3 = dict(name="gemm3_kernel", rtidx=2, lds=163840, NW=8, BM=128, kbx=2, kbw=1, NSX=3, NSW=4, WB=28 * KB, kostrideA=3 * KB, k16strideB=KB,
              par_offA=(0, 64), par_offB=(384, 0),
              K=D, ldx=D * 2, ldw=ldw, x_ws=WS_H,
              w=['wg', 'wu'], pf=[('wd', D * DF * 2)], pf_step=16, last_extras=last_gemm3, wsel_bit=1, mblk_bits=1, srds=srds3, tn_bytes=448, epilogue=epi_gemm3,
              roles=[R3a, R3b])
    descs.append(gemm_kernel(a, P3))
    launches.append(("gemm3_kernel", 256, 512, 3 * 16384 + 4 * 28 * KB))

    def srds4(a):
        srd_from_ptr(a, 16, 62, S * D * 2)
        srd_from_ptr(a, 20, 4, S * D * 2, WS_H)
    P4 = dict(P2)
    P4.update(name="gemm4_kernel", rtidx=3, lds=NS2 * (8192 + 16384), K=DF, ldx=DF * 2, x_ws=WS_HH, w=['wd'], pf=[], helper=[], argptrs=[(62, 'out')],
              srds=srds4, epilogue=epi_resid)
    if True:
        ldw = D * 2
        R4 = dict(nxp=1, xp_coef=[1, 2, 4], mt=2,
                  waddr=[('A', 0), ('A', 64)], t_coefA=[0, 1, 0],
                  ntiles=[(0, 0, True), (1, 0, True)],
                  w_slot=[('A', i * 128, i * 1024, 0) for i in range(2)], ko_par=0,
                  wg_coefA=[8 * ldw, 16 * ldw, 32 * ldw], wl_coefA=[2 * 1024, 4 * 1024, 8 * 1024],
                  row_coef=[32, 0, 0], wr_coef=[0, 0, 1024])
        P4.update(NW=8, roles=[R4])
    descs.append(gemm_kernel(a, P4))
    launches.append(("gemm4_kernel", 256, 64 * P4['NW'], NS2 * (8192 + 16384)))

    hdr = ["; pre-LN linear attention block + GEGLU FFN, hand-written gfx950 kernels (generated by gen/gen.py)"]
    for (k, g, b, l) in launches:
        hdr.append("; @launch kernel=%s grid=(%d,1,1) block=(%d,1,1) lds=%d" % (k, g, b, l))
    hdr.append('.amdgcn_target "amdgcn-amd-amdhsa--gfx950"')
    hdr.append(".text")
    txt = "\n".join(hdr) + "\n" + "\n".join(a.lines) + "\n" + '.section .rodata,"a"\n' + "".join(descs)
    return txt


if __name__ == "__main__":
    out = sys.argv[1] if len(sys.argv) > 1 else OUT
    open(out, "w").write(build())
    print("wrote", out)
```

```python
import sys, os
EXP = os.environ.get("EXP", "").split(",")

OUT = "sequential_preLN__linear_attn_block__glu_gated_geglu__prompt.s"

S, D, DF = 2048, 1024, 3584
MB = 1 << 20
WS_XN = 0
WS_PQ = 4 * MB
WS_KV = 8 * MB
WS_Z = WS_KV + 131072
WS_CS = WS_KV + 0x30000
WS_ST = WS_KV + 0x40000
WS_O = 9 * MB
WS_H = 13 * MB
WS_HN = 17 * MB
WS_HH = 21 * MB
WS_SLAB = 40 * MB
KA = dict(x=0, wqkv=8, wo=16, bx=24, wg=32, wu=40, wd=48, out=56, dbg=64, ws=72)

LOG2E = 1.4426950408889634


def f32hex(x):
    import struct
    return "0x%08x" % struct.unpack("<I", struct.pack("<f", x))[0]


class Asm:
    def __init__(self):
        self.lines = []
        self.uid = 0

    def __call__(self, s):
        if "offset:" in s:
            off = int(s.split("offset:")[1].split()[0])
            assert off < (4096 if s.startswith("buffer_") else 65536), s
        self.lines.append("    " + s)

    def label(self, s):
        self.lines.append(s + ":")

    def raw(self, s):
        self.lines.append(s)

    def newlabel(self, p):
        self.uid += 1
        return "L_%s_%d" % (p, self.uid)


def kernel_header(a, name):
    a.raw(".globl %s" % name)
    a.raw(".p2align 8")
    a.raw(".type %s,@function" % name)
    a.label(name)


def kernel_desc(name, nvgpr, accum, nsgpr=102):
    return """.p2align 6
.amdhsa_kernel %s
  .amdhsa_next_free_vgpr %d
  .amdhsa_next_free_sgpr %d
  .amdhsa_accum_offset %d
  .amdhsa_group_segment_fixed_size 0
  .amdhsa_kernarg_size 80
  .amdhsa_user_sgpr_count 2
  .amdhsa_user_sgpr_kernarg_segment_ptr 1
  .amdhsa_system_sgpr_workgroup_id_x 1
.end_amdhsa_kernel
""" % (name, nvgpr, nsgpr, accum)


def srd_from_ptr(a, d, p, nbytes, off=0):
    if off:
        a("s_add_u32 s%d, s%d, 0x%x" % (d, p, off))
        a("s_addc_u32 s%d, s%d, 0" % (d + 1, p + 1))
    else:
        a("s_mov_b32 s%d, s%d" % (d, p))
        a("s_mov_b32 s%d, s%d" % (d + 1, p + 1))
    a("s_mov_b32 s%d, 0x%x" % (d + 2, nbytes))
    a("s_mov_b32 s%d, 0x00020000" % (d + 3))


def rt_begin(a):
    if "rt" in EXP:
        a("s_memrealtime s[64:65]")


def rt_end(a, idx):
    if "rt" not in EXP:
        return
    a("s_waitcnt vmcnt(0)")
    a("s_memrealtime s[70:71]")
    a("s_waitcnt lgkmcnt(0)")
    srd_from_ptr(a, 76, 4, 65536, 64 * MB + idx * 65536)
    a("v_mov_b32 v4, s64")
    a("v_mov_b32 v5, s64")
    a("v_mov_b32 v6, s70")
    a("v_mov_b32 v7, s70")
    a("s_lshl_b32 s80, s2, 4")
    a("v_mov_b32 v8, s80")
    a("s_mov_b64 exec, 1")
    a("buffer_store_dwordx4 v[4:7], v8, s[76:79], 0 offen")

def ln_kernel(a, name, src, dst, zero_kv):
    kernel_header(a, name)
    end = a.newlabel("end")
    cs = a.newlabel("cs")
    a("s_cmp_ge_u32 s2, %d" % (S // 4))
    a("s_cbranch_scc1 %s" % end)
    rt_begin(a)
    a("s_load_dwordx2 s[4:5], s[0:1], %d" % KA['ws'])
    if src[0] == 'arg':
        a("s_load_dwordx2 s[6:7], s[0:1], %d" % KA[src[1]])
    a("v_lshrrev_b32 v1, 6, v0")
    a("v_and_b32 v2, 63, v0")
    a("s_lshl_b32 s3, s2, 2")
    a("v_add_u32 v1, s3, v1")
    a("v_lshlrev_b32 v1, 11, v1")
    a("v_lshl_add_u32 v1, v2, 4, v1")
    a("s_waitcnt lgkmcnt(0)")
    if src[0] == 'arg':
        srd_from_ptr(a, 8, 6, S * D * 2)
    else:
        srd_from_ptr(a, 8, 4, S * D * 2, src[1])
    srd_from_ptr(a, 12, 4, S * D * 2, dst)
    a("buffer_load_dwordx4 v[4:7], v1, s[8:11], 0 offen")
    a("buffer_load_dwordx4 v[8:11], v1, s[8:11], 0 offen offset:1024")
    npf = 0
    if zero_kv:
        a("s_load_dwordx4 s[40:43], s[0:1], %d" % KA['wqkv'])
        a("v_lshlrev_b32 v3, 6, v0")
        a("s_lshl_b32 s3, s2, 14")
        a("v_add_u32 v3, s3, v3")
        a("s_waitcnt lgkmcnt(0)")
        srd_from_ptr(a, 52, 40, D * 3 * D * 2)
        srd_from_ptr(a, 56, 42, D * D * 2)
        a("buffer_load_dword v40, v3, s[52:55], 0 offen")
        a("v_subrev_u32 v3, 0x%x, v3" % (D * 3 * D * 2))
        a("buffer_load_dword v41, v3, s[56:59], 0 offen")
        npf = 2
        if "pfg" in EXP or "pfgu" in EXP:
            a("s_load_dwordx4 s[44:47], s[0:1], %d" % KA['wg'])
            a("v_lshlrev_b32 v3, 6, v0")
            a("v_add_u32 v3, s3, v3")
            a("s_waitcnt lgkmcnt(0)")
            srd_from_ptr(a, 60, 44, D * DF * 2)
            a("buffer_load_dword v42, v3, s[60:63], 0 offen")
            npf += 1
            if "pfgu" in EXP:
                srd_from_ptr(a, 64, 46, D * DF * 2)
                a("buffer_load_dword v43, v3, s[64:67], 0 offen")
                npf += 1
        if "codepf" in EXP:
            sk = a.newlabel("ncp")
            a("s_cmp_ge_u32 s2, 16")
            a("s_cbranch_scc1 %s" % sk)
            a("s_getpc_b64 s[60:61]")
            a("v_lshlrev_b32 v42, 6, v0")
            for j in range(4):
                a("global_load_dword v43, v42, s[60:61]")
                a("v_add_u32 v42, 0x3400, v42")
            a("s_waitcnt vmcnt(0)")
            a.label(sk)
    if zero_kv:
        skip = a.newlabel("nz")
        a("s_cmp_ge_u32 s2, 55")
        a("s_cbranch_scc1 %s" % skip)
        srd_from_ptr(a, 16, 4, 0x37000, WS_KV)
        a("s_lshl_b32 s3, s2, 12")
        a("v_lshlrev_b32 v3, 4, v0")
        a("v_add_u32 v3, s3, v3")
        a("v_mov_b32 v12, 0")
        a("v_mov_b32 v13, 0")
        a("v_mov_b32 v14, 0")
        a("v_mov_b32 v15, 0")
        a("buffer_store_dwordx4 v[12:15], v3, s[16:19], 0 offen")
        a.label(skip)
    a("s_waitcnt vmcnt(%d)" % (npf + (1 if zero_kv else 0)) if False else "s_waitcnt vmcnt(%d)" % npf)
    for i in range(8):
        a("v_lshlrev_b32 v%d, 16, v%d" % (16 + 2 * i, 4 + i))
        a("v_and_b32 v%d, 0xffff0000, v%d" % (17 + 2 * i, 4 + i))

    def reduce(v, t):
        a("s_nop 1")
        a("v_add_f32_dpp %s, %s, %s quad_perm:[1,0,3,2] row_mask:0xf bank_mask:0xf" % (t, v, v))
        a("s_nop 1")
        a("v_add_f32_dpp %s, %s, %s quad_perm:[2,3,0,1] row_mask:0xf bank_mask:0xf" % (v, t, t))
        a("s_nop 1")
        a("v_add_f32_dpp %s, %s, %s row_half_mirror row_mask:0xf bank_mask:0xf" % (t, v, v))
        a("s_nop 1")
        a("v_add_f32_dpp %s, %s, %s row_mirror row_mask:0xf bank_mask:0xf" % (v, t, t))
        a("s_nop 1")
        a("v_readlane_b32 s20, %s, 0" % v)
        a("v_readlane_b32 s21, %s, 16" % v)
        a("v_readlane_b32 s22, %s, 32" % v)
        a("v_readlane_b32 s23, %s, 48" % v)
        a("s_nop 1")
        a("v_mov_b32 %s, s20" % v)
        a("v_add_f32 %s, s21, %s" % (v, v))
        a("v_add_f32 %s, s22, %s" % (v, v))
        a("v_add_f32 %s, s23, %s" % (v, v))

    a("v_add_f32 v32, v16, v17")
    for i in range(2, 16):
        a("v_add_f32 v32, v32, v%d" % (16 + i))
    reduce("v32", "v33")
    a("v_mul_f32 v32, %s, v32" % f32hex(1.0 / D))
    a("v_sub_f32 v34, v16, v32")
    a("v_mul_f32 v35, v34, v34")
    for i in range(1, 16):
        a("v_sub_f32 v34, v%d, v32" % (16 + i))
        a("v_fmac_f32 v35, v34, v34")
    reduce("v35", "v33")
    a("v_mul_f32 v35, %s, v35" % f32hex(1.0 / D))
    a("v_cvt_pk_bf16_f32 v36, v32, v35")
    a("v_lshlrev_b32 v32, 16, v36")
    a("v_and_b32 v35, 0xffff0000, v36")
    a("v_add_f32 v35, %s, v35" % f32hex(1e-5))
    a("v_cvt_pk_bf16_f32 v36, v35, v35")
    a("v_lshlrev_b32 v35, 16, v36")
    a("v_sqrt_f32 v35, v35")
    a("s_nop 0")
    a("v_cvt_pk_bf16_f32 v36, v35, v35")
    a("v_lshlrev_b32 v35, 16, v36")
    a("v_rcp_f32 v35, v35")
    for i in range(16):
        a("v_sub_f32 v%d, v%d, v32" % (16 + i, 16 + i))
    for i in range(8):
        a("v_cvt_pk_bf16_f32 v%d, v%d, v%d" % (4 + i, 16 + 2 * i, 17 + 2 * i))
    for i in range(8):
        a("v_lshlrev_b32 v%d, 16, v%d" % (16 + 2 * i, 4 + i))
        a("v_and_b32 v%d, 0xffff0000, v%d" % (17 + 2 * i, 4 + i))
    for i in range(16):
        a("v_mul_f32 v%d, v%d, v35" % (16 + i, 16 + i))
    for i in range(8):
        a("v_cvt_pk_bf16_f32 v%d, v%d, v%d" % (4 + i, 16 + 2 * i, 17 + 2 * i))
    a("buffer_store_dwordx4 v[4:7], v1, s[12:15], 0 offen")
    a("buffer_store_dwordx4 v[8:11], v1, s[12:15], 0 offen offset:1024")
    rt_end(a, 4)
    a.label(end)
    a("s_endpgm")
    return kernel_desc(name, 44, 44)


def prefetch_kernel(a, name):
    kernel_header(a, name)
    end = a.newlabel("end")
    a("s_cmp_ge_u32 s2, 1024")
    a("s_cbranch_scc1 %s" % end)
    for i, k in enumerate(['wqkv', 'wo', 'wg', 'wu', 'wd']):
        a("s_load_dwordx2 s[%d:%d], s[0:1], %d" % (40 + 2 * i, 41 + 2 * i, KA[k]))
    a("v_lshlrev_b32 v1, 4, v0")
    a("s_lshl_b32 s3, s2, 12")
    a("v_add_u32 v1, s3, v1")
    a("s_waitcnt lgkmcnt(0)")
    sizes = [D * 3 * D * 2, D * D * 2, D * DF * 2, D * DF * 2, DF * D * 2]
    r = 4
    for i, sz in enumerate(sizes):
        srd_from_ptr(a, 8 + 4 * i, 40 + 2 * i, sz)
        for j in range((sz + (4 << 20) - 1) // (4 << 20)):
            a("s_mov_b32 s4, %d" % (j * (4 << 20)))
            a("buffer_load_dwordx4 v[%d:%d], v1, s[%d:%d], s4 offen" % (r, r + 3, 8 + 4 * i, 11 + 4 * i))
            r += 4
    a("s_waitcnt vmcnt(0)")
    a.label(end)
    a("s_endpgm")
    return kernel_desc(name, 64, 64)

def colsum_code(a, cs, end, NB0):
    a("s_endpgm")
    a.label(cs)
    a("s_cmp_ge_u32 s2, %d" % (NB0 + 448))
    a("s_cbranch_scc1 %s" % end)
    a("s_load_dwordx2 s[4:5], s[0:1], %d" % KA['ws'])
    a("s_load_dwordx4 s[40:43], s[0:1], %d" % KA['wg'])
    a("s_sub_u32 s3, s2, %d" % (NB0))
    a("s_and_b32 s47, s3, 3")
    a("s_lshr_b32 s3, s3, 2")
    a("s_cmp_ge_u32 s3, 56")
    a("s_cselect_b32 s44, 56, 0")
    a("s_sub_u32 s45, s3, s44")
    a("v_and_b32 v1, 7, v0")
    a("v_lshrrev_b32 v2, 3, v0")
    a("s_mov_b32 s46, %d" % (DF * 2))
    a("v_mul_lo_u32 v2, v2, s46")
    a("v_lshl_add_u32 v2, v1, 4, v2")
    a("s_lshl_b32 s46, s45, 7")
    a("v_add_u32 v2, s46, v2")
    a("s_mul_i32 s46, s47, %d" % (256 * DF * 2))
    a("v_add_u32 v2, s46, v2")
    a("s_waitcnt lgkmcnt(0)")
    a("s_cmp_ge_u32 s3, 56")
    a("s_cselect_b32 s40, s42, s40")
    a("s_cselect_b32 s41, s43, s41")
    srd_from_ptr(a, 8, 40, D * DF * 2)
    srd_from_ptr(a, 12, 4, 2 * DF * 4, WS_CS)
    for j in range(8):
        a("s_mov_b32 s46, %d" % (j * 32 * DF * 2))
        a("buffer_load_dwordx4 v[%d:%d], v2, s[8:11], s46 offen" % (16 + 4 * j, 19 + 4 * j))
    for j in range(8):
        a("s_waitcnt vmcnt(%d)" % (7 - j))
        for q in range(4):
            r = 16 + 4 * j + q
            if j == 0:
                a("v_lshlrev_b32 v%d, 16, v%d" % (4 + 2 * q, r))
                a("v_and_b32 v%d, 0xffff0000, v%d" % (5 + 2 * q, r))
            else:
                a("v_lshlrev_b32 v12, 16, v%d" % r)
                a("v_and_b32 v13, 0xffff0000, v%d" % r)
                a("v_add_f32 v%d, v%d, v12" % (4 + 2 * q, 4 + 2 * q))
                a("v_add_f32 v%d, v%d, v13" % (5 + 2 * q, 5 + 2 * q))
    a("v_lshlrev_b32 v3, 5, v0")
    a("ds_write_b128 v3, v[4:7]")
    a("ds_write_b128 v3, v[8:11] offset:16")
    a("s_waitcnt lgkmcnt(0)")
    a("s_barrier")
    a("v_and_b32 v1, 63, v0")
    a("v_lshrrev_b32 v2, 6, v0")
    a("v_lshlrev_b32 v3, 2, v1")
    a("v_lshl_add_u32 v3, v2, 11, v3")
    for j in range(8):
        a("ds_read_b32 v%d, v3 offset:%d" % (4 + j, j * 256))
    a("s_waitcnt lgkmcnt(0)")
    for j in range(1, 8):
        a("v_add_f32 v4, v4, v%d" % (4 + j))
    a("v_lshlrev_b32 v3, 2, v0")
    a("ds_write_b32 v3, v4 offset:8192")
    a("s_waitcnt lgkmcnt(0)")
    a("s_barrier")
    a("v_lshlrev_b32 v3, 2, v1")
    for j in range(4):
        a("ds_read_b32 v%d, v3 offset:%d" % (4 + j, 8192 + j * 256))
    a("s_waitcnt lgkmcnt(0)")
    for j in range(1, 4):
        a("v_add_f32 v4, v4, v%d" % (4 + j))
    a("s_lshl_b32 s46, s3, 8")
    a("v_cmp_gt_u32 vcc, 64, v0")
    a("s_and_saveexec_b64 s[48:49], vcc")
    a("s_cbranch_execz %s" % end)
    a("buffer_atomic_add_f32 v4, v3, s[12:15], s46 offen")


def apply_kernel(a, name):
    kernel_header(a, name)
    end = a.newlabel("end")
    cs = a.newlabel("cs")
    a("s_cmp_ge_u32 s2, 256")
    a("s_cbranch_scc1 %s" % cs)
    rt_begin(a)
    a("s_load_dwordx2 s[4:5], s[0:1], %d" % KA['ws'])
    a("v_lshrrev_b32 v1, 6, v0")
    a("v_and_b32 v0, 63, v0")
    a("s_nop 0")
    a("v_readfirstlane_b32 s28, v1")
    a("v_and_b32 v2, 15, v0")
    a("v_lshrrev_b32 v3, 4, v0")
    a("s_and_b32 s29, s2, 7")
    a("s_lshr_b32 s30, s2, 3")
    a("s_lshl_b32 s29, s29, 2")
    a("s_add_u32 s29, s29, s28")
    a("s_waitcnt lgkmcnt(0)")
    srd_from_ptr(a, 8, 4, S * D * 2, WS_PQ)
    srd_from_ptr(a, 12, 4, 135168, WS_KV)
    srd_from_ptr(a, 16, 4, S * D * 2, WS_O)
    a("v_lshlrev_b32 v4, 7, v2")
    a("v_lshl_add_u32 v4, v3, 5, v4")
    a("s_lshl_b32 s31, s29, 12")
    a("buffer_load_dwordx4 v[8:11], v4, s[12:15], s31 offen")
    a("buffer_load_dwordx4 v[12:15], v4, s[12:15], s31 offen offset:16")
    a("buffer_load_dwordx4 v[16:19], v4, s[12:15], s31 offen offset:2048")
    a("buffer_load_dwordx4 v[20:23], v4, s[12:15], s31 offen offset:2064")
    a("v_lshlrev_b32 v5, 5, v3")
    a("s_lshl_b32 s32, s29, 7")
    a("s_add_u32 s32, s32, 131072")
    a("buffer_load_dwordx4 v[24:27], v5, s[12:15], s32 offen")
    a("buffer_load_dwordx4 v[28:31], v5, s[12:15], s32 offen offset:16")
    a("v_lshlrev_b32 v6, 11, v2")
    a("v_lshl_add_u32 v6, v3, 4, v6")
    a("s_lshl_b32 s33, s30, 17")
    a("s_lshl_b32 s34, s29, 6")
    a("s_add_u32 s33, s33, s34")
    for i in range(4):
        a("s_add_u32 s34, s33, %d" % (i * 32768))
        a("buffer_load_dwordx4 v[%d:%d], v6, s[8:11], s34 offen" % (32 + 4 * i, 35 + 4 * i))
    a("s_waitcnt vmcnt(4)")
    for j in range(4):
        a("v_cvt_pk_bf16_f32 v%d, v%d, v%d" % (48 + j, 8 + 2 * j, 9 + 2 * j))
        a("v_cvt_pk_bf16_f32 v%d, v%d, v%d" % (52 + j, 16 + 2 * j, 17 + 2 * j))
        a("v_cvt_pk_bf16_f32 v%d, v%d, v%d" % (56 + j, 24 + 2 * j, 25 + 2 * j))
    a("s_waitcnt vmcnt(0)")
    a("s_nop 1")
    for i in range(4):
        a("v_mfma_f32_16x16x32_bf16 v[%d:%d], v[48:51], v[%d:%d], 0" % (64 + 12 * i, 67 + 12 * i, 32 + 4 * i, 35 + 4 * i))
        a("v_mfma_f32_16x16x32_bf16 v[%d:%d], v[52:55], v[%d:%d], 0" % (68 + 12 * i, 71 + 12 * i, 32 + 4 * i, 35 + 4 * i))
        a("v_mfma_f32_16x16x32_bf16 v[%d:%d], v[56:59], v[%d:%d], 0" % (72 + 12 * i, 75 + 12 * i, 32 + 4 * i, 35 + 4 * i))
    a("v_lshlrev_b32 v7, 11, v2")
    a("v_lshl_add_u32 v7, v3, 3, v7")
    a("s_nop 7")
    a("s_nop 1")
    for i in range(4):
        b = 64 + 12 * i
        a("v_cvt_pk_bf16_f32 v%d, v%d, v%d" % (b + 8, b + 8, b + 8))
        a("v_lshlrev_b32 v%d, 16, v%d" % (b + 8, b + 8))
        a("v_add_f32 v%d, %s, v%d" % (b + 8, f32hex(1e-6), b + 8))
        a("v_rcp_f32 v%d, v%d" % (b + 8, b + 8))
        a("s_nop 0")
        for r in range(8):
            a("v_mul_f32 v%d, v%d, v%d" % (b + r, b + r, b + 8))
        for r in range(4):
            a("v_cvt_pk_bf16_f32 v%d, v%d, v%d" % (b + r, b + 2 * r, b + 2 * r + 1))
        a("s_add_u32 s34, s33, %d" % (i * 32768))
        a("buffer_store_dwordx2 v[%d:%d], v7, s[16:19], s34 offen" % (b, b + 1))
        a("buffer_store_dwordx2 v[%d:%d], v7, s[16:19], s34 offen offset:32" % (b + 2, b + 3))
    rt_end(a, 5)
    colsum_code(a, cs, end, 256)
    a.label(end)
    a("s_endpgm")
    return kernel_desc(name, 144, 144)


S_WAVE, S_TM, S_TN, S_CNT = 28, 29, 30, 31
S_KX, S_KW, S_RD, S_WR, S_MX, S_MW = 32, 33, 34, 35, 36, 37
S_B = [38, 39, 40]
S_T0 = 42
ACC0 = 28


def wave_affine(a, sd, coefs, tmp, base=0):
    a("s_mov_b32 s%d, %d" % (sd, base))
    for b, c in enumerate(coefs):
        if c:
            a("s_mul_i32 s%d, s%d, %d" % (tmp, S_B[b], c))
            a("s_add_u32 s%d, s%d, s%d" % (sd, sd, tmp))


def helper_colsum(a, nbar):
    a("s_waitcnt lgkmcnt(0)")
    idle = a.newlabel("hidle")
    a("s_cmp_ge_u32 s2, 224")
    a("s_cbranch_scc1 %s" % idle)
    a("s_lshr_b32 s40, s2, 1")
    a("s_and_b32 s41, s2, 1")
    a("s_cmp_ge_u32 s40, 56")
    a("s_cselect_b32 s82, s84, s82")
    a("s_cselect_b32 s83, s85, s83")
    a("s_cselect_b32 s42, 56, 0")
    a("s_sub_u32 s42, s40, s42")
    srd_from_ptr(a, 8, 82, D * DF * 2)
    srd_from_ptr(a, 12, 4, 2 * DF * 4, WS_CS)
    a("v_and_b32 v3, 7, v0")
    a("v_lshrrev_b32 v4, 3, v0")
    a("s_mov_b32 s43, %d" % (DF * 2))
    a("v_mul_lo_u32 v4, v4, s43")
    a("v_lshl_add_u32 v4, v3, 4, v4")
    a("s_lshl_b32 s43, s42, 7")
    a("s_mul_i32 s44, s41, %d" % (512 * DF * 2))
    a("s_add_u32 s43, s43, s44")
    for r in range(8):
        a("v_mov_b32 v%d, 0" % (8 + r))
    NB = 8
    bar = 0

    def issue(b):
        for j in range(8):
            a("buffer_load_dwordx4 v[%d:%d], v4, s[8:11], s43 offen" % (16 + (b & 1) * 32 + 4 * j, 19 + (b & 1) * 32 + 4 * j))
            a("s_add_u32 s43, s43, %d" % (8 * DF * 2))

    def consume(b):
        for j in range(8):
            for q in range(4):
                r = 16 + (b & 1) * 32 + 4 * j + q
                a("v_lshlrev_b32 v5, 16, v%d" % r)
                a("v_and_b32 v6, 0xffff0000, v%d" % r)
                a("v_add_f32 v%d, v%d, v5" % (8 + 2 * q, 8 + 2 * q))
                a("v_add_f32 v%d, v%d, v6" % (9 + 2 * q, 9 + 2 * q))
    issue(0)
    for b in range(NB):
        a("s_barrier"); bar += 1
        if b + 1 < NB:
            issue(b + 1)
        a("s_barrier"); bar += 1
        a("s_waitcnt vmcnt(%d)" % (8 if b + 1 < NB else 0))
        consume(b)
    for r in range(8):
        v = 8 + r
        a("s_nop 1")
        a("v_add_f32_dpp v5, v%d, v%d row_ror:8 row_mask:0xf bank_mask:0xf" % (v, v))
        a("v_mov_b32 v%d, v5" % v)
        xreduce(a, v, 5)
    a("v_lshlrev_b32 v3, 5, v0")
    a("s_lshl_b32 s43, s40, 8")
    a("s_mov_b64 exec, 0xff")
    for r in range(8):
        a("buffer_atomic_add_f32 v%d, v3, s[12:15], s43 offen offset:%d" % (8 + r, 4 * r))
    a("s_mov_b64 exec, -1")
    assert bar <= nbar
    for _ in range(nbar - bar):
        a("s_barrier")
    a("s_endpgm")
    a.label(idle)
    for _ in range(nbar):
        a("s_barrier")


def gemm_kernel(a, P):
    name = P['name']
    kernel_header(a, name)
    end = a.newlabel("end")
    a("s_cmp_ge_u32 s2, 256")
    a("s_cbranch_scc1 %s" % end)
    if "stamp" in EXP:
        a("s_memtime s[64:65]")
        a("s_load_dwordx2 s[72:73], s[0:1], %d" % KA['dbg'])
    if "rt" in EXP:
        a("s_memrealtime s[64:65]")
    a("s_load_dwordx2 s[4:5], s[0:1], %d" % KA['ws'])
    a("s_load_dwordx2 s[6:7], s[0:1], %d" % KA[P['w'][0]])
    if len(P['w']) > 1:
        a("s_load_dwordx2 s[60:61], s[0:1], %d" % KA[P['w'][1]])
    for (sd, key) in P.get('argptrs', []):
        a("s_load_dwordx2 s[%d:%d], s[0:1], %d" % (sd, sd + 1, KA[key]))
    for i, (key, nb) in enumerate(P.get('pf', []) + P.get('helper', [])):
        a("s_load_dwordx2 s[%d:%d], s[0:1], %d" % (82 + 2 * i, 83 + 2 * i, KA[key]))
    a("v_lshrrev_b32 v1, 6, v0")
    a("v_and_b32 v0, 63, v0")
    a("s_nop 0")
    a("v_readfirstlane_b32 s%d, v1" % S_WAVE)
    a("v_and_b32 v1, 15, v0")
    a("v_lshrrev_b32 v2, 4, v0")
    mblk_bits = P['mblk_bits']
    if P.get('splitk'):
        a("s_and_b32 s%d, s2, 7" % S_T0)
        a("s_lshr_b32 s%d, s2, 3" % (S_T0 + 1))
        a("s_and_b32 s99, s%d, 1" % (S_T0 + 1))
        a("s_lshr_b32 s%d, s%d, 1" % (S_T0 + 1, S_T0 + 1))
        a("s_and_b32 s%d, s%d, 3" % (S_TM, S_T0))
        a("s_lshl_b32 s%d, s%d, 2" % (S_TM, S_TM))
        a("s_and_b32 s%d, s%d, 3" % (S_T0 + 2, S_T0 + 1))
        a("s_add_u32 s%d, s%d, s%d" % (S_TM, S_TM, S_T0 + 2))
        a("s_lshr_b32 s%d, s%d, 2" % (S_TN, S_T0))
        a("s_lshl_b32 s%d, s%d, 2" % (S_TN, S_TN))
        a("s_lshr_b32 s%d, s%d, 2" % (S_T0 + 2, S_T0 + 1))
        a("s_add_u32 s%d, s%d, s%d" % (S_TN, S_TN, S_T0 + 2))
    else:
        a("s_and_b32 s%d, s2, 7" % S_T0)
        a("s_lshr_b32 s%d, s2, 3" % (S_T0 + 1))
        a("s_and_b32 s%d, s%d, %d" % (S_TM, S_T0, (1 << mblk_bits) - 1))
        a("s_lshl_b32 s%d, s%d, 3" % (S_TM, S_TM))
        a("s_and_b32 s%d, s%d, 7" % (S_T0 + 2, S_T0 + 1))
        a("s_add_u32 s%d, s%d, s%d" % (S_TM, S_TM, S_T0 + 2))
        a("s_lshr_b32 s%d, s%d, %d" % (S_TN, S_T0, mblk_bits))
        a("s_lshl_b32 s%d, s%d, 2" % (S_TN, S_TN))
        a("s_lshr_b32 s%d, s%d, 3" % (S_T0 + 2, S_T0 + 1))
        a("s_add_u32 s%d, s%d, s%d" % (S_TN, S_TN, S_T0 + 2))
    a("s_and_b32 s%d, s%d, 1" % (S_B[0], S_WAVE))
    a("s_bfe_u32 s%d, s%d, 0x10001" % (S_B[1], S_WAVE))
    a("s_lshr_b32 s%d, s%d, 2" % (S_B[2], S_WAVE))
    roles = P['roles']
    maxv = 0
    hl = None
    if P.get('helper'):
        hl = a.newlabel("helper")
        a("s_cmp_ge_u32 s%d, %d" % (S_WAVE, P['NW']))
        a("s_cbranch_scc1 %s" % hl)
    if len(roles) == 2:
        r1 = a.newlabel("role1")
        a("s_cmp_ge_u32 s%d, 4" % S_WAVE)
        a("s_cbranch_scc1 %s" % r1)
        nv0 = gemm_body(a, P, roles[0], end)
        a("s_branch %s" % end)
        a.label(r1)
        nv1 = gemm_body(a, P, roles[1], end)
        arch = max(nv0[0], nv1[0]); acc_n = max(nv0[1], nv1[1])
    else:
        arch, acc_n = gemm_body(a, P, roles[0], end)
    if hl:
        a("s_branch %s" % end)
        a.label(hl)
        helper_colsum(a, P['_nbar'])
    a.label(end)
    a("s_endpgm")
    arch = (arch + 3) // 4 * 4
    lim = 512 if P['NW'] == 4 else 256
    if hl:
        lim = 256 if P['NW'] == 4 else 168
    assert arch + acc_n <= lim, (name, arch, acc_n)
    return kernel_desc(name, arch + acc_n, arch)


S_RDX, S_WRX, S_RDW, S_WRW = 34, 35, 41, 96


def gemm_body(a, P, R, end):
    BM, K = P['BM'], P['K']
    kbx, kbw, NSX, NSW = P['kbx'], P['kbw'], P['NSX'], P['NSW']
    ldx, ldw = P['ldx'], P['ldw']
    nsteps = K // 32
    TX, TW = nsteps // kbx, nsteps // kbw
    XB = BM * kbx * 64
    WB = P['WB']
    WBASE = NSX * XB
    assert WBASE + NSW * WB <= 163840
    nxp = R['nxp']
    wsl = R['w_slot']
    nwp = len(wsl)
    mt = R['mt']
    ntl = R['ntiles']
    nt = len(ntl)
    wad = R['waddr']
    nwa = len(wad)
    V_L15, V_G = 1, 2
    v = 3
    V_XO = list(range(v, v + nxp)); v += nxp
    V_WO = list(range(v, v + nwp)); v += nwp
    nxa = kbx
    V_XAB = list(range(v, v + nxa)); v += nxa
    V_WAB = list(range(v, v + nwa)); v += nwa
    V_XA = list(range(v, v + nxa)); v += nxa
    V_WA = list(range(v, v + nwa)); v += nwa
    V_T = v; v += 4
    V_PF = V_T + 1 if 'pro' not in P else V_T
    assert v <= ACC0 - 1, v
    nacc = mt * nt * 4

    def acc(i, j):
        return ACC0 + (j * mt + i) * 4
    FS = (mt + nt) * 4

    def xf(s, i):
        return s * FS + i * 4

    def wf(s, j):
        return s * FS + mt * 4 + j * 4

    t0, t1, t2, t3 = V_T, V_T + 1, V_T + 2, V_T + 3
    rpp = 8 if kbx == 2 else 16
    if kbx == 2:
        a("v_lshrrev_b32 v%d, 3, v0" % t0)
        a("v_and_b32 v%d, 7, v0" % t1)
        a("v_xor_b32 v%d, v%d, v%d" % (t1, t1, t0))
    else:
        a("v_lshrrev_b32 v%d, 2, v0" % t0)
        a("v_bfe_u32 v%d, v0, 4, 1" % t2)
        a("v_bfe_u32 v%d, v0, 5, 1" % t3)
        a("v_xor_b32 v%d, v%d, v%d" % (t2, t2, t3))
        a("v_lshl_or_b32 v%d, v%d, 1, v%d" % (t2, t2, t3))
        a("v_and_b32 v%d, 3, v0" % t1)
        a("v_xor_b32 v%d, v%d, v%d" % (t1, t1, t2))
    if nxp:
        wave_affine(a, S_T0, [c * rpp for c in R['xp_coef']], S_T0 + 1)
        a("s_mul_i32 s%d, s%d, %d" % (S_T0 + 1, S_TM, BM))
        a("s_add_u32 s%d, s%d, s%d" % (S_T0, S_T0, S_T0 + 1))
        a("v_add_u32 v%d, s%d, v%d" % (t0, S_T0, t0))
        a("s_mov_b32 s%d, %d" % (S_T0 + 1, ldx))
        a("v_mul_lo_u32 v%d, v%d, s%d" % (t0, t0, S_T0 + 1))
        a("v_lshl_add_u32 v%d, v%d, 4, v%d" % (V_XO[0], t1, t0))
        for i in range(1, nxp):
            a("v_add_u32 v%d, 0x%x, v%d" % (V_XO[i], i * rpp * ldx, V_XO[0]))
        wave_affine(a, S_MX, [c * 1024 for c in R['xp_coef']], S_T0)
    a("s_mul_i32 s%d, s%d, %d" % (S_T0 + 2, S_TN, P['tn_bytes']))
    a("s_mov_b32 s%d, %d" % (S_T0 + 3, ldw))
    for typ in ('A', 'B'):
        sl = [i for i in range(nwp) if wsl[i][0] == typ]
        if not sl:
            continue
        if typ == 'A':
            a("v_lshrrev_b32 v%d, 3, v0" % t0)
            a("v_bfe_u32 v%d, v0, 4, 1" % t2)
            a("v_lshlrev_b32 v%d, 1, v%d" % (t2, t2))
            a("v_and_b32 v%d, 7, v0" % t1)
            a("v_xor_b32 v%d, v%d, v%d" % (t1, t1, t2))
        else:
            a("v_lshrrev_b32 v%d, 2, v0" % t0)
            a("v_lshrrev_b32 v%d, 5, v0" % t2)
            a("v_lshlrev_b32 v%d, 1, v%d" % (t2, t2))
            a("v_and_b32 v%d, 3, v0" % t1)
            a("v_xor_b32 v%d, v%d, v%d" % (t1, t1, t2))
        a("v_mul_lo_u32 v%d, v%d, s%d" % (t0, t0, S_T0 + 3))
        wave_affine(a, S_T0, R['wg_coef' + typ], S_T0 + 1)
        a("s_add_u32 s%d, s%d, s%d" % (S_T0, S_T0, S_T0 + 2))
        if 'par_off' + typ in P:
            c0, c1 = P['par_off' + typ]
            a("s_and_b32 s%d, s%d, 1" % (S_T0 + 1, S_TN))
            a("s_cmp_lg_u32 s%d, 0" % (S_T0 + 1))
            a("s_cselect_b32 s%d, %d, %d" % (S_T0 + 1, c1, c0))
            a("s_add_u32 s%d, s%d, s%d" % (S_T0, S_T0, S_T0 + 1))
        a("v_add_u32 v%d, s%d, v%d" % (t0, S_T0, t0))
        if typ == 'A':
            kp = R['ko_par']
            for i in sl:
                par_c, par_bit = wsl[i][3], kp
                if par_bit is None:
                    a("v_xor_b32 v%d, %d, v%d" % (t2, par_c * 4, t1))
                else:
                    a("s_lshl_b32 s%d, s%d, 2" % (S_T0 + 1, S_B[par_bit]))
                    a("s_xor_b32 s%d, s%d, %d" % (S_T0 + 1, S_T0 + 1, par_c * 4))
                    a("v_xor_b32 v%d, s%d, v%d" % (t2, S_T0 + 1, t1))
                a("v_lshl_add_u32 v%d, v%d, 4, v%d" % (t2, t2, t0))
                a("v_add_u32 v%d, 0x%x, v%d" % (V_WO[i], wsl[i][1], t2))
        else:
            a("v_lshl_add_u32 v%d, v%d, 4, v%d" % (t0, t1, t0))
            for i in sl:
                a("v_add_u32 v%d, 0x%x, v%d" % (V_WO[i], wsl[i][1], t0))
    S_MWA, S_MWB = S_MW, 97
    wave_affine(a, S_MWA, R['wl_coefA'], S_T0, base=WBASE)
    if any(w[0] == 'B' for w in wsl):
        wave_affine(a, S_MWB, R['wl_coefB'], S_T0, base=WBASE)
    a("s_waitcnt lgkmcnt(0)")
    srd_from_ptr(a, 8, 4, S * ldx, P['x_ws'])
    if len(P['w']) > 1:
        a("s_cmp_lg_u32 s%d, 0" % S_B[P['wsel_bit']])
        a("s_cselect_b32 s6, s60, s6")
        a("s_cselect_b32 s7, s61, s7")
    srd_from_ptr(a, 12, 6, K * ldw * P.get('splitk', 1))

    def dma_x():
        g = []
        for i in range(nxp):
            g.append(["s_add_u32 s%d, s%d, s%d" % (S_T0, S_WRX, S_MX),
                      "s_add_u32 m0, s%d, %d" % (S_T0, i * 1024),
                      "s_nop 0",
                      "buffer_load_dwordx4 v%d, s[8:11], s%d offen lds" % (V_XO[i], S_KX)])
        g.append(["s_add_u32 s%d, s%d, %d" % (S_KX, S_KX, kbx * 64)])
        return g

    def dma_w():
        g = []
        for i in range(nwp):
            g.append(["s_add_u32 s%d, s%d, s%d" % (S_T0, S_WRW, S_MWA if wsl[i][0] == 'A' else S_MWB),
                      "s_add_u32 m0, s%d, %d" % (S_T0, wsl[i][2]),
                      "s_nop 0",
                      "buffer_load_dwordx4 v%d, s[12:15], s%d offen lds" % (V_WO[i], S_KW)])
        g.append(["s_add_u32 s%d, s%d, %d" % (S_KW, S_KW, kbw * 32 * ldw)])
        return g

    issued = []

    def sim_issue(op, tile):
        for _ in range(nxp if op == 'X' else nwp):
            issued.append((op, tile))

    xst = P.get('x_static', False)
    protop = 0

    def sim_wait(s):
        need = {('X', s // kbx), ('W', s // kbw)}
        last = max(i for i, e in enumerate(issued) if e in need)
        return len(issued) - 1 - last

    npre = 0
    if 'pre' in P and 'nostat' not in EXP:
        npre = P['pre'](a, dict(R=R, V_L15=V_L15, V_G=V_G, V_T=V_T))
        issued.extend([('P', 0)] * npre)
    if P.get('splitk'):
        a("s_mul_i32 s%d, s99, %d" % (S_KX, K * 2))
        a("s_mul_i32 s%d, s99, %d" % (S_KW, K * ldw))
    else:
        a("s_mov_b32 s%d, 0" % S_KX)
        a("s_mov_b32 s%d, 0" % S_KW)
    a("s_mov_b32 s%d, 0" % S_WRX)
    a("s_mov_b32 s%d, 0" % S_WRW)
    order = sorted([(t * kbx, 0, 'X', t) for t in range(0 if xst else NSX - 1)] + [(t * kbw, 1, 'W', t) for t in range(NSW - 1)])
    for (_, _, op, t) in order:
        for g in (dma_x() if op == 'X' else dma_w()):
            for x in g:
                a(x)
        sim_issue(op, t)
        if op == 'X':
            a("s_add_u32 s%d, s%d, %d" % (S_WRX, S_WRX, XB))
        else:
            a("s_add_u32 s%d, s%d, %d" % (S_WRW, S_WRW, WB))
    P['srds'](a)
    if kbx == 2:
        a("v_and_b32 v%d, 7, v0" % t0)
        a("v_xor_b32 v%d, v%d, v%d" % (t0, t0, V_G))
        a("v_lshlrev_b32 v%d, 4, v%d" % (t0, t0))
        a("v_lshl_add_u32 v%d, v%d, 7, v%d" % (t0, V_L15, t0))
        wave_affine(a, S_T0, [c * 128 for c in R['row_coef']], S_T0 + 1)
        a("v_add_u32 v%d, s%d, v%d" % (V_XAB[0], S_T0, t0))
        a("v_xor_b32 v%d, 64, v%d" % (V_XAB[1], V_XAB[0]))
        xmstride = 2048
    else:
        a("v_bfe_u32 v%d, v0, 2, 1" % t2)
        a("v_bfe_u32 v%d, v0, 3, 1" % t3)
        a("v_xor_b32 v%d, v%d, v%d" % (t2, t2, t3))
        a("v_lshl_or_b32 v%d, v%d, 1, v%d" % (t2, t2, t3))
        a("v_xor_b32 v%d, v%d, v%d" % (t0, t2, V_G))
        a("v_lshlrev_b32 v%d, 4, v%d" % (t0, t0))
        a("v_lshl_add_u32 v%d, v%d, 6, v%d" % (t0, V_L15, t0))
        wave_affine(a, S_T0, [c * 64 for c in R['row_coef']], S_T0 + 1)
        a("v_add_u32 v%d, s%d, v%d" % (V_XAB[0], S_T0, t0))
        xmstride = 1024
    done = {}
    for wi, (typ, xc) in enumerate(wad):
        if typ in done:
            a("v_xor_b32 v%d, %d, v%d" % (V_WAB[wi], xc, V_WAB[done[typ]]))
            continue
        done[typ] = wi
        assert xc == 0
        if typ == 'A':
            a("s_mov_b32 s%d, %d" % (S_T0, P['kostrideA']))
            a("v_mul_lo_u32 v%d, v%d, s%d" % (t0, V_G, S_T0))
            a("v_lshrrev_b32 v%d, 2, v%d" % (t2, V_L15))
            a("v_lshl_add_u32 v%d, v%d, 7, v%d" % (t0, t2, t0))
            a("v_bfe_u32 v%d, v0, 3, 2" % t1)
            wave_affine(a, S_T0, R['t_coefA'], S_T0 + 1)
            a("v_xor_b32 v%d, s%d, v%d" % (t1, S_T0, t1))
            a("v_lshl_add_u32 v%d, v%d, 5, v%d" % (t0, t1, t0))
        else:
            a("v_lshrrev_b32 v%d, 1, v%d" % (t0, V_G))
            a("s_mov_b32 s%d, %d" % (S_T0, P['k16strideB']))
            a("v_mul_lo_u32 v%d, v%d, s%d" % (t0, t0, S_T0))
            a("v_and_b32 v%d, 1, v%d" % (t1, V_G))
            a("v_lshrrev_b32 v%d, 2, v%d" % (t2, V_L15))
            a("v_lshl_add_u32 v%d, v%d, 3, v%d" % (t2, t1, t2))
            a("v_lshl_add_u32 v%d, v%d, 6, v%d" % (t0, t2, t0))
            wave_affine(a, S_T0, R['t_coefB'], S_T0 + 1)
            a("v_xor_b32 v%d, s%d, v%d" % (t1, S_T0, t1))
            a("v_lshl_add_u32 v%d, v%d, 5, v%d" % (t0, t1, t0))
        a("v_bfe_u32 v%d, v0, 1, 1" % t2)
        a("v_lshl_add_u32 v%d, v%d, 4, v%d" % (t0, t2, t0))
        a("v_and_b32 v%d, 1, v0" % t2)
        a("v_lshl_add_u32 v%d, v%d, 3, v%d" % (t0, t2, t0))
        wave_affine(a, S_T0, R['wr_coef'], S_T0 + 1, base=WBASE)
        a("v_add_u32 v%d, s%d, v%d" % (V_WAB[wi], S_T0, t0))

    def reads(fs, s):
        r = []
        ksx = s % kbx
        ksw = s % kbw
        for i in range(mt):
            r.append(["ds_read_b128 a[%d:%d], v%d offset:%d" % (xf(fs, i), xf(fs, i) + 3, V_XA[ksx], i * xmstride)])
        for j, (asel, loff, sw) in enumerate(ntl):
            typ = wad[asel][0]
            for hf in range(2):
                if typ == 'A':
                    off = loff + hf * 512 + ksw * 4 * P['kostrideA']
                else:
                    off = loff + hf * 256 + ksw * 2 * P['k16strideB']
                r.append(["ds_read_b64_tr_b16 a[%d:%d], v%d offset:%d" % (wf(fs, j) + 2 * hf, wf(fs, j) + 2 * hf + 1, V_WA[asel], off)])
        return r

    def mfmas(fs, first):
        m = []
        for j, (asel, loff, sw) in enumerate(ntl):
            for i in range(mt):
                A, B = (wf(fs, j), xf(fs, i)) if sw else (xf(fs, i), wf(fs, j))
                c = acc(i, j)
                cin = "0" if first else "v[%d:%d]" % (c, c + 3)
                m.append("v_mfma_f32_16x16x32_bf16 v[%d:%d], a[%d:%d], a[%d:%d], %s" % (c, c + 3, A, A + 3, B, B + 3, cin))
        return m

    def upd_x():
        return ["v_add_u32 v%d, s%d, v%d" % (V_XA[x], S_RDX, V_XAB[x]) for x in range(nxa)]

    def upd_w():
        return ["v_add_u32 v%d, s%d, v%d" % (V_WA[x], S_RDW, V_WAB[x]) for x in range(nwa)]

    if 'pro' in P and 'nostat' not in EXP:
        protop = P['pro'](a, dict(R=R, V_L15=V_L15, V_G=V_G, V_T=V_T, nissued=len(issued) - npre)) or 0
        issued.append(('P', 0))
    if "prio" in EXP and P['NW'] == 8:
        sk = a.newlabel("np")
        a("s_cmp_lt_u32 s%d, 4" % S_WAVE)
        a("s_cbranch_scc1 %s" % sk)
        a("s_setprio 1")
        a.label(sk)
    a("s_mov_b32 s%d, 0" % S_RDX)
    a("s_mov_b32 s%d, 0" % S_RDW)
    for x in upd_x() + upd_w():
        a(x)
    a("s_waitcnt vmcnt(%d) lgkmcnt(0)" % sim_wait(0))
    a("s_barrier")
    for r in reads(0, 0):
        for x in r:
            a(x)
    for g in ([] if xst else dma_x()) + dma_w():
        for x in g:
            a(x)
    if not xst:
        sim_issue('X', NSX - 1)
    sim_issue('W', NSW - 1)
    a("s_waitcnt lgkmcnt(0)")

    def gen_step(n):
        o = []
        fs = n & 1
        last = (n + 1 == nsteps)
        s1 = n + 1
        evx = (not last) and (s1 % kbx == 0)
        evw = (not last) and (s1 % kbw == 0)
        extras = []
        dmas = []
        if evx or evw:
            if evx:
                o += ["s_mov_b32 s%d, s%d" % (S_WRX, S_RDX),
                      "s_add_u32 s%d, s%d, %d" % (S_RDX, S_RDX, XB),
                      "s_cmp_eq_u32 s%d, %d" % (S_RDX, NSX * XB),
                      "s_cselect_b32 s%d, 0, s%d" % (S_RDX, S_RDX)] + upd_x()
            if evw:
                o += ["s_mov_b32 s%d, s%d" % (S_WRW, S_RDW),
                      "s_add_u32 s%d, s%d, %d" % (S_RDW, S_RDW, WB),
                      "s_cmp_eq_u32 s%d, %d" % (S_RDW, NSW * WB),
                      "s_cselect_b32 s%d, 0, s%d" % (S_RDW, S_RDW)] + upd_w()
            o.append("s_waitcnt vmcnt(%d)" % sim_wait(s1))
            o.append("s_barrier")
            if evw and s1 // kbw - 1 + NSW < TW:
                dmas += dma_w()
                sim_issue('W', s1 // kbw - 1 + NSW)
            if evx and s1 // kbx - 1 + NSX < TX and not xst:
                dmas += dma_x()
                sim_issue('X', s1 // kbx - 1 + NSX)
        if not last and "noread" not in EXP:
            extras += reads(fs ^ 1, s1)
        if "nodma" not in EXP:
            if P.get('dma_first') or "dmafirst" in EXP:
                extras = dmas + extras
            else:
                extras += dmas
        if n == P.get('pf_step', nsteps - 4) and P.get('pf'):
            g = []
            for i, (key, nb) in enumerate(P['pf']):
                per = (nb + 256 * P['NW'] * 4096 - 1) // (256 * P['NW'] * 4096)
                g += ["s_mov_b32 s88, s%d" % (82 + 2 * i), "s_mov_b32 s89, s%d" % (83 + 2 * i),
                      "s_mov_b32 s90, 0x%x" % nb, "s_mov_b32 s91, 0x00020000",
                      "s_mul_i32 s98, s2, %d" % P['NW'],
                      "s_add_u32 s98, s98, s%d" % S_WAVE,
                      "s_mul_i32 s98, s98, %d" % (per * 4096),
                      "v_lshlrev_b32 v%d, 6, v0" % V_T]
                for j in range(per):
                    g += ["buffer_load_dword v%d, v%d, s[88:91], s%d offen" % (V_PF, V_T, 98),
                          "s_add_u32 s98, s98, 4096"]
                    issued.append(('P', 0))
            extras.append(g)
        if n == nsteps - 3 and 'early' in P:
            ee = P['early'](dict(R=R, V_L15=V_L15, V_G=V_G, mt=mt, nt=nt, free=ACC0 + nacc))
            extras += ee
            issued.extend([('P', 0)] * sum(1 for g in ee for x in g if x.startswith("buffer_")))
        if last and 'last_extras' in P:
            extras += P['last_extras'](dict(R=R, V_L15=V_L15, V_G=V_G, V_XO=V_XO, afree=xf(fs ^ 1, 0)))
        mm = mfmas(fs, n == 0)
        if "nomfma" in EXP:
            mm = ["s_nop 0"] * 2
        nm = len(mm)
        ne = len(extras)
        span = max(1, int(nm * float(os.environ.get('SPAN', P.get('span', 0.85)))))
        pos = [min(nm - 1, (k * span) // max(ne, 1)) for k in range(ne)]
        k = 0
        for idx, m in enumerate(mm):
            o.append(m)
            while k < ne and pos[k] == idx:
                o += extras[k]
                k += 1
        if not last:
            o.append("s_waitcnt lgkmcnt(0)")
        return o

    if "stamp" in EXP:
        a("s_memtime s[66:67]")
        a("s_memrealtime s[92:93]")
        a("s_waitcnt lgkmcnt(0)")
    if "rt" in EXP:
        a("s_memrealtime s[66:67]")
        a("s_waitcnt lgkmcnt(0)")
    codes = [gen_step(n) for n in range(nsteps)]
    P['_nbar'] = 1 + sum(c.count("s_barrier") for c in codes) + P.get('epi_bars', 0)
    bodies = [codes[n] + codes[n + 1] for n in range(0, nsteps, 2)]
    i = 0
    while i < len(bodies):
        j = i
        while j + 1 < len(bodies) and bodies[j + 1] == bodies[i]:
            j += 1
        cnt = j - i + 1
        if cnt >= 3:
            a("s_mov_b32 s%d, %d" % (S_CNT, cnt))
            loop = a.newlabel("loop")
            a.label(loop)
            for x in bodies[i]:
                a(x)
            a("s_sub_u32 s%d, s%d, 1" % (S_CNT, S_CNT))
            a("s_cmp_lg_u32 s%d, 0" % S_CNT)
            a("s_cbranch_scc1 %s" % loop)
        else:
            for b in bodies[i:j + 1]:
                for x in b:
                    a(x)
        i = j + 1
    if "stamp" in EXP:
        a("s_memtime s[68:69]")
        a("s_memrealtime s[94:95]")
        a("s_waitcnt lgkmcnt(0)")
    if "rt" in EXP:
        a("s_memrealtime s[68:69]")
        a("s_waitcnt lgkmcnt(0)")
    a("s_nop 7")
    ctx = dict(acc=acc, mt=mt, nt=nt, V_L15=V_L15, V_G=V_G, BM=BM, nacc=nacc, R=R, free=ACC0 + nacc, afree=xf(nsteps & 1, 0))
    top = P['epilogue'](a, ctx)
    if "rt" in EXP:
        a("s_waitcnt vmcnt(0)")
        a("s_memrealtime s[70:71]")
        a("s_waitcnt lgkmcnt(0)")
        a("s_cmp_lg_u32 s%d, 0" % S_WAVE)
        a("s_cbranch_scc1 %s" % end)
        srd_from_ptr(a, 76, 4, 65536, 64 * MB + P['rtidx'] * 65536)
        a("v_mov_b32 v4, s64")
        a("v_mov_b32 v5, s66")
        a("v_mov_b32 v6, s68")
        a("v_mov_b32 v7, s70")
        a("s_lshl_b32 s80, s2, 4")
        a("v_mov_b32 v8, s80")
        a("s_mov_b64 exec, 1")
        a("buffer_store_dwordx4 v[4:7], v8, s[76:79], 0 offen")
    if "stamp" in EXP:
        a("s_waitcnt vmcnt(0)")
        a("s_memtime s[70:71]")
        a("s_waitcnt lgkmcnt(0)")
        a("s_cmp_lg_u32 s%d, 0" % S_WAVE)
        a("s_cbranch_scc1 %s" % end)
        a("s_cmp_ge_u32 s2, 16")
        a("s_cbranch_scc1 %s" % end)
        a("s_sub_u32 s66, s66, s64")
        a("s_sub_u32 s68, s68, s64")
        a("s_sub_u32 s70, s70, s64")
        a("s_mov_b32 s76, s72")
        a("s_mov_b32 s77, s73")
        a("s_mov_b32 s78, 256")
        a("s_mov_b32 s79, 0x20000")
        a("s_sub_u32 s64, s94, s92")
        a("v_mov_b32 v4, s64")
        a("v_mov_b32 v5, s66")
        a("v_mov_b32 v6, s68")
        a("v_mov_b32 v7, s70")
        a("s_lshl_b32 s80, s2, 4")
        a("v_mov_b32 v8, s80")
        a("s_mov_b64 exec, 1")
        a("buffer_store_dwordx4 v[4:7], v8, s[76:79], 0 offen")
    return max(top or 0, ACC0 + nacc, protop), 2 * FS


def phi_ops(a, regs, tmp):
    for r, t in zip(regs, tmp):
        a("v_min_f32 v%d, 0, v%d" % (t, r))
    for r, t in zip(regs, tmp):
        a("v_mul_f32 v%d, %s, v%d" % (t, f32hex(LOG2E), t))
    for r, t in zip(regs, tmp):
        a("v_exp_f32 v%d, v%d" % (t, t))
    for r, t in zip(regs, tmp):
        a("v_max_f32 v%d, 0, v%d" % (r, r))
    for r, t in zip(regs, tmp):
        a("v_add_f32 v%d, v%d, v%d" % (r, r, t))
    for r, t in zip(regs, tmp):
        a("v_add_f32 v%d, %s, v%d" % (r, f32hex(1e-6), r))


def round4(a, c, t0, t1):
    a("v_cvt_pk_bf16_f32 v%d, v%d, v%d" % (t0, c, c + 1))
    a("v_cvt_pk_bf16_f32 v%d, v%d, v%d" % (t1, c + 2, c + 3))
    a("v_lshlrev_b32 v%d, 16, v%d" % (c, t0))
    a("v_and_b32 v%d, 0xffff0000, v%d" % (c + 1, t0))
    a("v_lshlrev_b32 v%d, 16, v%d" % (c + 2, t1))
    a("v_and_b32 v%d, 0xffff0000, v%d" % (c + 3, t1))


def epi_gemm1(a, c):
    acc, V_L15, V_G, R = c['acc'], c['V_L15'], c['V_G'], c['R']
    F = c['free']
    TMP = 4
    wave_affine(a, S_T0, [r * 2048 for r in R['row_coef']], S_T0 + 1)
    a("s_lshl_b32 s%d, s%d, 18" % (S_T0 + 1, S_TM))
    a("s_add_u32 s%d, s%d, s%d" % (S_T0, S_T0, S_T0 + 1))
    a("s_lshl_b32 s%d, s%d, 7" % (S_T0 + 1, S_TN))
    a("s_add_u32 s%d, s%d, s%d" % (S_T0, S_T0, S_T0 + 1))
    a("s_lshl_b32 s%d, s%d, 6" % (S_T0 + 1, S_B[1]))
    a("s_add_u32 s%d, s%d, s%d" % (S_T0, S_T0, S_T0 + 1))
    a("s_add_u32 s%d, s%d, %d" % (S_T0 + 1, S_T0, 16 * 2048))
    a("v_lshlrev_b32 v8, 11, v%d" % V_L15)
    a("v_lshl_add_u32 v8, v%d, 3, v8" % V_G)
    PK, VF, ONE = F, F + 8, F + 16
    KVA, ZA = acc(0, 2), acc(0, 2) + 16
    top = F + 20
    for i in range(2):
        for dt in range(2):
            cc = acc(i, 2 + dt)
            round4(a, cc, TMP, TMP + 1)
            phi_ops(a, [cc + r for r in range(4)], [TMP + r for r in range(4)])
            d = PK + dt * 4 + i * 2
            a("v_cvt_pk_bf16_f32 v%d, v%d, v%d" % (d, cc, cc + 1))
            a("v_cvt_pk_bf16_f32 v%d, v%d, v%d" % (d + 1, cc + 2, cc + 3))
        for et in range(2):
            cc = acc(i, 4 + et)
            d = VF + et * 4 + i * 2
            a("v_cvt_pk_bf16_f32 v%d, v%d, v%d" % (d, cc, cc + 1))
            a("v_cvt_pk_bf16_f32 v%d, v%d, v%d" % (d + 1, cc + 2, cc + 3))
    for r in range(4):
        a("v_mov_b32 v%d, 0x3f803f80" % (ONE + r))
    a("s_nop 1")
    for et in range(2):
        for dt in range(2):
            d = KVA + (et * 2 + dt) * 4
            A = VF + et * 4
            B = PK + dt * 4
            a("v_mfma_f32_16x16x32_bf16 v[%d:%d], v[%d:%d], v[%d:%d], 0" % (d, d + 3, A, A + 3, B, B + 3))
    for dt in range(2):
        d = ZA + dt * 4
        B = PK + dt * 4
        a("v_mfma_f32_16x16x32_bf16 v[%d:%d], v[%d:%d], v[%d:%d], 0" % (d, d + 3, ONE, ONE + 3, B, B + 3))
    for i in range(2):
        for j in range(2):
            cc = acc(i, j)
            round4(a, cc, TMP, TMP + 1)
            phi_ops(a, [cc + r for r in range(4)], [TMP + r for r in range(4)])
            a("v_cvt_pk_bf16_f32 v%d, v%d, v%d" % (cc, cc, cc + 1))
            a("v_cvt_pk_bf16_f32 v%d, v%d, v%d" % (cc + 1, cc + 2, cc + 3))
            a("buffer_store_dwordx2 v[%d:%d], v8, s[16:19], s%d offen offset:%d" % (cc, cc + 1, S_T0 + i, j * 32))
    a("s_barrier")
    a("s_mul_i32 s%d, s%d, 5120" % (S_T0 + 2, S_WAVE))
    a("v_lshlrev_b32 v9, 4, v0")
    a("v_add_u32 v9, s%d, v9" % (S_T0 + 2))
    for t in range(4):
        a("ds_write_b128 v9, v[%d:%d] offset:%d" % (KVA + 4 * t, KVA + 4 * t + 3, t * 1024))
    a("v_mov_b32 v%d, v%d" % (ZA + 1, ZA + 4))
    a("ds_write_b64 v9, v[%d:%d] offset:4096" % (ZA, ZA + 1))
    a("s_waitcnt lgkmcnt(0)")
    a("s_barrier")
    wave_affine(a, S_T0 + 2, [64, 2 * 5120, 2048], S_T0 + 3)
    a("v_lshlrev_b32 v9, 8, v%d" % V_G)
    a("v_and_b32 v10, 3, v0")
    a("v_lshl_add_u32 v9, v10, 4, v9")
    a("v_bfe_u32 v10, v0, 2, 2")
    a("v_lshl_add_u32 v9, v10, 2, v9")
    a("v_add_u32 v9, s%d, v9" % (S_T0 + 2))
    for k in range(4):
        for q, wv in enumerate((0, 1, 4, 5)):
            a("ds_read_b32 v%d, v9 offset:%d" % (KVA + 4 * q + k, wv * 5120 + (k >> 1) * 1024 + (k & 1) * 128))
    wave_affine(a, S_T0 + 3, [0, 2 * 5120, 0], S_T0 + 4, base=4096)
    a("v_lshlrev_b32 v10, 4, v0")
    a("v_add_u32 v10, s%d, v10" % (S_T0 + 3))
    for k, wv in enumerate((0, 1, 4, 5)):
        a("ds_read_b64 v[%d:%d], v10 offset:%d" % (ZA + 2 * k, ZA + 2 * k + 1, wv * 5120))
    a("s_lshl_b32 s%d, s%d, 1" % (S_T0, S_TN))
    a("s_add_u32 s%d, s%d, s%d" % (S_T0, S_T0, S_B[1]))
    a("s_lshl_b32 s%d, s%d, 12" % (S_T0 + 1, S_T0))
    wave_affine(a, S_T0 + 4, [1024, 0, 2048], S_T0 + 5)
    a("s_add_u32 s%d, s%d, s%d" % (S_T0 + 1, S_T0 + 1, S_T0 + 4))
    a("s_lshl_b32 s%d, s%d, 7" % (S_T0 + 2, S_T0))
    a("s_add_u32 s%d, s%d, 131072" % (S_T0 + 2, S_T0 + 2))
    a("v_lshlrev_b32 v8, 2, v0")
    a("v_lshlrev_b32 v9, 2, v%d" % V_L15)
    a("s_waitcnt lgkmcnt(0)")
    for r in range(4):
        a("v_add_f32 v%d, v%d, v%d" % (KVA + r, KVA + r, KVA + 4 + r))
        a("v_add_f32 v%d, v%d, v%d" % (KVA + 8 + r, KVA + 8 + r, KVA + 12 + r))
    for r in range(4):
        a("v_add_f32 v%d, v%d, v%d" % (KVA + r, KVA + r, KVA + 8 + r))
    for r in range(4):
        a("buffer_atomic_add_f32 v%d, v8, s[20:23], s%d offen offset:%d" % (KVA + r, S_T0 + 1, r * 256))
    skip = a.newlabel("noz")
    a("s_or_b32 s%d, s%d, s%d" % (S_T0 + 3, S_B[0], S_B[2]))
    a("s_cmp_lg_u32 s%d, 0" % (S_T0 + 3))
    a("s_cbranch_scc1 %s" % skip)
    for r in range(2):
        a("v_add_f32 v%d, v%d, v%d" % (ZA + r, ZA + r, ZA + 2 + r))
        a("v_add_f32 v%d, v%d, v%d" % (ZA + 4 + r, ZA + 4 + r, ZA + 6 + r))
    for r in range(2):
        a("v_add_f32 v%d, v%d, v%d" % (ZA + r, ZA + r, ZA + 4 + r))
    a("s_mov_b64 exec, 0xffff")
    for dt in range(2):
        a("buffer_atomic_add_f32 v%d, v9, s[20:23], s%d offen offset:%d" % (ZA + dt, S_T0 + 2, dt * 64))
    a("s_mov_b64 exec, -1")
    a.label(skip)
    return top


def xreduce(a, v, t):
    a("v_mov_b32 v%d, v%d" % (t, v))
    a("s_nop 1")
    a("v_permlane16_swap_b32 v%d, v%d" % (v, t))
    a("s_nop 1")
    a("v_add_f32 v%d, v%d, v%d" % (v, v, t))
    a("v_mov_b32 v%d, v%d" % (t, v))
    a("s_nop 1")
    a("v_permlane32_swap_b32 v%d, v%d" % (v, t))
    a("s_nop 1")
    a("v_add_f32 v%d, v%d, v%d" % (v, v, t))


def pro_gemm2(a, c):
    V_L15, V_G = c['V_L15'], c['V_G']
    B = ACC0
    NH = 4
    NT = NH // 2
    LH = {4: 2, 8: 3}[NH]
    srd_from_ptr(a, 44, 4, S * D * 2, WS_PQ)
    srd_from_ptr(a, 52, 4, 135168, WS_KV)
    VK, VZ, VD, VT = B, B + 1, B + 2, B + 3
    VW = [B + 4, B + 5, B + 6, B + 7]
    VR = [B + 8, B + 9]
    a("v_lshrrev_b32 v%d, 3, v0" % VT)
    a("v_and_b32 v%d, 7, v0" % VD)
    a("v_xor_b32 v%d, v%d, v%d" % (VD, VD, VT))
    a("v_lshlrev_b32 v%d, 4, v%d" % (VD, VD))
    a("v_lshl_add_u32 v%d, v%d, 11, v%d" % (VD, VT, VD))
    a("s_lshl_b32 s58, s%d, 17" % S_TM)
    a("s_lshl_b32 s59, s%d, %d" % (S_WAVE, 6 + LH))
    a("s_add_u32 s58, s58, s59")
    a("s_lshl_b32 s57, s%d, %d" % (S_WAVE, 12 + LH))
    a("v_lshlrev_b32 v%d, 4, v0" % VK)
    a("v_lshlrev_b32 v%d, 5, v%d" % (VZ, V_G))
    a("s_lshl_b32 s56, s%d, %d" % (S_WAVE, 12 + LH))
    a("s_lshl_b32 s65, s%d, %d" % (S_WAVE, 7 + LH))
    a("s_add_u32 s65, s65, 131072")
    LD = B + 12
    for u in range(NT):
        for pc in range(8):
            a("s_add_u32 s59, s58, %d" % (pc * 16384 + u * 128))
            a("s_add_u32 m0, s57, %d" % (u * 8192 + pc * 1024))
            a("s_nop 0")
            a("buffer_load_dwordx4 v%d, s[44:47], s59 offen lds" % VD)
        for hh in (2 * u, 2 * u + 1):
            b = LD + hh * 24
            a("s_add_u32 s66, s56, %d" % (hh * 4096))
            for k in range(4):
                a("buffer_load_dwordx4 v[%d:%d], v%d, s[52:55], s66 offen offset:%d" % (b + 4 * k, b + 4 * k + 3, VK, k * 1024))
            a("buffer_load_dwordx4 v[%d:%d], v%d, s[52:55], s65 offen offset:%d" % (b + 16, b + 19, VZ, hh * 128))
            a("buffer_load_dwordx4 v[%d:%d], v%d, s[52:55], s65 offen offset:%d" % (b + 20, b + 23, VZ, hh * 128 + 16))
    a("v_and_b32 v%d, 7, v0" % VT)
    a("v_xor_b32 v%d, v%d, v%d" % (VR[0], VT, V_G))
    a("v_lshlrev_b32 v%d, 4, v%d" % (VR[0], VR[0]))
    a("v_lshl_add_u32 v%d, v%d, 7, v%d" % (VR[0], V_L15, VR[0]))
    a("v_add_u32 v%d, s57, v%d" % (VR[0], VR[0]))
    a("v_xor_b32 v%d, 64, v%d" % (VR[1], VR[0]))
    a("v_lshrrev_b32 v%d, 1, v%d" % (VW[0], V_G))
    a("v_xor_b32 v%d, v%d, v%d" % (VW[0], VW[0], VT))
    a("v_lshlrev_b32 v%d, 4, v%d" % (VW[0], VW[0]))
    a("v_lshl_add_u32 v%d, v%d, 7, v%d" % (VW[0], V_L15, VW[0]))
    a("v_and_b32 v%d, 1, v%d" % (VW[1], V_G))
    a("v_lshl_add_u32 v%d, v%d, 3, v%d" % (VW[0], VW[1], VW[0]))
    a("v_add_u32 v%d, s57, v%d" % (VW[0], VW[0]))
    for k in range(1, 4):
        a("v_xor_b32 v%d, %d, v%d" % (VW[k], 32 * k, VW[0]))
    for hh in range(NH):
        b = LD + hh * 24
        a("s_waitcnt vmcnt(%d)" % min(63, 20 * (NT - 1 - (hh >> 1)) + 6 * (1 - (hh & 1))))
        aq = (hh & 1) * 16
        for i in range(4):
            a("ds_read_b128 a[%d:%d], v%d offset:%d" % (aq + 4 * i, aq + 4 * i + 3, VR[hh & 1], (hh >> 1) * 8192 + i * 2048))
        for j in range(12):
            a("v_cvt_pk_bf16_f32 v%d, v%d, v%d" % (b + j, b + 2 * j, b + 2 * j + 1))
        a("s_waitcnt lgkmcnt(0)")
        RS = LD + NH * 24
        for i0 in (0, 2):
            for i in (i0, i0 + 1):
                for t in range(3):
                    d = RS + 12 * (i - i0) + 4 * t
                    a("v_mfma_f32_16x16x32_bf16 v[%d:%d], v[%d:%d], a[%d:%d], 0" % (d, d + 3, b + 4 * t, b + 4 * t + 3, aq + 4 * i, aq + 4 * i + 3))
            a("s_nop 7")
            for i in (i0, i0 + 1):
                d = RS + 12 * (i - i0)
                a("v_cvt_pk_bf16_f32 v%d, v%d, v%d" % (d + 8, d + 8, d + 8))
            for i in (i0, i0 + 1):
                d = RS + 12 * (i - i0)
                a("v_lshlrev_b32 v%d, 16, v%d" % (d + 8, d + 8))
            for i in (i0, i0 + 1):
                d = RS + 12 * (i - i0)
                a("v_add_f32 v%d, %s, v%d" % (d + 8, f32hex(1e-6), d + 8))
            for i in (i0, i0 + 1):
                d = RS + 12 * (i - i0)
                a("v_rcp_f32 v%d, v%d" % (d + 8, d + 8))
            a("s_nop 0")
            for i in (i0, i0 + 1):
                d = RS + 12 * (i - i0)
                for r in range(8):
                    a("v_mul_f32 v%d, v%d, v%d" % (d + r, d + r, d + 8))
                for r in range(4):
                    a("v_cvt_pk_bf16_f32 v%d, v%d, v%d" % (b + 12 + 4 * (i & 1) + r, d + 2 * r, d + 2 * r + 1))
                for et in range(2):
                    o = b + 12 + 4 * (i & 1) + 2 * et
                    a("ds_write_b64 v%d, v[%d:%d] offset:%d" % (VW[(hh & 1) * 2 + et], o, o + 1, (hh >> 1) * 8192 + i * 2048))
            if i0 == 0:
                a("s_waitcnt lgkmcnt(0)")
    return LD + NH * 24 + 24


def early_resid(c):
    V_L15, V_G, mt, nt, F = c['V_L15'], c['V_G'], c['mt'], c['nt'], c['free']
    T = 50
    g = ["s_lshl_b32 s%d, s%d, 6" % (T, S_TM),
         "s_lshl_b32 s%d, s%d, 5" % (T + 1, S_B[0]),
         "s_add_u32 s%d, s%d, s%d" % (T, T, T + 1),
         "s_lshl_b32 s%d, s%d, 11" % (T, T),
         "s_lshl_b32 s%d, s%d, 8" % (T + 1, S_TN),
         "s_add_u32 s%d, s%d, s%d" % (T, T, T + 1),
         "s_lshl_b32 s%d, s%d, 5" % (T + 1, S_B[1]),
         "s_add_u32 s%d, s%d, s%d" % (T, T, T + 1),
         "s_lshl_b32 s%d, s%d, 7" % (T + 1, S_B[2]),
         "s_add_u32 s%d, s%d, s%d" % (T, T, T + 1),
         "s_add_u32 s%d, s%d, %d" % (T + 1, T, 16 * 2048),
         "v_lshlrev_b32 v%d, 11, v%d" % (F, V_L15),
         "v_lshl_add_u32 v%d, v%d, 3, v%d" % (F, V_G, F)]
    for i in range(mt):
        for j in range(nt):
            d = F + 2 + (i * nt + j) * 2
            g.append("buffer_load_dwordx2 v[%d:%d], v%d, s[20:23], s%d offen offset:%d" % (d, d + 1, F, T + i, j * 64))
    return [g]


def epi_resid_stats(a, c):
    return epi_resid(a, c, True)


def epi_resid(a, c, stats=False):
    acc, V_L15, V_G, mt, nt = c['acc'], c['V_L15'], c['V_G'], c['mt'], c['nt']
    F = c['free']
    Rr = F + 2
    S_T0 = 50
    for i in range(mt):
        for j in range(nt):
            round4(a, acc(i, j), 4, 5)
    a("s_waitcnt vmcnt(0)")
    for i in range(mt):
        for j in range(nt):
            d = Rr + (i * nt + j) * 2
            cc = acc(i, j)
            a("v_lshlrev_b32 v4, 16, v%d" % d)
            a("v_and_b32 v5, 0xffff0000, v%d" % d)
            a("v_add_f32 v%d, v%d, v4" % (cc, cc))
            a("v_add_f32 v%d, v%d, v5" % (cc + 1, cc + 1))
            a("v_lshlrev_b32 v4, 16, v%d" % (d + 1))
            a("v_and_b32 v5, 0xffff0000, v%d" % (d + 1))
            a("v_add_f32 v%d, v%d, v4" % (cc + 2, cc + 2))
            a("v_add_f32 v%d, v%d, v5" % (cc + 3, cc + 3))
            a("v_cvt_pk_bf16_f32 v%d, v%d, v%d" % (d, cc, cc + 1))
            a("v_cvt_pk_bf16_f32 v%d, v%d, v%d" % (d + 1, cc + 2, cc + 3))
            a("buffer_store_dwordx2 v[%d:%d], v%d, s[16:19], s%d offen offset:%d" % (d, d + 1, F, S_T0 + i, j * 64))
    if stats:
        a("s_lshl_b32 s%d, s%d, 6" % (S_T0 + 2, S_TM))
        a("s_lshl_b32 s%d, s%d, 5" % (S_T0 + 3, S_B[0]))
        a("s_add_u32 s%d, s%d, s%d" % (S_T0 + 2, S_T0 + 2, S_T0 + 3))
        a("s_lshl_b32 s%d, s%d, 6" % (S_T0 + 2, S_T0 + 2))
        a("s_lshl_b32 s%d, s%d, 3" % (S_T0 + 3, S_TN))
        a("s_add_u32 s%d, s%d, s%d" % (S_T0 + 2, S_T0 + 2, S_T0 + 3))
        a("v_lshlrev_b32 v9, 6, v%d" % V_L15)
        for i in range(mt):
            regs = [acc(i, j) + r for j in range(nt) for r in range(4)]
            m, q = 10 + 2 * i, 11 + 2 * i
            a("v_add_f32 v%d, v%d, v%d" % (m, regs[0], regs[1]))
            for r in regs[2:]:
                a("v_add_f32 v%d, v%d, v%d" % (m, m, r))
            xreduce(a, m, 4)
            a("v_mul_f32 v%d, %s, v%d" % (m, f32hex(1.0 / (16 * nt)), m))
            a("v_sub_f32 v4, v%d, v%d" % (regs[0], m))
            a("v_mul_f32 v%d, v4, v4" % q)
            for r in regs[1:]:
                a("v_sub_f32 v4, v%d, v%d" % (r, m))
                a("v_fmac_f32 v%d, v4, v4" % q)
            xreduce(a, q, 4)
        G = 128 // (16 * nt)
        a("s_barrier")
        a("v_lshlrev_b32 v14, 4, v0")
        wave_affine(a, S_T0 + 3, [4096, 1024, 2048], S_T0 + 4)
        a("v_add_u32 v15, s%d, v14" % (S_T0 + 3))
        a("ds_write_b128 v15, v[10:13]")
        a("s_waitcnt lgkmcnt(0)")
        a("s_barrier")
        sk = a.newlabel("st0")
        a("s_or_b32 s%d, s%d, s%d" % (S_T0 + 4, S_B[1], S_B[2]))
        a("s_cmp_lg_u32 s%d, 0" % (S_T0 + 4))
        a("s_cbranch_scc1 %s" % sk)
        OB = F + 20
        for k in range(1, G):
            a("ds_read_b128 v[%d:%d], v15 offset:%d" % (OB + 4 * k, OB + 4 * k + 3, k * 1024))
        a("s_waitcnt lgkmcnt(0)")
        for i in range(mt):
            m, q = 10 + 2 * i, 11 + 2 * i
            ms = [m] + [OB + 4 * k + 2 * i for k in range(1, G)]
            qs = [q] + [OB + 4 * k + 2 * i + 1 for k in range(1, G)]
            a("v_add_f32 v4, v%d, v%d" % (ms[0], ms[1]))
            for k in range(2, G):
                a("v_add_f32 v4, v4, v%d" % ms[k])
            a("v_mul_f32 v4, %s, v4" % f32hex(1.0 / G))
            for k in range(1, G):
                a("v_add_f32 v%d, v%d, v%d" % (q, q, qs[k]))
            a("v_mov_b32 v5, 0")
            for k in range(G):
                a("v_sub_f32 v6, v%d, v4" % ms[k])
                a("v_fmac_f32 v5, v6, v6")
            a("v_fmac_f32 v%d, %s, v5" % (q, f32hex(16.0 * nt)))
            a("v_mov_b32 v%d, v4" % m)
        a("s_mov_b64 exec, 0xffff")
        for i in range(mt):
            a("buffer_store_dwordx2 v[%d:%d], v9, s[24:27], s%d offen offset:%d" % (10 + 2 * i, 11 + 2 * i, S_T0 + 2, i * 1024))
        a("s_mov_b64 exec, -1")
        a.label(sk)
    return F + 40


def early_gemm4(c):
    V_L15, V_G, mt, nt, F = c['V_L15'], c['V_G'], c['mt'], c['nt'], c['free']
    T = 50
    g = ["s_lshl_b32 s%d, s%d, 7" % (T, S_TM),
         "s_lshl_b32 s%d, s%d, 6" % (T + 1, S_B[0]),
         "s_add_u32 s%d, s%d, s%d" % (T, T, T + 1),
         "s_lshl_b32 s%d, s%d, 11" % (T, T),
         "s_lshl_b32 s%d, s%d, 8" % (T + 1, S_TN),
         "s_add_u32 s%d, s%d, s%d" % (T, T, T + 1),
         "s_lshl_b32 s%d, s%d, 7" % (T + 1, S_B[2]),
         "s_add_u32 s%d, s%d, s%d" % (T, T, T + 1),
         "s_lshl_b32 s%d, s%d, 5" % (T + 1, S_B[1]),
         "s_add_u32 s%d, s%d, s%d" % (T, T, T + 1)]
    for i in range(1, 4):
        g.append("s_add_u32 s%d, s%d, %d" % (T + i, T, i * 16 * 2048))
    g += ["v_lshlrev_b32 v%d, 11, v%d" % (F, V_L15),
          "v_lshl_add_u32 v%d, v%d, 3, v%d" % (F, V_G, F)]
    for i in range(mt):
        for j in range(nt):
            d = F + 2 + (i * nt + j) * 2
            g.append("buffer_load_dwordx2 v[%d:%d], v%d, s[20:23], s%d offen offset:%d" % (d, d + 1, F, T + i, j * 64))
    return [g]


def epi_gemm4(a, c):
    acc, V_L15, V_G, mt, nt = c['acc'], c['V_L15'], c['V_G'], c['mt'], c['nt']
    F = c['free']
    Rr = F + 2
    PB = F + 2 + mt * nt * 2
    T = 50
    a("s_lshl_b32 s54, s%d, 3" % S_TM)
    a("s_add_u32 s54, s54, s%d" % S_TN)
    a("s_and_b32 s55, s54, 1")
    a("s_lshl_b32 s55, s55, 4")
    a("s_lshr_b32 s56, s54, 1")
    a("s_lshl_b32 s56, s56, 2")
    a("s_lshl_b32 s57, 1, s55")
    a("s_lshl_b32 s58, 0x100, s55")
    a("s_lshl_b32 s59, s54, 16")
    a("s_lshl_b32 s%d, s%d, 13" % (S_T0, S_WAVE))
    a("s_add_u32 s59, s59, s%d" % S_T0)
    a("v_lshlrev_b32 v4, 4, v0")
    a("v_mov_b32 v5, 0")
    nw0 = a.newlabel("nw0")
    a("s_barrier")
    a("s_cmp_lg_u32 s%d, 0" % S_WAVE)
    a("s_cbranch_scc1 %s" % nw0)
    a("v_mov_b32 v6, s57")
    a("s_mov_b64 exec, 1")
    a("buffer_atomic_add v6, v5, s[24:27], s56 offen sc0 sc1")
    a("s_waitcnt vmcnt(0)")
    a("ds_write_b32 v5, v6")
    a("s_waitcnt lgkmcnt(0)")
    a("s_mov_b64 exec, -1")
    a.label(nw0)
    a("s_barrier")
    a("ds_read_b32 v6, v5")
    a("s_waitcnt lgkmcnt(0)")
    a("v_readfirstlane_b32 s%d, v6" % S_T0)
    a("s_lshr_b32 s%d, s%d, s55" % (S_T0, S_T0))
    a("s_and_b32 s%d, s%d, 0xff" % (S_T0, S_T0))
    second = a.newlabel("second")
    done = a.newlabel("done")
    a("s_cmp_lg_u32 s%d, 0" % S_T0)
    a("s_cbranch_scc1 %s" % second)
    for i in range(mt):
        for j in range(nt):
            cc = acc(i, j)
            k = i * nt + j
            if k == 4:
                a("s_add_u32 s59, s59, 4096")
            a("buffer_store_dwordx4 v[%d:%d], v4, s[92:95], s59 offen offset:%d sc1" % (cc, cc + 3, (k & 3) * 1024))
    a("s_waitcnt vmcnt(0)")
    a("s_barrier")
    a("s_cmp_lg_u32 s%d, 0" % S_WAVE)
    a("s_cbranch_scc1 %s" % done)
    a("v_mov_b32 v6, s58")
    a("s_mov_b64 exec, 1")
    a("buffer_atomic_add v6, v5, s[24:27], s56 offen sc1")
    a("s_mov_b64 exec, -1")
    a("s_branch %s" % done)
    a.label(second)
    nw1 = a.newlabel("nw1")
    a("s_cmp_lg_u32 s%d, 0" % S_WAVE)
    a("s_cbranch_scc1 %s" % nw1)
    poll = a.newlabel("poll")
    a.label(poll)
    a("buffer_load_dword v6, v5, s[24:27], s56 offen sc1")
    a("s_waitcnt vmcnt(0)")
    a("v_readfirstlane_b32 s%d, v6" % S_T0)
    a("s_and_b32 s%d, s%d, s58" % (S_T0, S_T0))
    a("s_cmp_lg_u32 s%d, 0" % S_T0)
    a("s_cbranch_scc1 %s" % nw1)
    a("s_sleep 2")
    a("s_branch %s" % poll)
    a.label(nw1)
    a("s_barrier")
    for k in range(mt * nt):
        if k == 4:
            a("s_add_u32 s59, s59, 4096")
        a("buffer_load_dwordx4 v[%d:%d], v4, s[92:95], s59 offen offset:%d sc1" % (PB + 4 * k, PB + 4 * k + 3, (k & 3) * 1024))
    for i in range(mt):
        for j in range(nt):
            k = i * nt + j
            cc = acc(i, j)
            d = Rr + k * 2
            a("s_waitcnt vmcnt(%d)" % (mt * nt - 1 - k + k))
            for r in range(4):
                a("v_add_f32 v%d, v%d, v%d" % (cc + r, cc + r, PB + 4 * k + r))
            round4(a, cc, 6, 7)
            a("v_lshlrev_b32 v6, 16, v%d" % d)
            a("v_and_b32 v7, 0xffff0000, v%d" % d)
            a("v_add_f32 v%d, v%d, v6" % (cc, cc))
            a("v_add_f32 v%d, v%d, v7" % (cc + 1, cc + 1))
            a("v_lshlrev_b32 v6, 16, v%d" % (d + 1))
            a("v_and_b32 v7, 0xffff0000, v%d" % (d + 1))
            a("v_add_f32 v%d, v%d, v6" % (cc + 2, cc + 2))
            a("v_add_f32 v%d, v%d, v7" % (cc + 3, cc + 3))
            a("v_cvt_pk_bf16_f32 v%d, v%d, v%d" % (d, cc, cc + 1))
            a("v_cvt_pk_bf16_f32 v%d, v%d, v%d" % (d + 1, cc + 2, cc + 3))
            a("buffer_store_dwordx2 v[%d:%d], v%d, s[16:19], s%d offen offset:%d" % (d, d + 1, F, T + i, j * 64))
    a.label(done)
    return PB + 4 * mt * nt


V_ST = 19
V_PAR = 20


def pre_gemm3(a, c):
    V_L15, V_G, t = c['V_L15'], c['V_G'], c['V_T']
    srd_from_ptr(a, 20, 4, S * 128, WS_ST)
    a("s_lshl_b32 s%d, s%d, 7" % (S_T0, S_TM))
    a("s_lshl_b32 s%d, s%d, 6" % (S_T0 + 1, S_B[0]))
    a("s_add_u32 s%d, s%d, s%d" % (S_T0, S_T0, S_T0 + 1))
    a("s_lshl_b32 s%d, s%d, 7" % (S_T0, S_T0))
    a("v_lshlrev_b32 v%d, 7, v%d" % (t, V_L15))
    a("v_lshl_add_u32 v%d, v%d, 5, v%d" % (t, V_G, t))
    a("s_add_u32 s%d, s%d, 4096" % (S_T0 + 1, S_T0))
    for i in range(4):
        so = S_T0 + (i >> 1)
        a("buffer_load_dwordx4 v[%d:%d], v%d, s[20:23], s%d offen offset:%d" % (ACC0 + 8 * i, ACC0 + 8 * i + 3, t, so, (i & 1) * 2048))
        a("buffer_load_dwordx4 v[%d:%d], v%d, s[20:23], s%d offen offset:%d" % (ACC0 + 8 * i + 4, ACC0 + 8 * i + 7, t, so, (i & 1) * 2048 + 16))
    return 8


def pro_gemm3(a, c):
    a("s_waitcnt vmcnt(%d)" % c['nissued'])
    T = ACC0 + 40
    for i in range(4):
        b = ACC0 + 8 * i
        m, q = T, T + 1
        a("v_add_f32 v%d, v%d, v%d" % (m, b, b + 2))
        a("v_add_f32 v%d, v%d, v%d" % (m, m, b + 4))
        a("v_add_f32 v%d, v%d, v%d" % (m, m, b + 6))
        xreduce(a, m, T + 2)
        a("v_mul_f32 v%d, %s, v%d" % (m, f32hex(1.0 / 16), m))
        a("v_add_f32 v%d, v%d, v%d" % (q, b + 1, b + 3))
        a("v_add_f32 v%d, v%d, v%d" % (q, q, b + 5))
        a("v_add_f32 v%d, v%d, v%d" % (q, q, b + 7))
        a("v_mov_b32 v%d, 0" % (T + 3))
        for k in range(4):
            a("v_sub_f32 v%d, v%d, v%d" % (T + 2, b + 2 * k, m))
            a("v_fmac_f32 v%d, v%d, v%d" % (T + 3, T + 2, T + 2))
        a("v_fmac_f32 v%d, %s, v%d" % (q, f32hex(64.0), T + 3))
        xreduce(a, q, T + 2)
        a("v_mul_f32 v%d, %s, v%d" % (q, f32hex(1.0 / D), q))
        a("v_cvt_pk_bf16_f32 v%d, v%d, v%d" % (T + 2, m, q))
        a("v_lshlrev_b32 v%d, 16, v%d" % (m, T + 2))
        a("v_and_b32 v%d, 0xffff0000, v%d" % (q, T + 2))
        a("v_add_f32 v%d, %s, v%d" % (q, f32hex(1e-5), q))
        a("v_cvt_pk_bf16_f32 v%d, v%d, v%d" % (T + 2, q, q))
        a("v_lshlrev_b32 v%d, 16, v%d" % (q, T + 2))
        a("v_sqrt_f32 v%d, v%d" % (q, q))
        a("s_nop 0")
        a("v_cvt_pk_bf16_f32 v%d, v%d, v%d" % (T + 2, q, q))
        a("v_lshlrev_b32 v%d, 16, v%d" % (q, T + 2))
        a("v_rcp_f32 v%d, v%d" % (V_PAR + 2 * i, q))
        a("s_nop 0")
        a("v_mul_f32 v%d, v%d, v%d" % (V_PAR + 2 * i + 1, m, V_PAR + 2 * i))
        a("v_sub_f32 v%d, 0, v%d" % (V_PAR + 2 * i + 1, V_PAR + 2 * i + 1))


def last_gemm3(c):
    R, V_G, VX, af = c['R'], c['V_G'], c['V_XO'], c['afree']
    ocol = R['ocol']
    g = ["s_add_u32 s88, s4, 0x%x" % WS_CS, "s_addc_u32 s89, s5, 0", "s_mov_b32 s90, %d" % (2 * DF * 4), "s_mov_b32 s91, 0x00020000",
         "s_mul_i32 s%d, s%d, 896" % (S_T0, S_TN),
         "s_lshl_b32 s%d, s%d, 6" % (S_T0 + 1, S_B[1]),
         "s_add_u32 s%d, s%d, s%d" % (S_T0, S_T0, S_T0 + 1),
         "s_and_b32 s%d, s%d, 1" % (S_T0 + 1, S_TN),
         "s_cmp_lg_u32 s%d, 0" % (S_T0 + 1),
         "s_cselect_b32 s%d, 0, 768" % (S_T0 + 2),
         "s_cselect_b32 s%d, 128, 0" % (S_T0 + 1),
         "s_add_u32 s%d, s%d, s%d" % (S_T0 + 2, S_T0 + 2, S_T0),
         "s_add_u32 s%d, s%d, s%d" % (S_T0 + 1, S_T0 + 1, S_T0),
         "s_add_u32 s%d, s%d, %d" % (S_T0 + 3, S_T0 + 1, DF * 4),
         "s_add_u32 s%d, s%d, %d" % (S_T0 + 4, S_T0 + 2, DF * 4),
         "v_lshlrev_b32 v%d, 4, v%d" % (VX[0], V_G)]
    np_ = len(ocol)
    g += ["s_add_u32 s20, s4, 0x%x" % WS_ST, "s_addc_u32 s21, s5, 0", "s_mov_b32 s22, %d" % (S * 64), "s_mov_b32 s23, 0x00020000",
          "s_lshl_b32 s%d, s%d, 7" % (S_T0 + 5, S_TM),
          "s_lshl_b32 s%d, s%d, 6" % (S_T0 + 6, S_B[0]),
          "s_add_u32 s%d, s%d, s%d" % (S_T0 + 5, S_T0 + 5, S_T0 + 6),
          "s_lshl_b32 s%d, s%d, 6" % (S_T0 + 5, S_T0 + 5),
          "v_lshl_add_u32 v%d, v%d, 6, v%d" % (VX[1], c['V_L15'], VX[0])]
    for i in range(4):
        d = af + 2 * np_ * 4 + 4 * i
        g.append("buffer_load_dwordx4 a[%d:%d], v%d, s[20:23], s%d offen offset:%d" % (d, d + 3, VX[1], S_T0 + 5, i * 1024))
    for m in range(2):
        for j, (typ, off) in enumerate(ocol):
            so = (S_T0 + 1 if typ == 'A' else S_T0 + 2) + 2 * m
            d = af + (m * np_ + j) * 4
            g.append("buffer_load_dwordx4 a[%d:%d], v%d, s[88:91], s%d offen offset:%d" % (d, d + 3, VX[0], so, off * 2))
    return [g]


def epi_gemm3(a, c):
    acc, V_L15, V_G, R = c['acc'], c['V_L15'], c['V_G'], c['R']
    npair = c['nt'] // 2
    ocol = R['ocol']
    ldo = DF * 2
    a("s_lshl_b32 s%d, s%d, 7" % (S_T0, S_TM))
    a("s_lshl_b32 s%d, s%d, 6" % (S_T0 + 1, S_B[0]))
    a("s_add_u32 s%d, s%d, s%d" % (S_T0, S_T0, S_T0 + 1))
    a("s_mul_i32 s%d, s%d, %d" % (S_T0, S_T0, ldo))
    a("s_mul_i32 s%d, s%d, 448" % (S_T0 + 1, S_TN))
    a("s_add_u32 s%d, s%d, s%d" % (S_T0, S_T0, S_T0 + 1))
    a("s_lshl_b32 s%d, s%d, 5" % (S_T0 + 1, S_B[1]))
    a("s_add_u32 s%d, s%d, s%d" % (S_T0, S_T0, S_T0 + 1))
    for i in range(1, 4):
        a("s_add_u32 s%d, s%d, %d" % (S_T0 + i, S_T0, i * 16 * ldo))
    a("s_mov_b32 s%d, %d" % (S_T0 + 4, ldo))
    VA = 3
    a("v_mul_lo_u32 v%d, v%d, s%d" % (VA, V_L15, S_T0 + 4))
    a("v_lshl_add_u32 v%d, v%d, 3, v%d" % (VA, V_G, VA))
    a("s_and_b32 s%d, s%d, 1" % (S_T0 + 5, S_TN))
    a("s_cmp_lg_u32 s%d, 0" % (S_T0 + 5))
    a("s_cselect_b32 s%d, 0, 384" % (S_T0 + 6))
    a("s_cselect_b32 s%d, 64, 0" % (S_T0 + 5))
    c1 = -2.0 * LOG2E * 0.7978845608028654
    c2 = c1 * 0.044715
    a("s_mov_b32 s%d, %s" % (S_T0 + 8, f32hex(c2)))
    a("s_mov_b32 s%d, %s" % (S_T0 + 9, f32hex(c2)))
    a("v_mov_b32 v4, %s" % f32hex(c1))
    a("v_mov_b32 v5, %s" % f32hex(c1))
    T0 = 6
    af = c['afree']
    a("s_waitcnt vmcnt(0)")
    for i0 in (0, 2):
        ii = (i0, i0 + 1)
        raw = {i: 6 + 4 * (i - i0) for i in ii}
        mm = {i: 14 + 3 * (i - i0) for i in ii}
        for i in ii:
            for r in range(4):
                a("v_accvgpr_read_b32 v%d, a%d" % (raw[i] + r, af + 2 * npair * 4 + 4 * i + r))

        def par(fn):
            for i in ii:
                fn(raw[i], mm[i], mm[i] + 1, mm[i] + 2, V_PAR + 2 * i)

        def xred2(sel):
            par(lambda b, m, q, t, p: a("v_mov_b32 v%d, v%d" % (t, sel(m, q))))
            a("s_nop 0")
            par(lambda b, m, q, t, p: a("v_permlane16_swap_b32 v%d, v%d" % (sel(m, q), t)))
            a("s_nop 0")
            par(lambda b, m, q, t, p: a("v_add_f32 v%d, v%d, v%d" % (sel(m, q), sel(m, q), t)))
            par(lambda b, m, q, t, p: a("v_mov_b32 v%d, v%d" % (t, sel(m, q))))
            a("s_nop 1")
            par(lambda b, m, q, t, p: a("v_permlane32_swap_b32 v%d, v%d" % (sel(m, q), t)))
            a("s_nop 0")
            par(lambda b, m, q, t, p: a("v_add_f32 v%d, v%d, v%d" % (sel(m, q), sel(m, q), t)))
        par(lambda b, m, q, t, p: a("v_add_f32 v%d, v%d, v%d" % (m, b, b + 2)))
        par(lambda b, m, q, t, p: a("v_add_f32 v%d, v%d, v%d" % (q, b + 1, b + 3)))
        a("s_nop 0")
        xred2(lambda m, q: m)
        par(lambda b, m, q, t, p: a("v_mul_f32 v%d, %s, v%d" % (m, f32hex(1.0 / 8), m)))
        par(lambda b, m, q, t, p: a("v_sub_f32 v%d, v%d, v%d" % (b, b, m)))
        par(lambda b, m, q, t, p: a("v_sub_f32 v%d, v%d, v%d" % (b + 2, b + 2, m)))
        par(lambda b, m, q, t, p: a("v_mul_f32 v%d, v%d, v%d" % (b, b, b)))
        par(lambda b, m, q, t, p: a("v_fmac_f32 v%d, v%d, v%d" % (b, b + 2, b + 2)))
        par(lambda b, m, q, t, p: a("v_fmac_f32 v%d, %s, v%d" % (q, f32hex(128.0), b)))
        a("s_nop 0")
        xred2(lambda m, q: q)
        par(lambda b, m, q, t, p: a("v_mul_f32 v%d, %s, v%d" % (q, f32hex(1.0 / D), q)))
        par(lambda b, m, q, t, p: a("v_cvt_pk_bf16_f32 v%d, v%d, v%d" % (t, m, q)))
        par(lambda b, m, q, t, p: a("v_lshlrev_b32 v%d, 16, v%d" % (m, t)))
        par(lambda b, m, q, t, p: a("v_and_b32 v%d, 0xffff0000, v%d" % (q, t)))
        par(lambda b, m, q, t, p: a("v_add_f32 v%d, %s, v%d" % (q, f32hex(1e-5), q)))
        par(lambda b, m, q, t, p: a("v_cvt_pk_bf16_f32 v%d, v%d, v%d" % (t, q, q)))
        par(lambda b, m, q, t, p: a("v_lshlrev_b32 v%d, 16, v%d" % (q, t)))
        par(lambda b, m, q, t, p: a("v_sqrt_f32 v%d, v%d" % (q, q)))
        a("s_nop 0")
        par(lambda b, m, q, t, p: a("v_cvt_pk_bf16_f32 v%d, v%d, v%d" % (t, q, q)))
        par(lambda b, m, q, t, p: a("v_lshlrev_b32 v%d, 16, v%d" % (q, t)))
        par(lambda b, m, q, t, p: a("v_rcp_f32 v%d, v%d" % (p, q)))
        a("s_nop 0")
        par(lambda b, m, q, t, p: a("v_mul_f32 v%d, v%d, v%d" % (p + 1, m, p)))
        par(lambda b, m, q, t, p: a("v_sub_f32 v%d, 0, v%d" % (p + 1, p + 1)))
    a("v_add_u32 v10, s%d, v%d" % (S_T0 + 6, VA))
    a("v_add_u32 v%d, s%d, v%d" % (VA, S_T0 + 5, VA))
    for j in range(npair):
        for m in range(2):
            for r in range(4):
                a("v_accvgpr_read_b32 v%d, a%d" % (12 + r, af + (m * npair + j) * 4 + r))
            for i in range(4):
                cc = acc(i, m * npair + j)
                pr = V_PAR + 2 * i
                for h in range(2):
                    a("v_pk_mul_f32 v[%d:%d], v[%d:%d], v[%d:%d] op_sel:[0,1] op_sel_hi:[1,1]" % (16, 17, 12 + 2 * h, 13 + 2 * h, pr, pr + 1))
                    a("v_pk_fma_f32 v[%d:%d], v[%d:%d], v[%d:%d], v[16:17] op_sel:[0,0,0] op_sel_hi:[1,0,1]" % (cc + 2 * h, cc + 2 * h + 1, cc + 2 * h, cc + 2 * h + 1, pr, pr + 1))
    for i in range(4):
        for j in range(npair):
            g = acc(i, j)
            u = acc(i, npair + j)
            for h in range(2):
                gg = g + 2 * h
                tt = T0 + 2 * h
                a("v_pk_mul_f32 v[%d:%d], v[%d:%d], v[%d:%d]" % (tt, tt + 1, gg, gg + 1, gg, gg + 1))
            for h in range(2):
                tt = T0 + 2 * h
                a("v_pk_fma_f32 v[%d:%d], v[%d:%d], s[%d:%d], v[4:5]" % (tt, tt + 1, tt, tt + 1, S_T0 + 8, S_T0 + 9))
            for h in range(2):
                gg = g + 2 * h
                tt = T0 + 2 * h
                a("v_pk_mul_f32 v[%d:%d], v[%d:%d], v[%d:%d]" % (tt, tt + 1, tt, tt + 1, gg, gg + 1))
            for r in range(4):
                a("v_exp_f32 v%d, v%d" % (T0 + r, T0 + r))
            for h in range(2):
                gg = g + 2 * h
                uu = u + 2 * h
                a("v_pk_mul_f32 v[%d:%d], v[%d:%d], v[%d:%d]" % (gg, gg + 1, gg, gg + 1, uu, uu + 1))
            for r in range(4):
                a("v_add_f32 v%d, 1.0, v%d" % (T0 + r, T0 + r))
            for r in range(4):
                a("v_rcp_f32 v%d, v%d" % (T0 + r, T0 + r))
            a("s_nop 0")
            for h in range(2):
                gg = g + 2 * h
                tt = T0 + 2 * h
                a("v_pk_mul_f32 v[%d:%d], v[%d:%d], v[%d:%d]" % (gg, gg + 1, gg, gg + 1, tt, tt + 1))
            a("v_cvt_pk_bf16_f32 v%d, v%d, v%d" % (g, g, g + 1))
            a("v_cvt_pk_bf16_f32 v%d, v%d, v%d" % (g + 1, g + 2, g + 3))
            a("buffer_store_dwordx2 v[%d:%d], v%d, s[16:19], s%d offen offset:%d" % (g, g + 1, VA if ocol[j][0] == 'A' else 10, S_T0 + i, ocol[j][1]) + (" sc0 sc1" if "wt1" in EXP else " nt" if "wt2" in EXP else " sc1" if "wt3" in EXP else ""))
    return 0


def build():
    a = Asm()
    descs = []
    launches = []

    if "pf" in EXP:
        descs.append(prefetch_kernel(a, "pf_kernel"))
        launches.append(("pf_kernel", 1024, 256, 0))
    descs.append(ln_kernel(a, "ln1_kernel", ('arg', 'x'), WS_XN, True))
    launches.append(("ln1_kernel", S // 4, 256, 0))

    ldw = 3 * D * 2

    def srds1(a):
        srd_from_ptr(a, 16, 4, S * D * 2, WS_PQ)
        srd_from_ptr(a, 20, 4, 135168, WS_KV)
    R1 = dict(nxp=2, xp_coef=[2, 4, 8], mt=2,
              waddr=[('A', 0), ('A', 32)], t_coefA=[0, 2, 0],
              ntiles=[(0, 0, True), (1, 0, True), (0, 1024, False), (1, 1024, False), (0, 2048, False), (1, 2048, False)],
              w_slot=[('A', i * 2048, i * 1024, 0) for i in range(3)], ko_par=0,
              wg_coefA=[8 * ldw, 16 * ldw, 32 * ldw], wl_coefA=[3 * 1024, 6 * 1024, 12 * 1024],
              row_coef=[32, 0, 64], wr_coef=[0, 0, 0])
    P1 = dict(name="gemm1_kernel", rtidx=0, NW=8, BM=128, kbx=2, kbw=2, NSX=4, NSW=4, WB=24576, kostrideA=3072,
              K=D, ldx=D * 2, ldw=ldw, x_ws=WS_XN,
              w=['wqkv'], helper=[('wg', D * DF * 2), ('wu', D * DF * 2)], epi_bars=2, mblk_bits=1, srds=srds1, tn_bytes=128, epilogue=epi_gemm1, roles=[R1])
    descs.append(gemm_kernel(a, P1))
    launches.append(("gemm1_kernel", 256, 576, 4 * 16384 + 4 * 24576))


    def srds2(a):
        srd_from_ptr(a, 16, 4, S * D * 2, WS_H)
        srd_from_ptr(a, 20, 62, S * D * 2)
        srd_from_ptr(a, 24, 4, S * 64, WS_ST)
    ldw = D * 2
    R2 = dict(nxp=2, xp_coef=[2, 4, 0], mt=2,
              waddr=[('A', 0), ('A', 64)], t_coefA=[0, 1, 0],
              ntiles=[(0, 0, True), (1, 0, True), (0, 1024, True), (1, 1024, True)],
              w_slot=[('A', (i >> 1) * 8 * ldw + (i & 1) * 128, i * 1024, i >> 1) for i in range(4)], ko_par=None,
              wg_coefA=[16 * ldw, 32 * ldw, 0], wl_coefA=[4 * 1024, 8 * 1024, 0],
              row_coef=[32, 0, 0], wr_coef=[0, 0, 0])
    NS2 = 6
    P2 = dict(name="gemm2_kernel", rtidx=1, NW=4, BM=64, kbx=2, kbw=2, NSX=NS2, NSW=NS2, WB=16384, kostrideA=2048,
              K=D, ldx=D * 2, ldw=ldw, x_ws=WS_O,
              w=['wo'], argptrs=[(62, 'x')], mblk_bits=2, srds=srds2, tn_bytes=256, epilogue=epi_resid_stats, early=early_resid, roles=[R2])
    R2f = dict(nxp=0, xp_coef=[0, 0, 0], mt=2,
               waddr=[('A', 0), ('A', 64)], t_coefA=[0, 1, 0],
               ntiles=[(0, 0, True), (1, 0, True)],
               w_slot=[('A', 0, 0, 0)], ko_par=0,
               wg_coefA=[8 * ldw, 16 * ldw, 128], wl_coefA=[2 * 1024, 4 * 1024, 1024],
               row_coef=[32, 0, 0], wr_coef=[0, 0, 1024])
    P2f = dict(P2)
    P2f.update(NW=8, x_static=True, NSX=16, kbw=1, NSW=4, WB=8192, pro=pro_gemm2, roles=[R2f])
    descs.append(gemm_kernel(a, P2f))
    launches.append(("gemm2_kernel", 256, 512, 163840))


    def srds3(a):
        srd_from_ptr(a, 16, 4, S * DF * 2, WS_HH)
    ldw = DF * 2
    KB = 1024
    R3a = dict(nxp=2, xp_coef=[2, 4, 8], mt=4,
               waddr=[('A', 0), ('A', 64)], t_coefA=[0, 1, 0],
               ntiles=[(a_, o_ + m_ * 14 * KB, True) for m_ in range(2) for (a_, o_) in ((0, 0), (1, 0), (0, KB), (1, KB))],
               w_slot=[('A', i * 128, i * KB, 0) for i in range(3)], ko_par=0,
               wg_coefA=[8 * ldw, 0, 0], wl_coefA=[3 * KB, 14 * KB, 0],
               row_coef=[64, 0, 0], wr_coef=[0, 0, 0],
               ocol=[('A', 0), ('A', 64), ('A', 128), ('A', 192)])
    R3b = dict(nxp=2, xp_coef=[2, 4, 8], mt=4,
               waddr=[('A', 0), ('A', 64), ('B', 0)], t_coefA=[0, 1, 0], t_coefB=[0, 1, 0],
               ntiles=[(a_, o_ + m_ * 14 * KB, True) for m_ in range(2) for (a_, o_) in ((0, 2 * KB), (1, 2 * KB), (2, 12 * KB))],
               w_slot=[('A', 16 * ldw + i * 128, 6 * KB + i * KB, 0) for i in range(3)] + [('B', 0, 12 * KB)], ko_par=0,
               wg_coefA=[8 * ldw, 0, 0], wl_coefA=[3 * KB, 14 * KB, 0],
               wg_coefB=[16 * ldw, 0, 0], wl_coefB=[KB, 14 * KB, 0],
               row_coef=[64, 0, 0], wr_coef=[0, 0, 0],
               ocol=[('A', 256), ('A', 320), ('B', 0)])
    P3 = dict(name="gemm3_kernel", rtidx=2, NW=8, BM=128, kbx=2, kbw=1, NSX=3, NSW=4, WB=28 * KB, kostrideA=3 * KB, k16strideB=KB,
              par_offA=(0, 64), par_offB=(384, 0),
              K=D, ldx=D * 2, ldw=ldw, x_ws=WS_H,
              w=['wg', 'wu'], pf=[('wd', D * DF * 2)], pf_step=16, last_extras=last_gemm3, wsel_bit=1, mblk_bits=1, srds=srds3, tn_bytes=448, epilogue=epi_gemm3,
              roles=[R3a, R3b])
    descs.append(gemm_kernel(a, P3))
    launches.append(("gemm3_kernel", 256, 512, 3 * 16384 + 4 * 28 * KB))

    def srds4(a):
        srd_from_ptr(a, 16, 62, S * D * 2)
        srd_from_ptr(a, 20, 4, S * D * 2, WS_H)
    P4 = dict(P2)
    P4.update(name="gemm4_kernel", rtidx=3, K=DF, ldx=DF * 2, x_ws=WS_HH, w=['wd'], pf=[], helper=[], argptrs=[(62, 'out')],
              srds=srds4, epilogue=epi_resid)
    if True:
        ldw = D * 2
        R4 = dict(nxp=1, xp_coef=[1, 2, 4], mt=2,
                  waddr=[('A', 0), ('A', 64)], t_coefA=[0, 1, 0],
                  ntiles=[(0, 0, True), (1, 0, True)],
                  w_slot=[('A', i * 128, i * 1024, 0) for i in range(2)], ko_par=0,
                  wg_coefA=[8 * ldw, 16 * ldw, 32 * ldw], wl_coefA=[2 * 1024, 4 * 1024, 8 * 1024],
                  row_coef=[32, 0, 0], wr_coef=[0, 0, 1024])
        P4.update(NW=8, roles=[R4])
    descs.append(gemm_kernel(a, P4))
    launches.append(("gemm4_kernel", 256, 64 * P4['NW'], NS2 * (8192 + 16384)))

    hdr = ["; pre-LN linear attention block + GEGLU FFN, hand-written gfx950 kernels (generated by gen/gen.py)"]
    for (k, g, b, l) in launches:
        hdr.append("; @launch kernel=%s grid=(%d,1,1) block=(%d,1,1) lds=%d" % (k, g, b, l))
    hdr.append('.amdgcn_target "amdgcn-amd-amdhsa--gfx950"')
    hdr.append(".text")
    txt = "\n".join(hdr) + "\n" + "\n".join(a.lines) + "\n" + '.section .rodata,"a"\n' + "".join(descs)
    return txt


if __name__ == "__main__":
    out = sys.argv[1] if len(sys.argv) > 1 else OUT
    open(out, "w").write(build())
    print("wrote", out)
```
